```python
import torch

def _softmax(x, axis=-1):
    return torch.softmax(x, dim=axis)
def _gelu(x):
    return torch.nn.functional.gelu(x, approximate="tanh")
def _silu(x):
    return torch.nn.functional.silu(x)
def _sigmoid(x):
    return torch.sigmoid(x)
def _layernorm(x, axis=-1, eps=1e-5):
    m = x.mean(dim=axis, keepdim=True)
    v = x.var(dim=axis, keepdim=True, unbiased=False)
    return (x - m) / torch.sqrt(v + eps)
def _scatter_add(tgt, idx, src, axis=0):
    return tgt.clone().index_add_(axis, idx, src)
def _segment_sum(src, seg, n):
    out = torch.zeros((n,) + src.shape[1:], dtype=src.dtype)
    return out.index_add_(0, seg, src)
def _pad(x, pw):
    flat = tuple(v for pair in reversed(pw) for v in pair)
    return torch.nn.functional.pad(x, flat)

kernel_name = 'standalone__edge_featured_mpnn_gatedgcn__graph'

def setup_inputs():

    _w = (lambda a: (lambda t: t.to(torch.bfloat16) if t.is_floating_point() else t)(torch.as_tensor(a)))
    N, deg, D, De = 10000, 32, 128, max(4, 1)
    E = N * deg
    return {
        "x": _w((lambda *s: torch.randn(*s, dtype=torch.bfloat16) * 0.4)(N, D)),
        "e_attr": _w((lambda *s: torch.randn(*s, dtype=torch.bfloat16) * 0.8)(E, De)),
        "src": _w((lambda lo, hi, *s: torch.randint(lo, hi, s))(0, N, E).to(torch.int64)),
        "dst": _w((lambda lo, hi, *s: torch.randint(lo, hi, s))(0, N, E).to(torch.int64)),
        "w_a": _w((lambda *s: torch.randn(*s, dtype=torch.bfloat16) * 0.4)(D, D)),
        "w_b": _w((lambda *s: torch.randn(*s, dtype=torch.bfloat16) * 0.4)(D, D)),
        "w_c": _w((lambda *s: torch.randn(*s, dtype=torch.bfloat16) * 0.8)(De, D)),
        "w_u": _w((lambda *s: torch.randn(*s, dtype=torch.bfloat16) * 0.05)(D, D)),
        "w_v": _w((lambda *s: torch.randn(*s, dtype=torch.bfloat16) * 0.05)(D, D)),
    }

def reference(x, e_attr, src, dst, w_a, w_b, w_c, w_u, w_v):
    N, D = x.shape
    hv = x @ w_v
    g = x[dst] @ w_a + x[src] @ w_b + e_attr @ w_c
    eta = _sigmoid(g)
    denom = _segment_sum(eta, dst, N) + 1e-6
    eta_n = eta / denom[dst]
    agg = _segment_sum(eta_n * hv[src], dst, N)
    z = x @ w_u + agg
    relu_z = torch.where(z > 0, z, 0 * z)
    return x + relu_z
```

```python
import re

TRANS = ('v_exp_f32', 'v_rcp_f32', 'v_log_f32', 'v_rsq_f32', 'v_sqrt_f32', 'v_sin_f32', 'v_cos_f32')


def regs_of(op):
    op = op.strip()
    op = op.lstrip('-')
    m = re.fullmatch(r'abs\((.*)\)', op)
    if m:
        op = m.group(1)
    m = re.fullmatch(r'([vsa])(\d+)', op)
    if m:
        return {(m.group(1), int(m.group(2)))}
    m = re.fullmatch(r'([vsa])\[(\d+):(\d+)\]', op)
    if m:
        return {(m.group(1), i) for i in range(int(m.group(2)), int(m.group(3)) + 1)}
    if op == 'vcc':
        return {('s', 'vcc')}
    if op == 'exec':
        return {('s', 'exec')}
    if op == 'm0':
        return {('s', 'm0')}
    return set()


class I:
    def __init__(self, text):
        self.text = text
        t = text.split(';')[0].strip()
        parts = t.split(None, 1)
        self.op = parts[0]
        rest = parts[1] if len(parts) > 1 else ''
        ops = [o.strip() for o in rest.split(',')] if rest else []
        self.mods = ''
        joined = []
        depth = 0
        cur = ''
        for ch in rest:
            if ch == '[':
                depth += 1
            if ch == ']':
                depth -= 1
            if ch == ',' and depth == 0:
                joined.append(cur.strip())
                cur = ''
            else:
                cur += ch
        if cur.strip():
            joined.append(cur.strip())
        ops = joined
        if ops:
            last = ops[-1].split(None, 1)
            ops[-1] = last[0]
            self.mods = last[1] if len(last) > 1 else ''
        self.ops = ops
        op = self.op
        self.is_mfma = op.startswith('v_mfma')
        self.is_valu = op.startswith('v_') and not self.is_mfma
        self.is_salu = op.startswith('s_')
        self.is_ds = op.startswith('ds_')
        self.is_vmem = op.startswith(('buffer_', 'global_', 'flat_'))
        self.is_trans = any(op.startswith(x) for x in TRANS)
        self.is_dpp = '_dpp' in op or 'row_' in self.mods or 'quad_perm' in self.mods
        self.dst = set()
        self.src = set()
        R = [regs_of(o) for o in ops]
        if self.is_mfma:
            self.dst = R[0]
            self.A, self.B, self.C = R[1], R[2], R[3]
            self.src = R[1] | R[2] | R[3]
            self.passes = 2 if '4x4x4' in op else (4 if '16x16' in op else 8)
        elif self.is_valu:
            if op.startswith('v_cmp'):
                self.dst = R[0]
                self.src = set().union(*R[1:])
            elif op.startswith(('v_add_co', 'v_addc_co', 'v_sub_co', 'v_subb_co')):
                self.dst = R[0] | R[1]
                self.src = set().union(*R[2:])
            elif op.startswith('v_permlane'):
                self.dst = R[0] | R[1]
                self.src = R[0] | R[1]
            else:
                self.dst = R[0]
                self.src = set().union(*R[1:]) if len(R) > 1 else set()
                if op.startswith(('v_fmac', 'v_writelane')) or self.is_dpp:
                    self.src |= R[0]
                if op.startswith('v_cndmask') and len(ops) == 3:
                    self.src |= {('s', 'vcc')}
        elif self.is_ds:
            if 'read' in op or '_rtn' in op or 'permute' in op:
                self.dst = R[0]
                self.src = set().union(*R[1:])
            else:
                self.src = set().union(*R)
        elif self.is_vmem:
            lds = ' lds' in (' ' + self.mods) or 'load_lds' in op
            self.is_lds_dma = lds
            if 'load' in op and not lds:
                self.dst = R[0]
                self.src = set().union(*R[1:])
            else:
                self.src = set().union(*R)
            self.store_data = set()
            if 'store' in op and ('x4' in op or 'x3' in op):
                self.store_data = R[0] if op.startswith('buffer_') else R[1]
        elif self.is_salu:
            if op.startswith(('s_cmp', 's_bitcmp', 's_cbranch', 's_branch', 's_waitcnt', 's_nop', 's_barrier', 's_sleep', 's_setprio', 's_endpgm')):
                self.src = set().union(*R) if R else set()
            else:
                self.dst = R[0] if R else set()
                self.src = set().union(*R[1:]) if len(R) > 1 else set()
                if 'saveexec' in op:
                    self.dst |= {('s', 'exec')}
        self.states = 1
        if op == 's_nop':
            self.states = int(ops[0]) + 1


def check(lines, name=''):
    ins = []
    for t in lines:
        s = t.split(';')[0].strip()
        if not s or s.endswith(':') or s.startswith('.'):
            continue
        ins.append(I(s))
    errs = []
    for i, c in enumerate(ins):
        dist = 0
        for j in range(i - 1, max(-1, i - 24), -1):
            p = ins[j]
            need = 0
            why = ''
            vd = {r for r in p.dst if r[0] in 'va'}
            sd = {r for r in p.dst if r[0] == 's'}
            if p.is_valu:
                if c.is_mfma and (vd & c.src):
                    need, why = 2, 'VALU->MFMA'
                if c.is_valu and c.is_dpp and (vd & c.src):
                    need, why = max(need, 2), 'VALU->DPP'
                if c.op.startswith(('v_readlane', 'v_readfirstlane')) and (vd & c.src):
                    need, why = max(need, 1), 'VALU->readlane'
                if c.op.startswith('v_permlane') and (vd & c.src):
                    need, why = max(need, 2), 'VALU->permlane'
                if p.is_trans and c.is_valu and not c.is_trans and (vd & c.src):
                    need, why = max(need, 1), 'trans->VALU'
                if sd and c.is_vmem and (sd & c.src):
                    need, why = max(need, 5), 'VALU sgpr->VMEM'
                if sd and c.is_valu and (sd & c.src):
                    if c.op.startswith(('v_readlane', 'v_writelane')):
                        need, why = max(need, 4), 'VALU sgpr->lanesel'
                    else:
                        need, why = max(need, 2), 'VALU sgpr->VALU'
            if p.is_mfma:
                n = {2: 5, 4: 8, 8: 12}[p.passes]
                if c.is_mfma:
                    if p.dst & (c.A | c.B):
                        need, why = n, 'MFMA D->MFMA A/B'
                    elif p.dst & c.C:
                        if p.dst == c.C and p.passes == c.passes:
                            need, why = (2 if p.passes == 2 else 0), 'MFMA chain'
                        else:
                            need, why = {2: 4, 4: 6, 8: 10}[p.passes], 'MFMA D->C overlap'
                elif c.is_valu or c.is_ds or c.is_vmem:
                    if p.dst & (c.src | c.dst):
                        need, why = n, 'MFMA D->read/write'
                    elif c.is_valu and (p.C & c.dst):
                        need, why = {2: 1, 4: 3, 8: 7}[p.passes], 'MFMA C WAR'
            if p.is_vmem and getattr(p, 'store_data', None) and (p.store_data & c.dst):
                need, why = max(need, 2), 'store data WAR'
            if p.is_salu and ('s', 'm0') in p.dst and c.is_vmem and getattr(c, 'is_lds_dma', False):
                need, why = max(need, 1), 'M0->DMA'
            if need > dist:
                errs.append(f'{name}: {why} needs {need}, has {dist}: [{p.text}] -> [{c.text}]')
            dist += p.states
            if dist >= 12:
                break
    return errs
```

```python
import sys, os, struct
sys.path.insert(0, os.path.dirname(os.path.abspath(__file__)))
import hazard

KNAME = "standalone__edge_featured_mpnn_gatedgcn__graph_kernel"

N = 10000; NB = 125; NC = 250; BN = 80; CE = 1280
TS = 2592768
NROWS = N + NB
OFF_REC = 0x500000; RECSZ = CE * 12
OFF_G = 0x900000; GSTR = 1152
OFF_F2 = 0x950000
OFF_DIAG = 0xA00000
L_CNT1 = 0; L_ST1 = 512; L_CNT2 = 1024; L_ST2 = 1536; L_ZERO = 2048; L_MISC = 2176; L_WC = 2304
M_CTRA = L_MISC; M_CTRB = L_MISC + 4; M_MAXLEN = L_MISC + 8; M_NONCE = L_MISC + 16
L_NS = 3072; NSTR = 784
L_XS = L_NS + BN * NSTR
L_W = L_XS + 20480
CAP = 3328
L_META = L_W; L_E = L_W + 13568; L_EXT = L_E + 26880; XSTR = 528
LDS_SIZE = L_EXT + 64 * XSTR
CAP_PAIRS = CAP // 2 - 4
SLOWK = 12
OFF_ACC = 0xB00000
SPIN = 1 << 22

def f2u(x): return struct.unpack('<I', struct.pack('<f', x))[0]
NL2E = f2u(-1.4426950408889634)
SHIFT = 60
EPS = f2u(1e-6 * 2.0 ** SHIFT)
CBF = (127 - SHIFT) << 7

def v(a, n=1): return f"v{a}" if n == 1 else f"v[{a}:{a+n-1}]"
def s(a, n=1): return f"s{a}" if n == 1 else f"s[{a}:{a+n-1}]"

sX, sE, sSRC, sDST, sWA, sWB, sWC, sWU, sWV, sOUT, sDBG, sWS = 4, 6, 8, 10, 12, 14, 16, 18, 20, 22, 24, 26
sWAVE, sBKT, sSL, sT0 = 28, 29, 30, 31
sSRD = 32
sTAB = 36
sNON = 40
sRT = 42
sMK = 44
sT1, sT2, sT3, sT4 = 60, 61, 62, 63
sEX = 64
sP0 = 66
sP1 = 68
sLO, sMODE, sMAXL, sTP, sL, sS, sEV, sLM = 70, 71, 72, 73, 74, 75, 76, 77
sWM = 78
sP1M = 80
sJ = 82
sSPIN = 85
sEND = 3
sST = 86


class G:
    def __init__(self, diag=0):
        self.L = []
        self.diag = diag
        self.nst = 0
    def __call__(self, t): self.L.append("    " + t)
    def lab(self, t): self.L.append(t + ":")
    def c(self, t): self.L.append("    ; " + t)
    def raw(self, t): self.L.append(t)
    def stamp(self, k):
        if self.diag:
            self(f"s_memrealtime {s(sST + 2 * k, 2)}")


def wave_scan(A, r):
    for sh in (1, 2, 4, 8):
        A("s_nop 1")
        A(f"v_add_u32_dpp {v(r)}, {v(r)}, {v(r)} row_shr:{sh} row_mask:0xf bank_mask:0xf")
    A("s_nop 1")
    A(f"v_add_u32_dpp {v(r)}, {v(r)}, {v(r)} row_bcast:15 row_mask:0xa bank_mask:0xf")
    A("s_nop 1")
    A(f"v_add_u32_dpp {v(r)}, {v(r)}, {v(r)} row_bcast:31 row_mask:0xc bank_mask:0xf")


def add64(A, d, a, off):
    A(f"s_add_u32 {s(d)}, {s(a)}, {off}")
    A(f"s_addc_u32 {s(d+1)}, {s(a+1)}, 0")


def build(diag=0, **OPT):
    A = G(diag)
    GF = OPT.get('gf', 'sc1')
    vL = 1
    vONE = 2
    vZ = 4
    A(f"s_cmp_ge_u32 s2, {NC}")
    A("s_cbranch_scc1 L_end")
    A("s_load_dwordx16 s[4:19], s[0:1], 0")
    A("s_load_dwordx8 s[20:27], s[0:1], 64")
    A(f"s_memrealtime {s(sRT,2)}")
    A("v_lshrrev_b32 v3, 6, v0")
    A(f"v_and_b32 {v(vL)}, 63, v0")
    A(f"v_readfirstlane_b32 {s(sWAVE)}, v3")
    A(f"v_mov_b32 {v(vONE)}, 1")
    for i in range(4): A(f"v_mov_b32 {v(vZ+i)}, 0")
    A(f"s_lshr_b32 {s(sBKT)}, s2, 1")
    A(f"s_and_b32 {s(sSL)}, s2, 1")
    A(f"s_cmp_lt_u32 {s(sWAVE)}, 5")
    A("s_cbranch_scc0 L_roleG")

    vD, vS, vE, vBA, vR = 8, 12, 16, 24, 28
    vCA, vSUM, vINC, vSTA = 34, 36, 37, 38
    A.c("role P: zero the small LDS area")
    A("v_lshlrev_b32 v3, 4, v0")
    A(f"v_cmp_gt_u32 vcc, {L_WC//16}, v0")
    A(f"s_and_saveexec_b64 {s(sEX,2)}, vcc")
    A(f"ds_write_b128 v3, {v(vZ,4)}")
    A(f"s_mov_b64 exec, {s(sEX,2)}")
    A(f"s_mul_i32 s3, s2, {CE*4}")
    A("v_lshlrev_b32 v33, 5, v0")
    A("s_waitcnt lgkmcnt(0)")
    add64(A, sDST, sDST, "s3")
    A(f"global_load_dwordx4 {v(vD,4)}, v3, {s(sDST,2)}")
    add64(A, sSRC, sSRC, "s3")
    A(f"global_load_dwordx4 {v(vS,4)}, v3, {s(sSRC,2)}")
    A("s_lshl_b32 s3, s3, 1")
    add64(A, sE, sE, "s3")
    A(f"global_load_dwordx4 {v(vE,4)}, v33, {s(sE,2)}")
    A(f"global_load_dwordx4 {v(vE+4,4)}, v33, {s(sE,2)} offset:16")
    A(f"s_mov_b32 {s(sT0)}, -{BN}")
    A(f"s_mov_b32 {s(sT1)}, {L_NS}")
    A(f"s_mul_i32 s3, s2, {RECSZ}")
    A(f"s_add_u32 s3, s3, {OFF_REC}")
    add64(A, sP0, sWS, "s3")
    A("s_waitcnt vmcnt(3)")
    A.stamp(1)
    A("s_barrier")
    for k in range(4):
        A(f"v_mul_u32_u24 v32, 52429, {v(vD+k)}")
        A("v_lshrrev_b32 v32, 22, v32")
        A(f"v_lshlrev_b32 {v(vBA+k)}, 2, v32")
        A(f"ds_add_rtn_u32 {v(vR+k)}, {v(vBA+k)}, {v(vONE)} offset:{L_CNT1}")
        A(f"v_mad_i32_i24 {v(vD+k)}, v32, {s(sT0)}, {v(vD+k)}")
    A(f"v_lshlrev_b32 v33, 3, {v(vL)}")
    A("s_waitcnt vmcnt(2)")
    for k in range(4):
        A(f"v_lshl_or_b32 {v(vS+k)}, {v(vD+k)}, 16, {v(vS+k)}")
    A("s_waitcnt lgkmcnt(0)")
    A("s_barrier")
    A(f"ds_read_b64 {v(vCA,2)}, v33 offset:{L_CNT1}")
    A("s_waitcnt lgkmcnt(0)")
    A(f"v_add_u32 {v(vSUM)}, {v(vCA)}, {v(vCA+1)}")
    A(f"v_add_u32 {v(vINC)}, {v(vCA)}, {v(vCA+1)}")
    wave_scan(A, vINC)
    A(f"v_sub_u32 {v(vSTA)}, {v(vINC)}, {v(vSUM)}")
    A(f"v_add_u32 {v(vSTA+1)}, {v(vSTA)}, {v(vCA)}")
    A(f"ds_write_b64 v33, {v(vSTA,2)} offset:{L_ST1}")
    for k in range(4):
        A(f"ds_read_b32 {v(40+k)}, {v(vBA+k)} offset:{L_ST1}")
    A.c("copy-out addresses")
    A(f"s_mul_i32 s3, {s(sWAVE)}, 3072")
    A(f"v_lshl_add_u32 v56, {v(vL)}, 4, s3")
    A(f"v_add_u32 v57, {L_NS}, v56")
    A("s_waitcnt vmcnt(0) lgkmcnt(0)")
    for k in range(4):
        A(f"v_add_u32 {v(40+k)}, {v(40+k)}, {v(vR+k)}")
        A(f"v_mad_u32_u24 {v(40+k)}, {v(40+k)}, 12, {s(sT1)}")
        A(f"ds_write2_b32 {v(40+k)}, {v(vE+2*k)}, {v(vE+2*k+1)} offset0:0 offset1:1")
        A(f"ds_write_b32 {v(40+k)}, {v(vS+k)} offset:8")
    A("s_waitcnt lgkmcnt(0)")
    A("s_barrier")
    for k in range(3):
        A(f"ds_read_b128 {v(44+4*k,4)}, v57 offset:{1024*k}")
    for k in range(3):
        A(f"s_waitcnt lgkmcnt({2-k})")
        A(f"global_store_dwordx4 v56, {v(44+4*k,4)}, {s(sP0,2)} offset:{1024*k} sc1")
    A.stamp(2)
    A("s_waitcnt lgkmcnt(0)")
    A("s_barrier")
    A(f"v_mov_b32 v3, {L_MISC}")
    A(f"ds_read_b64 v[40:41], v3 offset:{M_NONCE-L_MISC}")
    A(f"s_mul_i32 s3, s2, {GSTR}")
    A(f"s_add_u32 s3, s3, {OFF_G}")
    add64(A, sP0, sWS, "s3")
    A(f"v_lshl_or_b32 v44, {v(vCA)}, 11, {v(vSTA)}")
    A(f"v_lshl_or_b32 v46, {v(vCA+1)}, 11, {v(vSTA+1)}")
    A(f"v_lshlrev_b32 v56, 4, {v(vL)}")
    A("s_waitcnt lgkmcnt(0)")
    A("v_or_b32 v44, v44, v41")
    A("v_or_b32 v46, v46, v41")
    A("v_mov_b32 v45, v40")
    A("v_mov_b32 v47, v40")
    A(f"v_readfirstlane_b32 {s(sNON)}, v40")
    A(f"v_readfirstlane_b32 {s(sNON+1)}, v41")
    A("s_mov_b64 exec, 1")
    A("s_waitcnt vmcnt(0)")
    A(f"ds_add_rtn_u32 v42, v3, {v(vONE)} offset:{M_CTRA-L_MISC}")
    A("s_waitcnt lgkmcnt(0)")
    A("v_readfirstlane_b32 s3, v42")
    A("s_mov_b64 exec, -1")
    A("s_cmp_eq_u32 s3, 4")
    A("s_cbranch_scc0 L_phase2")
    A(f"global_store_dwordx4 v56, v[44:47], {s(sP0,2)} sc1")
    A("s_branch L_phase2")

    A.lab("L_roleG")
    vB15, vG4 = 8, 9
    A(f"v_and_b32 {v(vB15)}, 15, {v(vL)}")
    A(f"v_lshrrev_b32 {v(vG4)}, 4, {v(vL)}")
    A.c("x DMA lane offset: r*256 + ((j^r)*16)")
    A(f"v_xor_b32 v10, {v(vB15)}, {v(vG4)}")
    A("v_lshlrev_b32 v10, 4, v10")
    A(f"v_lshl_add_u32 v10, {v(vG4)}, 8, v10")
    A.c("W DMA lane offset: r8*256 + ((j^(2*((r8>>1)&1)))*16) + slice*128")
    A(f"v_lshrrev_b32 v11, 3, {v(vL)}")
    A(f"v_and_b32 v12, 7, {v(vL)}")
    A("v_and_b32 v13, 2, v11")
    A("v_xor_b32 v12, v12, v13")
    A("v_lshlrev_b32 v12, 4, v12")
    A("v_lshl_add_u32 v12, v11, 8, v12")
    A(f"s_lshl_b32 s3, {s(sSL)}, 7")
    A("v_add_u32 v12, s3, v12")
    A("v_xor_b32 v13, 64, v12")
    A(f"s_mov_b32 {s(sSRD+3)}, 0x20000")
    A("s_waitcnt lgkmcnt(0)")
    A(f"s_cmp_eq_u32 {s(sWAVE)}, 15")
    A("s_cbranch_scc0 L_g_not15")
    A("s_cmp_eq_u32 s2, 0")
    A("s_cbranch_scc0 L_g_wdma")
    A.c("workgroup 0 publishes the launch nonce in d_debug")
    A(f"s_or_b32 {s(sRT)}, {s(sRT)}, 1")
    A(f"s_lshl_b32 {s(sRT+1)}, {s(sRT+1)}, 22")
    A(f"v_mov_b32 v14, {s(sRT)}")
    A(f"v_mov_b32 v15, {s(sRT+1)}")
    A("s_mov_b64 exec, 1")
    A(f"global_store_dwordx2 {v(vZ)}, v[14:15], {s(sDBG,2)} sc1")
    A("s_mov_b64 exec, -1")
    A("s_branch L_g_wdma")
    A.lab("L_g_not15")
    A(f"s_cmp_ge_u32 {s(sWAVE)}, 10")
    A("s_cbranch_scc1 L_g_wdma")
    A(f"s_cmp_eq_u32 {s(sWAVE)}, 6")
    A("s_cbranch_scc0 L_g_not6")
    A.c("wave 6: w_c columns of this slice")
    A(f"v_lshl_add_u32 v14, {v(vL)}, 1, s3")
    for j in range(4):
        A(f"global_load_ushort {v(90+j)}, v14, {s(sWC,2)} offset:{256*j}")
    A.lab("L_g_not6")
    A(f"s_cmp_eq_u32 {s(sWAVE)}, 7")
    A("s_cbranch_scc0 L_g_xdma")
    A.c("wave 7: this workgroup's null table row, and pull the code into L2")
    A(f"s_mul_i32 {s(sT0)}, {s(sSL)}, {TS}")
    A(f"s_lshl_b32 {s(sT1)}, {s(sBKT)}, 8")
    A(f"s_add_u32 {s(sT0)}, {s(sT0)}, {s(sT1)}")
    A(f"s_add_u32 {s(sT0)}, {s(sT0)}, {N*256}")
    add64(A, sP0, sWS, s(sT0))
    A("v_mov_b32 v16, 0x50005000")
    A("v_mov_b32 v17, 0x50005000")
    A("v_mov_b32 v18, 0")
    A("v_mov_b32 v19, 0")
    A(f"v_lshlrev_b32 v14, 4, {v(vL)}")
    A("s_mov_b64 exec, 0xffff")
    A(f"global_store_dwordx4 v14, v[16:19], {s(sP0,2)} sc1")
    A("s_mov_b64 exec, -1")
    A(f"s_getpc_b64 {s(sP1,2)}")
    A.lab("L_pc")
    A(f"v_lshlrev_b32 v14, 7, {v(vL)}")
    A("v_min_u32 v14, L_end-L_pc, v14")
    A(f"global_load_dword v15, v14, {s(sP1,2)}")
    A.lab("L_g_xdma")
    A(f"s_mov_b32 {s(sSRD)}, {s(sX)}")
    A(f"s_mov_b32 {s(sSRD+1)}, {s(sX+1)}")
    A(f"s_mov_b32 {s(sSRD+2)}, {N*256}")
    A(f"s_sub_u32 {s(sT0)}, {s(sWAVE)}, 5")
    A(f"s_lshl_b32 {s(sT0)}, {s(sT0)}, 12")
    A(f"s_mul_i32 {s(sT1)}, {s(sBKT)}, {BN*256}")
    A(f"s_add_u32 {s(sT1)}, {s(sT1)}, {s(sT0)}")
    A(f"s_add_u32 m0, {s(sT0)}, {L_XS}")
    for u in range(4):
        if u:
            A(f"v_xor_b32 v14, {u<<6}, v10")
            A(f"s_add_u32 {s(sT1)}, {s(sT1)}, 1024")
            A("s_add_u32 m0, m0, 1024")
        A("s_nop 0")
        A(f"buffer_load_dwordx4 {'v14' if u else 'v10'}, {s(sSRD,4)}, {s(sT1)} offen lds")
    A(f"s_cmp_lt_u32 {s(sWAVE)}, 8")
    A("s_cbranch_scc1 L_g_b0")
    A.lab("L_g_wdma")
    A.c("W staging: waves 8..15, matrix (w-8)>>1 in order w_b, w_v, w_a, w_u")
    A(f"s_cmp_ge_u32 {s(sWAVE)}, 10")
    A(f"s_cselect_b64 {s(sSRD,2)}, {s(sWV,2)}, {s(sWB,2)}")
    A(f"s_cmp_ge_u32 {s(sWAVE)}, 12")
    A(f"s_cselect_b64 {s(sSRD,2)}, {s(sWA,2)}, {s(sSRD,2)}")
    A(f"s_cmp_ge_u32 {s(sWAVE)}, 14")
    A(f"s_cselect_b64 {s(sSRD,2)}, {s(sWU,2)}, {s(sSRD,2)}")
    A(f"s_mov_b32 {s(sSRD+2)}, 32768")
    A(f"s_sub_u32 {s(sT0)}, {s(sWAVE)}, 8")
    A(f"s_lshl_b32 {s(sT0)}, {s(sT0)}, 13")
    A(f"s_add_u32 m0, {s(sT0)}, {L_W}")
    A(f"s_and_b32 {s(sT1)}, {s(sWAVE)}, 1")
    A(f"s_lshl_b32 {s(sT1)}, {s(sT1)}, 14")
    for u in range(8):
        if u:
            A("s_add_u32 m0, m0, 1024")
            A(f"s_add_u32 {s(sT1)}, {s(sT1)}, 2048")
        A(f"buffer_load_dwordx4 {'v13' if u&1 else 'v12'}, {s(sSRD,4)}, {s(sT1)} offen lds")
    A.lab("L_g_b0")
    A.c("GEMM addresses while the loads fly")
    vA, vACC, vBR, vTA = 16, 32, 64, 84
    NR = 5
    A(f"s_cmp_ge_u32 {s(sWAVE)}, 10")
    A(f"s_cselect_b32 {s(sT2)}, 10, 5")
    A(f"s_cselect_b32 {s(sT3)}, 32768, 0")
    A(f"s_add_u32 {s(sT3)}, {s(sT3)}, {L_W}")
    A(f"s_sub_u32 {s(sT2)}, {s(sWAVE)}, {s(sT2)}")
    A(f"s_lshl_b32 {s(sT4)}, {s(sT2)}, 12")
    A(f"s_add_u32 {s(sT4)}, {s(sT4)}, {L_XS}")
    A(f"v_xor_b32 v10, {v(vB15)}, {v(vG4)}")
    A("v_lshlrev_b32 v10, 4, v10")
    A(f"v_lshl_add_u32 v10, {v(vB15)}, 8, v10")
    A(f"v_bfe_u32 v11, {v(vL)}, 2, 2")
    A(f"v_lshl_add_u32 v12, {v(vG4)}, 3, v11")
    A("v_lshlrev_b32 v12, 7, v12")
    A(f"v_and_b32 v13, 3, {v(vL)}")
    A("v_lshl_add_u32 v12, v13, 3, v12")
    A(f"v_add_u32 v12, {s(sT3)}, v12")
    A("v_lshrrev_b32 v11, 1, v11")
    A(f"v_and_b32 v13, 1, {v(vG4)}")
    A("v_lshl_or_b32 v11, v13, 1, v11")
    for i in range(4):
        A(f"v_xor_b32 v13, {i}, v11")
        A(f"v_lshl_add_u32 {v(vTA+i)}, v13, 5, v12")
    A("s_barrier")
    A("s_barrier")
    A(f"s_cmp_eq_u32 {s(sWAVE)}, 15")
    A("s_cbranch_scc0 L_g_nn")
    A(f"global_load_dwordx2 v[14:15], {v(vZ)}, {s(sDBG,2)} sc1")
    A.lab("L_g_nn")
    A(f"s_cmp_lt_u32 {s(sWAVE)}, 8")
    A("s_cbranch_scc0 L_g_w8")
    A("s_waitcnt vmcnt(0)")
    A.lab("L_g_w8")
    A("s_waitcnt vmcnt(8)")
    A("s_barrier")
    A(f"s_cmp_eq_u32 {s(sWAVE)}, 15")
    A("s_cbranch_scc1 L_g_15")
    for ks in range(4):
        A(f"v_xor_b32 v11, {ks<<6}, v10")
        A(f"v_add_u32 v11, {s(sT4)}, v11")
        A(f"ds_read_b128 {v(vA+4*ks,4)}, v11")
    A(f"s_cmp_eq_u32 {s(sWAVE)}, 6")
    A("s_cbranch_scc0 L_g_b3")
    A.c("wave 6: wc' = bf16(-log2e * w_c) -> LDS")
    for j in range(4):
        A(f"v_lshlrev_b32 {v(90+j)}, 16, {v(90+j)}")
    for j in range(4):
        A(f"v_mul_f32 {v(90+j)}, {hex(NL2E)}, {v(90+j)}")
    A("v_cvt_pk_bf16_f32 v90, v90, v91")
    A("v_cvt_pk_bf16_f32 v91, v92, v93")
    A(f"v_lshlrev_b32 v92, 3, {v(vL)}")
    A(f"ds_write_b64 v92, v[90:91] offset:{L_WC}")
    A("s_branch L_g_b3")
    A.lab("L_g_15")
    A(f"s_mov_b32 {s(sSPIN)}, {SPIN}")
    A.lab("L_g_15spin")
    A("s_waitcnt vmcnt(0)")
    A("v_readfirstlane_b32 s3, v14")
    A(f"s_sub_u32 {s(sSPIN)}, {s(sSPIN)}, 1")
    A(f"s_cselect_b32 s3, 1, s3")
    A("s_cmp_lg_u32 s3, 0")
    A("s_cbranch_scc1 L_g_15ok")
    A("s_sleep 2")
    A(f"global_load_dwordx2 v[14:15], {v(vZ)}, {s(sDBG,2)} sc1")
    A("s_branch L_g_15spin")
    A.lab("L_g_15ok")
    A(f"ds_write_b64 {v(vZ)}, v[14:15] offset:{M_NONCE}")
    A.lab("L_g_b3")
    A("s_waitcnt vmcnt(0) lgkmcnt(0)")
    A.stamp(1)
    A("s_barrier")
    A(f"ds_read_b64 v[14:15], {v(vZ)} offset:{M_NONCE}")
    A(f"s_cmp_eq_u32 {s(sWAVE)}, 15")
    A("s_cbranch_scc1 L_g_done")
    def rd(n):
        ks, q = n >> 3, n & 7
        b = vBR + 4 * (n % NR)
        off = ks * 4096 + (q >> 2) * 16384
        A(f"ds_read_b64_tr_b16 {v(b,2)}, {v(vTA+(q&3))} offset:{off}")
        A(f"ds_read_b64_tr_b16 {v(b+2,2)}, {v(vTA+(q&3))} offset:{off+512}")
    for n in range(NR): rd(n)
    for n in range(32):
        ks, q = n >> 3, n & 7
        left = min(NR - 1, 31 - n)
        A(f"s_waitcnt lgkmcnt({2*left})")
        b = vBR + 4 * (n % NR)
        c = "0" if ks == 0 else v(vACC + 4 * q, 4)
        A(f"v_mfma_f32_16x16x32_bf16 {v(vACC+4*q,4)}, {v(vA+4*ks,4)}, {v(b,4)}, {c}")
        if n + NR < 32: rd(n + NR)
    A.stamp(2)
    A(f"s_mov_b32 {s(sP1)}, {hex(NL2E)}")
    A(f"s_mov_b32 {s(sP1+1)}, {hex(NL2E)}")
    A(f"s_cmp_ge_u32 {s(sWAVE)}, 10")
    A("s_cbranch_scc1 L_g_xa")
    A.c("table rows: [XB' x4 | HV x4] per channel group")
    A(f"s_mul_i32 {s(sT0)}, {s(sSL)}, {TS}")
    A(f"s_mul_i32 {s(sT1)}, {s(sBKT)}, {BN*256}")
    A(f"s_add_u32 {s(sT0)}, {s(sT0)}, {s(sT1)}")
    A(f"s_lshl_b32 {s(sT1)}, {s(sT2)}, 12")
    A(f"s_add_u32 {s(sT0)}, {s(sT0)}, {s(sT1)}")
    add64(A, sP0, sWS, s(sT0))
    A(f"v_lshlrev_b32 v10, 4, {v(vB15)}")
    A(f"v_lshl_add_u32 v10, {v(vG4)}, 10, v10")
    for q in range(4):
        for h in (0, 2):
            A(f"v_pk_mul_f32 {v(vACC+4*q+h,2)}, {v(vACC+4*q+h,2)}, {s(sP1,2)}")
    for ip in range(4):
        o = vBR + 4 * ip
        for d in range(4):
            A(f"v_cvt_pk_bf16_f32 {v(o+d)}, {v(vACC+8*d+ip)}, {v(vACC+8*d+4+ip)}")
        A(f"global_store_dwordx4 v10, {v(o,4)}, {s(sP0,2)} offset:{256*ip} sc1")
    A("s_branch L_g_done")
    A.lab("L_g_xa")
    A.c("xa' = -log2e*(x@w_a) - SHIFT into the node structs, xu into the x stage (swizzled)")
    A(f"s_mul_i32 {s(sT0)}, {s(sT2)}, {16*NSTR}")
    A(f"s_add_u32 {s(sT0)}, {s(sT0)}, {L_NS}")
    A(f"v_mul_u32_u24 v10, {4*NSTR}, {v(vG4)}")
    A(f"v_mad_u32_u24 v10, {v(vB15)}, 48, v10")
    A(f"v_add_u32 v10, {s(sT0)}, v10")
    A(f"v_mov_b32 v11, {hex(f2u(-float(SHIFT)))}")
    A(f"v_lshlrev_b32 v12, 2, {v(vB15)}")
    A(f"v_lshl_add_u32 v12, {v(vG4)}, 10, v12")
    A(f"v_add_u32 v12, {s(sT4)}, v12")
    for ip in range(4):
        o = vBR + 4 * ip
        for i in range(4):
            A(f"v_fma_f32 {v(o+i)}, {v(vACC+4*i+ip)}, {s(sP1)}, v11")
        A(f"ds_write_b128 v10, {v(o,4)} offset:{NSTR*ip}")
    A(f"v_mul_u32_u24 v11, {NSTR}, {v(vB15)}")
    A(f"v_add_u32 v11, {s(sT0)}, v11")
    A(f"ds_write_b64 v11, {v(vZ,2)} offset:768")
    for ip in range(4):
        if ip: A(f"v_xor_b32 v13, {ip<<4}, v12")
        a = "v13" if ip else "v12"
        for i in (0, 2):
            A(f"ds_write2_b32 {a}, {v(vACC+16+4*i+ip)}, {v(vACC+20+4*i+ip)} offset0:{64*ip+16*i} offset1:{64*ip+16*i+16}")
    A.lab("L_g_done")
    A("s_waitcnt lgkmcnt(0)")
    A(f"v_readfirstlane_b32 {s(sNON)}, v14")
    A(f"v_readfirstlane_b32 {s(sNON+1)}, v15")

    A.lab("L_phase2")
    A.stamp(3)
    T = [[8, 12], [16, 20]]; H = [[24, 28], [32, 36]]
    P, S, AA, DEN, NUM, XA = 40, 44, 48, 52, 56, 60
    LB = [[64, 70], [76, 82]]
    AE = [88, 92]; IDX = 96; IDM = 100; CB = 102
    vIA, vEA, vEI, vPTR, vZA, vEVB = 104, 105, 106, 107, 108, 109
    vB15, vG4, vGW, vGA, vRB = 110, 111, 112, 114, 115
    vX = 116
    RB = lambda j: 8 + 4 * j
    vCI = 40
    A(f"v_and_b32 {v(vB15)}, 15, {v(vL)}")
    A(f"v_lshrrev_b32 {v(vG4)}, 4, {v(vL)}")
    A.c("granule of chunk c = 16w + 4(l&15) + (l>>4), lanes with (l&15) < 4")
    A(f"v_lshl_add_u32 v3, {v(vB15)}, 2, {v(vG4)}")
    A(f"s_lshl_b32 s3, {s(sWAVE)}, 4")
    A("v_add_u32 v3, s3, v3")
    A(f"v_cmp_gt_u32 vcc, {NC}, v3")
    A(f"s_mov_b32 {s(sEX)}, 0x000f000f")
    A(f"s_mov_b32 {s(sEX+1)}, 0x000f000f")
    A(f"s_and_b64 {s(sEX,2)}, {s(sEX,2)}, vcc")
    A(f"v_mul_u32_u24 {v(vGA)}, {GSTR}, v3")
    A(f"s_lshl_b32 {s(sT0)}, {s(sBKT)}, 3")
    A(f"s_add_u32 {s(sT0)}, {s(sT0)}, {OFF_G}")
    A(f"v_add_u32 {v(vGA)}, {s(sT0)}, {v(vGA)}")
    A(f"v_mov_b32 {v(vGW)}, 0")
    A(f"s_mov_b64 exec, {s(sEX,2)}")
    A(f"global_load_dwordx2 {v(vGW,2)}, {v(vGA)}, {s(sWS,2)} sc1")
    A("s_mov_b64 exec, -1")
    A.c("constants for the edge loop (computed while the poll is in flight)")
    A(f"v_add_u32 v3, s3, {v(vG4)}")
    A(f"v_mul_u32_u24 {v(vRB)}, {RECSZ}, v3")
    A(f"v_mad_u32_u24 {v(vRB)}, {v(vB15)}, 12, {v(vRB)}")
    add64(A, sSRD, sWS, OFF_REC)
    A(f"s_mov_b32 {s(sSRD+2)}, {NC*RECSZ}")
    A(f"s_mov_b32 {s(sSRD+3)}, 0x20000")
    A(f"s_mul_i32 {s(sT0)}, {s(sSL)}, {TS}")
    add64(A, sTAB, sWS, s(sT0))
    A(f"s_or_b32 {s(sTAB+1)}, {s(sTAB+1)}, {256<<16}")
    A(f"s_mov_b32 {s(sTAB+2)}, {NROWS}")
    A(f"s_mov_b32 {s(sTAB+3)}, 0x20000")
    for j in range(1, 4): A(f"s_mov_b32 {s(sJ+j-1)}, {j*4*RECSZ}")
    A(f"s_mov_b32 {s(sLO)}, 0")
    A(f"s_mov_b32 {s(sMODE)}, 0")
    A(f"s_mov_b64 {s(sWM,2)}, -1")
    A(f"s_mov_b64 {s(sP1M,2)}, -1")
    A(f"v_and_b32 v3, 1, {v(vL)}")
    A("v_lshlrev_b32 v3, 4, v3")
    A(f"v_mov_b32 v8, 0x3f80")
    A("v_lshlrev_b32 v3, v3, v8")
    A(f"v_and_b32 v8, 2, {v(vL)}")
    A("v_cmp_eq_u32 vcc, 0, v8")
    A(f"v_bfe_u32 v9, {v(vL)}, 2, 2")
    A(f"v_cmp_eq_u32 {s(sP0,2)}, v9, {v(vG4)}")
    A(f"v_cndmask_b32 {v(IDM)}, 0, v3, vcc")
    A(f"v_cndmask_b32 {v(IDM+1)}, v3, 0, vcc")
    A(f"v_and_b32 v8, 3, {v(vL)}")
    for x in AE:
        A(f"v_cndmask_b32 {v(x+2)}, 0, {v(IDM)}, {s(sP0,2)}")
        A(f"v_cndmask_b32 {v(x+3)}, 0, {v(IDM+1)}, {s(sP0,2)}")
    A(f"v_cmp_eq_u32 vcc, v8, {v(vG4)}")
    A(f"v_mov_b32 {v(CB)}, {hex(CBF | CBF << 16)}")
    A(f"v_mov_b32 {v(CB+1)}, {hex(CBF | CBF << 16)}")
    A(f"v_cndmask_b32 {v(vEI)}, 0, 32, vcc")
    A(f"v_lshlrev_b32 {v(IDX+1)}, 4, {v(vB15)}")
    A(f"v_lshlrev_b32 {v(IDX+3)}, 4, {v(vB15)}")
    A(f"v_mov_b32 {v(vZA)}, {L_ZERO}")
    A(f"v_lshlrev_b32 v3, 3, {v(vL)}")
    for bb in LB:
        for x in bb:
            A(f"ds_read_b64 {v(x,2)}, v3 offset:{L_WC}")
    A(f"s_mov_b32 {s(sSPIN)}, {SPIN}")
    A("s_waitcnt vmcnt(0)")
    A.c("table waves: their stores have drained; the last one raises the table flag")
    A(f"s_sub_u32 s3, {s(sWAVE)}, 5")
    A("s_cmp_lt_u32 s3, 5")
    A("s_cbranch_scc0 L_poll_chk")
    A("s_mov_b64 exec, 1")
    A(f"ds_add_rtn_u32 v8, {v(vZ)}, {v(vONE)} offset:{M_CTRB}")
    A(f"s_mul_i32 {s(sT0)}, {s(sSL)}, {NB*128}")
    A(f"s_lshl_b32 {s(sT1)}, {s(sBKT)}, 7")
    A(f"s_add_u32 {s(sT0)}, {s(sT0)}, {s(sT1)}")
    A(f"s_add_u32 {s(sT0)}, {s(sT0)}, {OFF_F2}")
    A(f"v_mov_b32 v9, {s(sT0)}")
    A(f"v_mov_b32 v10, {s(sNON)}")
    A(f"v_mov_b32 v11, {s(sNON+1)}")
    A("s_waitcnt lgkmcnt(0)")
    A("v_readfirstlane_b32 s3, v8")
    A("s_cmp_eq_u32 s3, 4")
    A("s_cbranch_scc0 L_poll_chk")
    A(f"global_store_dwordx2 v9, v[10:11], {s(sWS,2)} sc1")
    A.lab("L_poll_chk")
    A(f"s_mov_b64 exec, {s(sEX,2)}")
    A.lab("L_poll")
    A(f"v_and_b32 v8, 0xffc00000, {v(vGW)}")
    A(f"v_cmp_ne_u32 vcc, {s(sNON)}, {v(vGW+1)}")
    A(f"v_cmp_ne_u32 {s(sP0,2)}, {s(sNON+1)}, v8")
    A(f"s_or_b64 vcc, vcc, {s(sP0,2)}")
    A("s_cbranch_scc0 L_poll_done")
    A(f"s_sub_u32 {s(sSPIN)}, {s(sSPIN)}, 1")
    A("s_cbranch_scc1 L_poll_done")
    A("s_sleep 1")
    A(f"global_load_dwordx2 {v(vGW,2)}, {v(vGA)}, {s(sWS,2)} sc1")
    A("s_waitcnt vmcnt(0)")
    A("s_branch L_poll")
    A.lab("L_poll_done")
    A(f"v_bfe_u32 v8, {v(vGW)}, 11, 11")
    A(f"ds_max_u32 {v(vZ)}, v8 offset:{M_MAXLEN}")
    A("s_mov_b64 exec, -1")
    A.stamp(4)

    A.lab("L_round")
    for j in range(4):
        A(f"v_mov_b32_dpp v48, {v(vGW)} row_newbcast:{j} row_mask:0xf bank_mask:0xf")
        A("v_and_b32 v49, 0x7ff, v48")
        A("v_bfe_u32 v50, v48, 11, 11")
        A(f"v_add_u32 v49, {s(sLO)}, v49")
        A(f"v_subrev_u32 v50, {s(sLO)}, v50")
        A(f"v_mad_u32_u24 {v(52+j)}, v49, 12, {v(vRB)}")
        A(f"v_cmp_lt_i32 vcc, {v(vB15)}, v50")
        A("v_subrev_u32 v50, 16, v50")
        A(f"s_and_b64 {s(sMK+2*j,2)}, vcc, {s(sWM,2)}")
        A(f"v_cmp_lt_i32 vcc, {v(vB15)}, v50")
        A(f"s_mov_b64 exec, {s(sMK+2*j,2)}")
        A(f"s_cbranch_execz L_ld{j}")
        A(f"buffer_load_dwordx3 {v(RB(j),3)}, {v(52+j)}, {s(sSRD,4)}, {s(sJ+j-1) if j else 0} offen sc1")
        A.lab(f"L_ld{j}")
        A("s_mov_b64 exec, -1")
        A(f"s_and_b64 {s(sMK+8+2*j,2)}, vcc, {s(sP1M,2)}")
    for j in range(4):
        A(f"s_mov_b64 exec, {s(sMK+8+2*j,2)}")
        A(f"s_cbranch_execz L_ld{4+j}")
        A(f"buffer_load_dwordx3 {v(RB(4+j),3)}, {v(52+j)}, {s(sSRD,4)}, {s(sJ+j-1) if j else 0} offen offset:192 sc1")
        A.lab(f"L_ld{4+j}")
    A("s_mov_b64 exec, -1")
    A.c("table flag poll address: flag f = 8w + l, lanes 0..7")
    A(f"s_lshl_b32 s3, {s(sWAVE)}, 3")
    A(f"v_add_u32 v48, s3, {v(vL)}")
    A(f"v_cmp_gt_u32 vcc, {NB}, v48")
    A(f"s_and_b64 {s(sEX,2)}, vcc, 0xff")
    A(f"s_mul_i32 {s(sT0)}, {s(sSL)}, {NB*128}")
    A(f"s_add_u32 {s(sT0)}, {s(sT0)}, {OFF_F2}")
    A(f"v_lshl_add_u32 v56, v48, 7, {s(sT0)}")
    A(f"v_lshlrev_b32 v57, 3, {v(vL)}")
    A("s_waitcnt vmcnt(0)")
    A.stamp(5)
    for j in range(8):
        A(f"s_mov_b64 exec, {s(sMK+2*j,2)}")
        if j >= 4: A(f"s_cbranch_execz L_rk{j}")
        A(f"v_lshrrev_b32 {v(vCI+j)}, 14, {v(RB(j)+2)}")
        A(f"ds_add_rtn_u32 {v(RB(j)+3)}, {v(vCI+j)}, {v(vONE)} offset:{L_CNT2}")
        if j >= 4: A.lab(f"L_rk{j}")
    A(f"s_mov_b64 exec, {s(sEX,2)}")
    A(f"global_load_dwordx2 v[58:59], v56, {s(sWS,2)} sc1")
    A("s_mov_b64 exec, -1")
    A("s_waitcnt lgkmcnt(0)")
    A("s_barrier")
    vCA, vPA, vSUM, vINC, vSTA = 48, 50, 52, 53, 54
    A(f"ds_read_b64 {v(vCA,2)}, v57 offset:{L_CNT2}")
    A(f"ds_read_b32 v60, {v(vZ)} offset:{M_MAXLEN}")
    A(f"v_cmp_gt_u32 vcc, {BN//2}, {v(vL)}")
    A("s_waitcnt lgkmcnt(0)")
    for k in range(2):
        A(f"v_add_u32 {v(vPA+k)}, 1, {v(vCA+k)}")
        A(f"v_lshrrev_b32 {v(vPA+k)}, 1, {v(vPA+k)}")
        A(f"v_max_u32 {v(vPA+k)}, 2, {v(vPA+k)}")
        A(f"v_cndmask_b32 {v(vPA+k)}, 0, {v(vPA+k)}, vcc")
    A(f"v_readfirstlane_b32 {s(sMAXL)}, v60")
    A(f"v_add_u32 {v(vSUM)}, {v(vPA)}, {v(vPA+1)}")
    A(f"v_add_u32 {v(vINC)}, {v(vPA)}, {v(vPA+1)}")
    wave_scan(A, vINC)
    A(f"v_sub_u32 {v(vSTA)}, {v(vINC)}, {v(vSUM)}")
    A(f"v_readlane_b32 {s(sTP)}, {v(vINC)}, 63")
    A(f"v_lshlrev_b32 {v(vSTA)}, 1, {v(vSTA)}")
    A(f"v_lshl_add_u32 {v(vSTA+1)}, {v(vPA)}, 1, {v(vSTA)}")
    A.c("first round only: does everything fit in one round?")
    A(f"s_cmp_eq_u32 {s(sMODE)}, 0")
    A("s_cbranch_scc0 L_fits")
    A(f"s_cmp_gt_u32 {s(sMAXL)}, 32")
    A("s_cbranch_scc1 L_goslow")
    A(f"s_cmp_gt_u32 {s(sTP)}, {CAP_PAIRS}")
    A("s_cbranch_scc1 L_goslow")
    A.lab("L_fits")
    A(f"ds_write_b64 v57, {v(vSTA,2)} offset:{L_ST2}")
    for j in range(8):
        A(f"s_mov_b64 exec, {s(sMK+2*j,2)}")
        if j >= 4: A(f"s_cbranch_execz L_sr{j}")
        A(f"ds_read_b32 {v(vCI+j)}, {v(vCI+j)} offset:{L_ST2}")
        if j >= 4: A.lab(f"L_sr{j}")
    A("s_mov_b64 exec, -1")
    A.c("stream geometry")
    A(f"s_add_u32 {s(sT0)}, {s(sTP)}, 3")
    A(f"s_lshr_b32 {s(sT0)}, {s(sT0)}, 2")
    A(f"s_lshr_b32 {s(sT1)}, {s(sT0)}, 4")
    A(f"s_and_b32 {s(sT2)}, {s(sT0)}, 15")
    A(f"s_mul_i32 {s(sS)}, {s(sWAVE)}, {s(sT1)}")
    A(f"s_min_u32 {s(sT3)}, {s(sWAVE)}, {s(sT2)}")
    A(f"s_add_u32 {s(sS)}, {s(sS)}, {s(sT3)}")
    A(f"s_lshl_b32 {s(sS)}, {s(sS)}, 2")
    A(f"s_cmp_lt_u32 {s(sWAVE)}, {s(sT2)}")
    A(f"s_addc_u32 {s(sL)}, {s(sT1)}, 0")
    A(f"s_mov_b32 {s(sT1)}, {L_META}")
    A(f"s_mov_b32 {s(sT2)}, {L_E}")
    A.c("null padding: waves 0-7 pad nodes, wave 8 pads the tail")
    A(f"s_cmp_gt_u32 {s(sWAVE)}, 8")
    A("s_cbranch_scc1 L_nopad")
    A(f"s_cmp_eq_u32 {s(sWAVE)}, 8")
    A("s_cbranch_scc1 L_padtail")
    A(f"s_cmp_ge_u32 {s(sWAVE)}, 4")
    A(f"s_cselect_b64 vcc, -1, 0")
    A(f"s_cselect_b32 {s(sT3)}, 1, 0")
    A(f"s_and_b32 {s(sT4)}, {s(sWAVE)}, 3")
    A(f"v_cndmask_b32 v60, {v(vCA)}, {v(vCA+1)}, vcc")
    A(f"v_cndmask_b32 v61, {v(vPA)}, {v(vPA+1)}, vcc")
    A(f"v_cndmask_b32 v62, {v(vSTA)}, {v(vSTA+1)}, vcc")
    A(f"v_add_u32 v60, {s(sT4)}, v60")
    A("v_lshlrev_b32 v61, 1, v61")
    A("v_add_u32 v62, v62, v60")
    A("v_cmp_lt_u32 vcc, v60, v61")
    A(f"v_lshl_add_u32 v63, {v(vL)}, 1, {s(sT3)}")
    A("s_branch L_padwr")
    A.lab("L_padtail")
    A(f"s_lshl_b32 {s(sT3)}, {s(sTP)}, 1")
    A(f"s_lshl_b32 {s(sT4)}, {s(sT0)}, 3")
    A(f"v_add_u32 v62, {s(sT3)}, {v(vL)}")
    A(f"v_cmp_eq_u32 vcc, {s(sT4)}, v62")
    A(f"v_mov_b32 v63, {BN-1}")
    A("v_mov_b32 v61, 255")
    A("v_cndmask_b32 v63, v63, v61, vcc")
    A(f"v_cmp_ge_u32 vcc, {s(sT4)}, v62")
    A.lab("L_padwr")
    A(f"s_add_u32 {s(sT3)}, {s(sBKT)}, {N}")
    A(f"v_lshl_or_b32 v63, v63, 16, {s(sT3)}")
    A(f"v_lshl_add_u32 v60, v62, 2, {s(sT1)}")
    A(f"v_lshl_add_u32 v61, v62, 3, {s(sT2)}")
    A("s_mov_b64 exec, vcc")
    A("ds_write_b32 v60, v63")
    A(f"ds_write_b64 v61, {v(vZ,2)}")
    A("s_mov_b64 exec, -1")
    A.lab("L_nopad")
    A("s_waitcnt lgkmcnt(0)")
    for j in range(8):
        A(f"s_mov_b64 exec, {s(sMK+2*j,2)}")
        if j >= 4: A(f"s_cbranch_execz L_sw{j}")
        A(f"v_add_u32 {v(vCI+j)}, {v(vCI+j)}, {v(RB(j)+3)}")
        A(f"v_lshl_add_u32 {v(RB(j)+3)}, {v(vCI+j)}, 2, {s(sT1)}")
        A(f"v_lshl_add_u32 {v(vCI+j)}, {v(vCI+j)}, 3, {s(sT2)}")
        A(f"ds_write_b32 {v(RB(j)+3)}, {v(RB(j)+2)}")
        A(f"ds_write_b64 {v(vCI+j)}, {v(RB(j),2)}")
        if j >= 4: A.lab(f"L_sw{j}")
    A.c("stream addresses")
    A("s_mov_b64 exec, -1")
    A(f"v_mul_u32_u24 v60, {s(sL)}, {v(vG4)}")
    A(f"v_add_u32 v60, {s(sS)}, v60")
    A(f"v_lshl_add_u32 {v(vIA)}, v60, 3, {s(sT1)}")
    A(f"v_bfe_u32 v61, {v(vL)}, 2, 2")
    A(f"v_mul_u32_u24 v61, {s(sL)}, v61")
    A(f"v_add_u32 v61, {s(sS)}, v61")
    A(f"v_lshl_add_u32 v61, v61, 4, {s(sT2)}")
    A(f"v_cmp_ne_u32 vcc, 0, {v(vEI)}")
    A(f"s_lshl_b32 {s(sT3)}, {s(sS)}, 3")
    A(f"s_add_u32 {s(sT3)}, {s(sT3)}, {s(sT1)}")
    A(f"v_cndmask_b32 {v(vEA)}, {v(vZA)}, v61, vcc")
    A(f"v_lshl_add_u32 v60, {v(vL)}, 3, {s(sT3)}")
    A(f"s_lshl_b32 {s(sT3)}, {s(sL)}, 3")
    for g in range(1, 4):
        A(f"v_add_u32 {v(60+g)}, {s(sT3)}, {v(60+g-1)}")
    A.c("all table rows of this slice must be published")
    A(f"s_mov_b64 exec, {s(sEX,2)}")
    A(f"s_mov_b32 {s(sSPIN)}, {SPIN}")
    A.lab("L_f2")
    A("s_waitcnt vmcnt(0)")
    A(f"v_cmp_ne_u32 vcc, {s(sNON)}, v58")
    A(f"v_cmp_ne_u32 {s(sP0,2)}, {s(sNON+1)}, v59")
    A(f"s_or_b64 vcc, vcc, {s(sP0,2)}")
    A("s_cbranch_scc0 L_f2_done")
    A(f"s_sub_u32 {s(sSPIN)}, {s(sSPIN)}, 1")
    A("s_cbranch_scc1 L_f2_done")
    A("s_sleep 1")
    A(f"global_load_dwordx2 v[58:59], v56, {s(sWS,2)} sc1")
    A("s_branch L_f2")
    A.lab("L_f2_done")
    A("s_mov_b64 exec, -1")
    A("s_waitcnt lgkmcnt(0)")
    A("s_barrier")
    A.stamp(6)

    def gather(buf, x):
        r = LB[buf][x] + 2
        A(f"buffer_load_dwordx4 {v(r,4)}, {v(IDX+2*x,2)}, {s(sTAB,4)}, 0 idxen offen {GF}")
    def rd_idx(off):
        A(f"ds_read_u16 {v(IDX)}, {v(vIA)} offset:{off}")
        A(f"ds_read_u16 {v(IDX+2)}, {v(vIA)} offset:{off+4}")
    def rd_e(off):
        A(f"ds_read_b64 {v(AE[0],2)}, {v(vEA)} offset:{off}")
        A(f"ds_read_b64 {v(AE[1],2)}, {v(vEA)} offset:{off+8}")
    m32 = lambda d, buf, x: f"v_mfma_f32_16x16x32_bf16 {v(d,4)}, {v(AE[x],4)}, {v(LB[buf][x],4)}, {v(XA,4)}"
    m4h = lambda d, buf, x: f"v_mfma_f32_4x4x4_16b_bf16 {v(d,4)}, {v(IDM,2)}, {v(LB[buf][x]+4,2)}, 0"
    m4c = lambda d: f"v_mfma_f32_4x4x4_16b_bf16 {v(d,4)}, {v(IDM,2)}, {v(CB,2)}, {v(d,4)}"
    ex = lambda d: f"v_exp_f32_e64 {v(d)}, {v(d)} clamp"
    rcp = lambda k: f"v_rcp_f32_e32 {v(P+k)}, {v(P+k)}"

    rd_idx(0)
    A(f"ds_read_u16 v8, {v(vIA)} offset:8")
    A(f"ds_read_u16 v10, {v(vIA)} offset:12")
    A(f"ds_read_u16 v12, {v(vIA)} offset:2")
    for g in range(4):
        A(f"ds_read_u16 {v(16+2*g)}, {v(60+g)} offset:2")
        A(f"ds_read_u16 {v(17+2*g)}, {v(60+g)} offset:10")
    rd_e(0)
    A(f"v_mov_b32 v9, {v(IDX+1)}")
    A(f"v_mov_b32 v11, {v(IDX+1)}")
    A(f"s_cmp_eq_u32 {s(sMODE)}, 0")
    A("s_cbranch_scc1 L_nozero")
    A(f"ds_write_b64 v57, {v(vZ,2)} offset:{L_CNT2}")
    A.lab("L_nozero")
    A(f"s_sub_u32 {s(sT0)}, {s(sL)}, 1")
    A(f"s_bfm_b64 {s(sEX,2)}, {s(sT0)}, 0")
    A(f"s_mov_b32 {s(sT1)}, {NSTR}")
    A(f"v_mul_u32_u24 v13, 48, {v(vB15)}")
    A(f"v_add_u32 v13, {L_NS-NSTR}, v13")
    A("s_waitcnt lgkmcnt(0)")
    gather(0, 0); gather(0, 1)
    A(f"buffer_load_dwordx4 {v(LB[1][0]+2,4)}, v[8:9], {s(sTAB,4)}, 0 idxen offen {GF}")
    A(f"buffer_load_dwordx4 {v(LB[1][1]+2,4)}, v[10:11], {s(sTAB,4)}, 0 idxen offen {GF}")
    A(f"v_mad_u32_u24 {v(vPTR)}, v12, {s(sT1)}, v13")
    A(f"ds_read_b128 {v(XA,4)}, {v(vPTR)} offset:{NSTR}")
    rd_idx(16)
    A.c("node-end masks -> per-step event byte (switch nibble <<4 | flush nibble), lane = step+1")
    A(f"s_mov_b32 {s(sEND)}, 0")
    for g in (3, 2, 1, 0):
        A(f"v_cmp_ne_u32 vcc, {v(16+2*g)}, {v(17+2*g)}")
        A(f"s_bitcmp1_b32 vcc_lo, {s(sT0)}")
        A(f"s_addc_u32 {s(sEND)}, {s(sEND)}, {s(sEND)}")
        A(f"s_and_b64 {s(sMK+2*g,2)}, vcc, {s(sEX,2)}")
        A(f"s_lshl_b64 {s(sMK+8+2*g,2)}, {s(sMK+2*g,2)}, 2")
    A(f"v_mov_b32 {v(vEVB)}, 0")
    for k in (3, 2, 1, 0, 7, 6, 5, 4):
        A(f"v_addc_co_u32 {v(vEVB)}, vcc, {v(vEVB)}, {v(vEVB)}, {s(sMK+2*k,2)}")
    for k in range(4):
        A(f"v_mov_b32 {v(P+k)}, 1.0")
    for k in range(16):
        A(f"v_mov_b32 {v(S+k)}, 0")
    A(f"v_cmp_ne_u32 vcc, 0, {v(vEVB)}")
    A(f"s_lshr_b64 {s(sP0,2)}, vcc, 1")
    A(f"s_bitset1_b32 {s(sP0)}, {s(sT0)}")
    A(f"s_brev_b32 {s(sEV)}, {s(sP0)}")
    A(f"s_sub_u32 {s(sLM)}, {s(sL)}, 32")
    A(f"v_readfirstlane_b32 {s(sT0)}, {v(vEVB)}")
    A("s_waitcnt vmcnt(2) lgkmcnt(0)")
    A(m32(T[0][0], 0, 0)); A(m32(T[0][1], 0, 1)); A(m4h(H[0][0], 0, 0)); A(m4h(H[0][1], 0, 1))
    gather(0, 0); gather(0, 1)
    rd_e(16)
    rd_idx(24)
    A(f"s_lshr_b32 {s(sT0)}, {s(sT0)}, 4")
    A("s_cbranch_scc0 L_loop")
    for _ in range(4): A(f"s_bitreplicate_b64_b32 {s(sP0,2)}, {s(sT0) if _ == 0 else s(sP0)}")
    A(f"s_mov_b64 exec, {s(sP0,2)}")
    A(f"v_add_u32 {v(vPTR)}, {NSTR}, {v(vPTR)}")
    A(f"ds_read_b128 {v(XA,4)}, {v(vPTR)} offset:{NSTR}")
    A("s_mov_b64 exec, -1")

    def body(c, ioff, eoff):
        n = 1 - c
        tA, tB = T[c]; hA, hB = H[c]; tA2, tB2 = T[n]; hA2, hB2 = H[n]
        A(ex(tA))
        A("s_waitcnt vmcnt(2) lgkmcnt(0)")
        A(f"s_add_u32 {s(sEV)}, {s(sEV)}, {s(sEV)}")
        A(m32(tA2, n, 0)); A(ex(tA + 1)); A(ex(tA + 2)); A(m32(tB2, n, 1)); A(ex(tA + 3))
        rd_e(eoff)
        A(ex(tB)); A(m4h(hA2, n, 0)); A(ex(tB + 1)); A(m4c(tA)); A(ex(tB + 2)); A(m4h(hB2, n, 1))
        gather(n, 0); gather(n, 1)
        A(ex(tB + 3))
        rd_idx(ioff)
        A(rcp(0)); A(rcp(1)); A(m4c(tB)); A(rcp(2)); A(rcp(3))
        for k in (0, 2): A(f"v_pk_fma_f32 {v(DEN+k,2)}, {v(S+k,2)}, {v(P+k,2)}, {v(DEN+k,2)}")
        for k in (0, 2): A(f"v_pk_fma_f32 {v(NUM+k,2)}, {v(AA+k,2)}, {v(P+k,2)}, {v(NUM+k,2)}")
        for k in (0, 2): A(f"v_pk_mul_f32 {v(P+k,2)}, {v(tA+k,2)}, {v(tB+k,2)}")
        for k in (0, 2): A(f"v_pk_mul_f32 {v(AA+k,2)}, {v(hA+k,2)}, {v(tB+k,2)}")
        for k in (0, 2): A(f"v_pk_add_f32 {v(S+k,2)}, {v(tA+k,2)}, {v(tB+k,2)}")
        for k in (0, 2): A(f"v_pk_fma_f32 {v(AA+k,2)}, {v(hB+k,2)}, {v(tA+k,2)}, {v(AA+k,2)}")

    def handler(tag, ret):
        A(f"s_ff1_i32_b32 {s(sT0)}, {s(sEV)}")
        A(f"s_cmp_eq_u32 {s(sEV)}, 0")
        A(f"s_cselect_b32 {s(sT0)}, 32, {s(sT0)}")
        A(f"s_add_u32 {s(sT0)}, {s(sT0)}, {s(sLM)}")
        A(f"v_readlane_b32 {s(sT1)}, {v(vEVB)}, {s(sT0)}")
        A(f"s_and_b32 {s(sP0)}, {s(sT1)}, 15")
        A(f"s_cbranch_scc0 L_nofl{tag}")
        for _ in range(4): A(f"s_bitreplicate_b64_b32 {s(sP0,2)}, {s(sP0)}")
        A(f"s_mov_b64 exec, {s(sP0,2)}")
        A(f"ds_write_b128 {v(vPTR)}, {v(DEN,4)} offset:16")
        A(f"ds_write_b128 {v(vPTR)}, {v(NUM,4)} offset:32")
        A(f"ds_read_b128 {v(DEN,4)}, {v(vZA)}")
        A(f"ds_read_b128 {v(NUM,4)}, {v(vZA)}")
        A.lab(f"L_nofl{tag}")
        A(f"s_lshr_b32 {s(sP0)}, {s(sT1)}, 4")
        A(f"s_cbranch_scc0 L_nosw{tag}")
        for _ in range(4): A(f"s_bitreplicate_b64_b32 {s(sP0,2)}, {s(sP0)}")
        A(f"s_mov_b64 exec, {s(sP0,2)}")
        A(f"v_add_u32 {v(vPTR)}, {NSTR}, {v(vPTR)}")
        A(f"ds_read_b128 {v(XA,4)}, {v(vPTR)} offset:{NSTR}")
        A.lab(f"L_nosw{tag}")
        A("s_mov_b64 exec, -1")
        A(f"s_cmp_lg_u32 {s(sEV)}, 0")
        A(f"s_cbranch_scc1 {ret}")

    A.raw(".p2align 3")
    A.lab("L_loop")
    body(0, 32, 32)
    A("s_cbranch_scc1 L_h0")
    A.lab("L_r0")
    A(f"v_add_u32 {v(vIA)}, 16, {v(vIA)}")
    body(1, 24, 48)
    A(f"v_add_u32 {v(vEA)}, {v(vEI)}, {v(vEA)}")
    A("s_cbranch_scc0 L_loop")
    handler(1, "L_loop")
    A("s_branch L_drain")
    A.lab("L_h0")
    handler(0, "L_r0")
    A.lab("L_drain")
    A.c("last segment of each stream: node sum if it ends the node, else a partial slot")
    for _ in range(4): A(f"s_bitreplicate_b64_b32 {s(sP0,2)}, {s(sEND) if _ == 0 else s(sP0)}")
    A(f"s_lshl_b32 {s(sT0)}, {s(sWAVE)}, 2")
    A(f"v_add_u32 v16, {s(sT0)}, {v(vG4)}")
    A(f"v_mul_u32_u24 v17, {XSTR}, v16")
    A(f"v_lshl_add_u32 v17, {v(vB15)}, 5, v17")
    A(f"v_add_u32 v17, {L_EXT}, v17")
    A(f"v_add_u32 v18, {NSTR+16}, {v(vPTR)}")
    for k in range(4): A(rcp(k))
    A(f"v_cndmask_b32 v17, v17, v18, {s(sP0,2)}")
    A(f"s_mov_b32 {s(sP1)}, 0x00010001")
    A(f"s_mov_b32 {s(sP1+1)}, 0x00010001")
    A("s_waitcnt lgkmcnt(0)")
    A(f"s_andn2_b64 exec, {s(sP1,2)}, {s(sP0,2)}")
    A(f"ds_add_u32 {v(vPTR)}, {v(vONE)} offset:{NSTR+768}")
    A(f"ds_max_u32 {v(vPTR)}, v16 offset:{NSTR+772}")
    A("s_mov_b64 exec, -1")
    for k in (0, 2): A(f"v_pk_fma_f32 {v(DEN+k,2)}, {v(S+k,2)}, {v(P+k,2)}, {v(DEN+k,2)}")
    for k in (0, 2): A(f"v_pk_fma_f32 {v(NUM+k,2)}, {v(AA+k,2)}, {v(P+k,2)}, {v(NUM+k,2)}")
    A(f"ds_write_b128 v17, {v(DEN,4)}")
    A(f"ds_write_b128 v17, {v(NUM,4)} offset:16")
    A.c("addresses and residual x for the output pass")
    A(f"v_lshrrev_b32 v8, 5, {v(vL)}")
    A(f"v_and_b32 v9, 3, {v(vL)}")
    A(f"v_bfe_u32 v10, {v(vL)}, 2, 3")
    A(f"s_lshl_b32 {s(sT2)}, {s(sWAVE)}, 3")
    A(f"v_add_u32 v10, {s(sT2)}, v10")
    A("v_lshl_add_u32 v11, v9, 1, v8")
    A("v_lshlrev_b32 v12, 4, v11")
    A("v_lshl_add_u32 v12, v10, 8, v12")
    A(f"s_mul_i32 {s(sT0)}, {s(sBKT)}, {BN*256}")
    A(f"s_lshl_b32 {s(sT1)}, {s(sSL)}, 7")
    A(f"s_add_u32 {s(sT0)}, {s(sT0)}, {s(sT1)}")
    A(f"v_add_u32 v12, {s(sT0)}, v12")
    A(f"s_cmp_lt_u32 {s(sWAVE)}, 10")
    A("s_cbranch_scc0 L_nox")
    A(f"global_load_dwordx4 {v(vX,4)}, v12, {s(sX,2)}")
    A.lab("L_nox")
    A(f"v_mul_u32_u24 v19, {NSTR}, v10")
    A(f"v_add_u32 v19, {L_NS}, v19")
    A("v_mul_u32_u24 v14, 384, v8")
    A("v_lshl_add_u32 v14, v9, 2, v14")
    A("v_add3_u32 v13, v19, v14, 16")
    A("v_lshlrev_b32 v18, 2, v9")
    A("v_lshl_add_u32 v18, v8, 8, v18")
    A(f"v_add_u32 v18, {L_EXT}, v18")
    A("v_and_b32 v14, 3, v10")
    A("v_lshlrev_b32 v15, 1, v11")
    A("v_xor_b32 v14, v14, v15")
    A("v_lshlrev_b32 v14, 4, v14")
    A("v_lshl_add_u32 v14, v10, 8, v14")
    A(f"v_add_u32 v14, {L_XS}, v14")
    A("v_xor_b32 v15, 16, v14")
    A(f"s_mov_b32 {s(sT1)}, {XSTR}")
    A.stamp(7)
    A("s_waitcnt vmcnt(0) lgkmcnt(0)")
    A("s_barrier")
    A(f"s_cmp_lt_u32 {s(sWAVE)}, 10")
    A("s_cbranch_scc0 L_nocomb")
    D8, N8, U8, XF, Q8 = 24, 32, 40, 48, 64
    A("ds_read_b64 v[16:17], v19 offset:768")
    for k in range(4):
        A(f"ds_read2_b32 {v(D8+2*k,2)}, v13 offset0:{24*k} offset1:{24*k+12}")
    for k in range(4):
        A(f"ds_read2_b32 {v(N8+2*k,2)}, v13 offset0:{24*k+4} offset1:{24*k+16}")
    A(f"ds_read_b128 {v(U8,4)}, v14")
    A(f"ds_read_b128 {v(U8+4,4)}, v15")
    A(f"s_mov_b32 {s(sT0)}, 0")
    A("s_waitcnt lgkmcnt(10)")
    A(f"v_mad_u32_u24 v18, v17, {s(sT1)}, v18")
    A.lab("L_part")
    A(f"v_cmp_lt_u32 vcc, {s(sT0)}, v16")
    A("s_cbranch_vccz L_part_done")
    A("s_mov_b64 exec, vcc")
    for k in range(4):
        A(f"ds_read2_b32 {v(XF+2*k,2)}, v18 offset0:{16*k} offset1:{16*k+8}")
    for k in range(4):
        A(f"ds_read2_b32 {v(XF+8+2*k,2)}, v18 offset0:{16*k+4} offset1:{16*k+12}")
    A(f"v_subrev_u32 v18, {XSTR}, v18")
    A(f"s_add_u32 {s(sT0)}, {s(sT0)}, 1")
    A("s_waitcnt lgkmcnt(0)")
    for k in range(8):
        A(f"v_pk_add_f32 {v(D8+2*k,2)}, {v(D8+2*k,2)}, {v(XF+2*k,2)}")
    A("s_mov_b64 exec, -1")
    A("s_branch L_part")
    A.lab("L_part_done")
    A(f"s_cmp_eq_u32 {s(sMODE)}, 0")
    A("s_cbranch_scc0 L_slowcomb")
    A.lab("L_final")
    A(f"s_mov_b32 {s(sP0)}, {hex(EPS)}")
    A(f"s_mov_b32 {s(sP0+1)}, {hex(EPS)}")
    for k in range(4):
        A(f"v_lshlrev_b32 {v(XF+2*k)}, 16, {v(vX+k)}")
        A(f"v_and_b32 {v(XF+2*k+1)}, 0xffff0000, {v(vX+k)}")
    A("s_waitcnt lgkmcnt(0)")
    for k in range(4):
        A(f"v_pk_add_f32 {v(D8+2*k,2)}, {v(D8+2*k,2)}, {s(sP0,2)}")
    for k in range(8):
        A(f"v_rcp_f32 {v(D8+k)}, {v(D8+k)}")
    for k in range(4):
        A(f"v_pk_fma_f32 {v(U8+2*k,2)}, {v(N8+2*k,2)}, {v(D8+2*k,2)}, {v(U8+2*k,2)}")
    for k in range(8):
        A(f"v_max_f32 {v(U8+k)}, 0, {v(U8+k)}")
    for k in range(4):
        A(f"v_pk_add_f32 {v(U8+2*k,2)}, {v(U8+2*k,2)}, {v(XF+2*k,2)}")
    for k in range(4):
        A(f"v_cvt_pk_bf16_f32 {v(D8+k)}, {v(U8+2*k)}, {v(U8+2*k+1)}")
    A(f"global_store_dwordx4 v12, {v(D8,4)}, {s(sOUT,2)}")
    A.lab("L_out_done")
    if diag:
        A("s_waitcnt vmcnt(0)")
        A(f"s_memrealtime {s(sP0,2)}")
        A("s_waitcnt lgkmcnt(0)")
        A(f"s_mov_b32 {s(sST)}, {s(sRT)}")
        A("v_mov_b32 v8, 0")
        for k in range(8): A(f"v_writelane_b32 v8, {s(sST+2*k)}, {k}")
        A(f"v_writelane_b32 v8, {s(sP0)}, 8")
        A(f"v_writelane_b32 v8, {s(sL)}, 9")
        A("s_lshl_b32 s3, s2, 4")
        A(f"s_add_u32 s3, s3, {s(sWAVE)}")
        A("s_lshl_b32 s3, s3, 6")
        A(f"s_add_u32 s3, s3, {OFF_DIAG}")
        A(f"v_lshl_add_u32 v9, {v(vL)}, 2, s3")
        A("s_mov_b64 exec, 0xffff")
        A(f"global_store_dword v9, v8, {s(sWS,2)}")
    A("s_endpgm")
    A.c("more records than one round holds: restart in rounds of 15 records per segment")
    A.lab("L_goslow")
    A(f"s_mov_b32 {s(sMODE)}, 1")
    A(f"s_mov_b32 {s(sWM)}, {hex(((1 << SLOWK) - 1) * 0x10001)}")
    A(f"s_mov_b32 {s(sWM+1)}, {hex(((1 << SLOWK) - 1) * 0x10001)}")
    A(f"s_mov_b64 {s(sP1M,2)}, 0")
    A("s_waitcnt vmcnt(0)")
    A("s_barrier")
    A(f"ds_write_b64 v57, {v(vZ,2)} offset:{L_CNT2}")
    A("s_waitcnt lgkmcnt(0)")
    A("s_barrier")
    A("s_branch L_round")
    A.c("multi-round mode: waves without output work just go on")
    A.lab("L_nocomb")
    A(f"s_cmp_eq_u32 {s(sMODE)}, 0")
    A("s_cbranch_scc1 L_out_done")
    A(f"s_add_u32 {s(sLO)}, {s(sLO)}, {SLOWK}")
    A(f"s_cmp_lt_u32 {s(sLO)}, {s(sMAXL)}")
    A("s_cbranch_scc1 L_round")
    A("s_branch L_out_done")
    A.c("multi-round mode: running sums live in this workgroup's scratch, one 64-byte record per thread")
    A.lab("L_slowcomb")
    A(f"s_mul_i32 {s(sT0)}, s2, 40960")
    A(f"s_add_u32 {s(sT0)}, {s(sT0)}, {OFF_ACC}")
    add64(A, sP0, sWS, s(sT0))
    A("v_lshlrev_b32 v20, 6, v0")
    A("s_waitcnt lgkmcnt(0)")
    A(f"ds_write_b64 v19, {v(vZ,2)} offset:768")
    A(f"s_cmp_eq_u32 {s(sLO)}, 0")
    A("s_cbranch_scc1 L_slow1")
    for k in range(4):
        A(f"global_load_dwordx4 {v(48+4*k,4)}, v20, {s(sP0,2)} offset:{16*k} sc1")
    A("s_waitcnt vmcnt(0)")
    for k in range(8):
        A(f"v_pk_add_f32 {v(24+2*k,2)}, {v(24+2*k,2)}, {v(48+2*k,2)}")
    A.lab("L_slow1")
    A(f"s_add_u32 {s(sLO)}, {s(sLO)}, {SLOWK}")
    A(f"s_cmp_lt_u32 {s(sLO)}, {s(sMAXL)}")
    A("s_cbranch_scc0 L_final")
    for k in range(4):
        A(f"global_store_dwordx4 v20, {v(24+4*k,4)}, {s(sP0,2)} offset:{16*k} sc1")
    A("s_waitcnt vmcnt(0) lgkmcnt(0)")
    A("s_branch L_round")
    A.lab("L_end")
    A("s_endpgm")
    return A.L


HEADER = open(os.path.join(os.path.dirname(os.path.abspath(__file__)), "header.txt")).read()


def emit(path, diag=0, **o):
    body = build(diag, **o)
    errs = hazard.check(body, "linear")
    for e in errs: print("HAZARD", e)
    out = [HEADER.rstrip("\n"),
           f"; @launch grid=({NC},1,1) block=(1024,1,1) lds={LDS_SIZE}",
           '.amdgcn_target "amdgcn-amd-amdhsa--gfx950"', ".text", f".globl {KNAME}", ".p2align 8",
           f".type {KNAME},@function", f"{KNAME}:"]
    out += body
    out += ['.section .rodata,"a"', ".p2align 6", f".amdhsa_kernel {KNAME}",
            "  .amdhsa_next_free_vgpr 120", "  .amdhsa_next_free_sgpr 102", "  .amdhsa_accum_offset 120",
            "  .amdhsa_group_segment_fixed_size 0", "  .amdhsa_kernarg_size 96", "  .amdhsa_user_sgpr_count 2",
            "  .amdhsa_user_sgpr_kernarg_segment_ptr 1", "  .amdhsa_system_sgpr_workgroup_id_x 1",
            ".end_amdhsa_kernel"]
    open(path, "w").write("\n".join(out) + "\n")
    return len(errs)


if __name__ == "__main__":
    root = os.path.dirname(os.path.dirname(os.path.abspath(__file__)))
    emit(os.path.join(root, "cdna_kernels", "standalone__edge_featured_mpnn_gatedgcn__graph.s"), 0)
    emit(os.path.join(root, "gen", "diag.s"), 1)
    for a in sys.argv[1:]:
        name, _, rest = a.partition(':')
        o = {}
        for kv in rest.split(','):
            if kv:
                k, _, val = kv.partition('=')
                o[k] = int(val) if val.lstrip('-').isdigit() else val.replace('+', ' ')
        emit(os.path.join(root, "gen", f"diag_{name}.s"), 1, **o)
```

```python
def v(a, n=1): return f"v{a}" if n == 1 else f"v[{a}:{a+n-1}]"
def s(a, n=1): return f"s{a}" if n == 1 else f"s[{a}:{a+n-1}]"
T = [[8, 12], [16, 20]]; H = [[24, 28], [32, 36]]
P, S, AA, DEN, NUM, XA = 40, 44, 48, 52, 56, 60
LB = [[64, 70], [76, 82]]
AE = [88, 92]; IDX = 96; IDM = 100; CB = 102
vIA, vEA, vEI, vPTR, vZA, vEVB = 104, 105, 106, 107, 108, 109

def parts(c, ioff, eoff, sTAB, sEV, GF):
    n = 1 - c
    tA, tB = T[c]; hA, hB = H[c]; tA2, tB2 = T[n]; hA2, hB2 = H[n]
    d = {}
    m32 = lambda dd, x: f"v_mfma_f32_16x16x32_bf16 {v(dd,4)}, {v(AE[x],4)}, {v(LB[n][x],4)}, {v(XA,4)}"
    m4h = lambda dd, x: f"v_mfma_f32_4x4x4_16b_bf16 {v(dd,4)}, {v(IDM,2)}, {v(LB[n][x]+4,2)}, 0"
    m4c = lambda dd: f"v_mfma_f32_4x4x4_16b_bf16 {v(dd,4)}, {v(IDM,2)}, {v(CB,2)}, {v(dd,4)}"
    for k in range(4):
        d[f"a{k}"] = f"v_exp_f32_e64 {v(tA+k)}, {v(tA+k)} clamp"
        d[f"b{k}"] = f"v_exp_f32_e64 {v(tB+k)}, {v(tB+k)} clamp"
        d[f"r{k}"] = f"v_rcp_f32_e32 {v(P+k)}, {v(P+k)}"
        d[f"R{k}"] = f"v_rcp_f32_e64 {v(P+k)}, {v(P+k)}"
    d["MA"] = m32(tA2, 0); d["MB"] = m32(tB2, 1)
    d["HA"] = m4h(hA2, 0); d["HB"] = m4h(hB2, 1)
    d["CA"] = m4c(tA); d["CB"] = m4c(tB)
    d["W"] = "s_waitcnt vmcnt(2) lgkmcnt(0)"
    d["Wv"] = "s_waitcnt vmcnt(2)"; d["Wl"] = "s_waitcnt lgkmcnt(0)"
    d["E"] = f"s_add_u32 {s(sEV)}, {s(sEV)}, {s(sEV)}"
    d["N"] = "s_nop 0"
    d["K"] = f"s_cbranch_vccz L_skipg{c}"
    d["L"] = f"L_backg{c}:"
    d["P1"] = "s_setprio 1"; d["P0"] = "s_setprio 0"
    d["eA"] = f"ds_read_b64 {v(AE[0],2)}, {v(vEA)} offset:{eoff}"
    d["eB"] = f"ds_read_b64 {v(AE[1],2)}, {v(vEA)} offset:{eoff+8}"
    d["iA"] = f"ds_read_u16 {v(IDX)}, {v(vIA)} offset:{ioff}"
    d["iB"] = f"ds_read_u16 {v(IDX+2)}, {v(vIA)} offset:{ioff+4}"
    d["gA"] = f"buffer_load_dwordx4 {v(LB[n][0]+2,4)}, {v(IDX,2)}, {s(sTAB,4)}, 0 idxen offen {GF}"
    d["gB"] = f"buffer_load_dwordx4 {v(LB[n][1]+2,4)}, {v(IDX+2,2)}, {s(sTAB,4)}, 0 idxen offen {GF}"
    for k in (0, 2):
        d[f"D{k}"] = f"v_pk_fma_f32 {v(DEN+k,2)}, {v(S+k,2)}, {v(P+k,2)}, {v(DEN+k,2)}"
        d[f"U{k}"] = f"v_pk_fma_f32 {v(NUM+k,2)}, {v(AA+k,2)}, {v(P+k,2)}, {v(NUM+k,2)}"
        d[f"p{k}"] = f"v_pk_mul_f32 {v(P+k,2)}, {v(tA+k,2)}, {v(tB+k,2)}"
        d[f"q{k}"] = f"v_pk_mul_f32 {v(AA+k,2)}, {v(hA+k,2)}, {v(tB+k,2)}"
        d[f"s{k}"] = f"v_pk_add_f32 {v(S+k,2)}, {v(tA+k,2)}, {v(tB+k,2)}"
        d[f"n{k}"] = f"v_pk_fma_f32 {v(AA+k,2)}, {v(hB+k,2)}, {v(tA+k,2)}, {v(AA+k,2)}"
        d[f"cA{k}"] = f"v_pk_add_f32 {v(tA+k,2)}, {v(tA+k,2)}, s[90:91]"
        d[f"cB{k}"] = f"v_pk_add_f32 {v(tB+k,2)}, {v(tB+k,2)}, s[90:91]"
    for k in range(4):
        d[f"xD{k}"] = f"v_fmac_f32 {v(DEN+k)}, {v(S+k)}, {v(P+k)}"
        d[f"xU{k}"] = f"v_fmac_f32 {v(NUM+k)}, {v(AA+k)}, {v(P+k)}"
        d[f"xp{k}"] = f"v_mul_f32 {v(P+k)}, {v(tA+k)}, {v(tB+k)}"
        d[f"xq{k}"] = f"v_mul_f32 {v(AA+k)}, {v(hA+k)}, {v(tB+k)}"
        d[f"xs{k}"] = f"v_add_f32 {v(S+k)}, {v(tA+k)}, {v(tB+k)}"
        d[f"xn{k}"] = f"v_fmac_f32 {v(AA+k)}, {v(hB+k)}, {v(tA+k)}"
    return d

PK = "D0 D2 U0 U2 p0 p2 q0 q2 s0 s2 n0 n2"
XK = " ".join(f"x{o}{k}" for o in "DUpqsn" for k in range(4))
CORE = "a0 MA a1 a2 MB a3 b0 HA b1 CA b2 HB b3 r0 r1 CB r2 r3 "
SCHED = {
 'v0': "a0 W E MA a1 a2 MB a3 eA eB b0 HA b1 CA b2 HB gA gB b3 iA iB r0 r1 CB r2 r3 " + PK,
 'v7': "a0 W E MA a1 a2 MB a3 b0 HA b1 CA b2 HB b3 r0 r1 CB r2 r3 gA gB eA eB iA iB " + PK,
 'v7t': "a0 W E MA a1 a2 MB a3 b0 HA b1 CA b2 HB b3 r0 r1 CB R2 r3 K gA gB L eA eB iA iB " + PK,
 'v10': "a0 W E P1 N MA a1 a2 MB a3 eA eB b0 HA b1 CA b2 HB gA gB b3 iA iB r0 r1 CB r2 r3 " + PK + " P0 N",
 'w1': "a0 W E P1 N MA a1 a2 MB a3 b0 HA b1 CA b2 HB b3 r0 r1 CB r2 r3 gA gB eA eB iA iB " + PK + " P0 N",
 'w2': "P0 W P1 E a0 MA a1 a2 MB a3 b0 HA b1 CA b2 HB b3 r0 r1 CB r2 r3 gA gB eA eB iA iB " + PK,
 'w3': "P0 W P1 E a0 MA a1 a2 MB a3 eA eB b0 HA b1 CA b2 HB gA gB b3 iA iB r0 r1 CB r2 r3 " + PK,
 'w4': "a0 P0 W P1 E MA a1 a2 MB a3 eA eB b0 HA b1 CA b2 HB gA gB b3 iA iB r0 r1 CB r2 r3 " + PK,
 'w5': "a0 W E MA a1 a2 MB a3 b0 HA b1 CA b2 HB b3 gA gB eA eB iA iB r0 r1 CB r2 r3 " + PK,
 'w6': "a0 W E MA a1 a2 MB a3 b0 HA b1 CA b2 HB b3 r0 r1 CB r2 gA gB eA eB iA iB r3 " + PK,
 'w7': "P0 W P1 E MA a0 a1 MB a2 a3 HA b0 eA eB b1 CA b2 HB gA gB b3 iA iB r0 r1 CB r2 r3 " + PK,
 'w8': "P0 W P1 E MA a0 a1 MB a2 HA a3 HB b0 gA gB eA eB iA iB b1 CA b2 b3 r0 r1 CB r2 r3 " + PK,
}
def body(A, c, ioff, eoff, sTAB, sEV, GF, sched):
    d = parts(c, ioff, eoff, sTAB, sEV, GF)
    for k in SCHED[sched].split():
        if d[k].endswith(':'): A.lab(d[k][:-1])
        else: A(d[k])
```

```python
import sys, os, struct
sys.path.insert(0, os.path.dirname(os.path.abspath(__file__)))
import hazard
import loopbody

KNAME = "standalone__edge_featured_mpnn_gatedgcn__graph_kernel"

N = 10000; NB = 125; NC = 250; BN = 80; CE = 1280
TS = 2592768
NROWS = N + NB
OFF_REC = 0x500000; RECSZ = CE * 12
OFF_G = 0x900000; GSTR = 1152
OFF_F2 = 0x950000
OFF_DIAG = 0xA00000
L_CNT1 = 0; L_ST1 = 512; L_CNT2 = 1024; L_ST2 = 1536; L_ZERO = 2048; L_MISC = 2176; L_WC = 2304
M_CTRA = L_MISC; M_CTRB = L_MISC + 4; M_MAXLEN = L_MISC + 8; M_P1 = L_MISC + 12; M_P2 = L_MISC + 16; M_G = L_MISC + 20; M_CD = L_MISC + 24; M_GI = L_MISC + 28; M_PO = L_MISC + 32; M_NONCE = L_MISC + 40; M_XI = L_MISC + 48
L_NS = 3072; NSTR = 784
L_XS = L_NS + BN * NSTR
L_W = L_XS + 20480
CAP = 3328
L_META = L_W; L_E = L_W + 13568; L_EXT = L_E + 26880; XSTR = 528
LDS_SIZE = L_EXT + 64 * XSTR
CAP_PAIRS = CAP // 2 - 4
SLOWK = 12
OFF_ACC = 0xB00000
SPIN = 1 << 22

def f2u(x): return struct.unpack('<I', struct.pack('<f', x))[0]
NL2E = f2u(-1.4426950408889634)
SHIFT = 60
EPS = f2u(1e-6 * 2.0 ** SHIFT)
CBF = (127 - SHIFT) << 7

def v(a, n=1): return f"v{a}" if n == 1 else f"v[{a}:{a+n-1}]"
def s(a, n=1): return f"s{a}" if n == 1 else f"s[{a}:{a+n-1}]"

sX, sE, sSRC, sDST, sWA, sWB, sWC, sWU, sWV, sOUT, sDBG, sWS = 4, 6, 8, 10, 12, 14, 16, 18, 20, 22, 24, 26
sWAVE, sBKT, sSL, sT0 = 28, 29, 30, 31
sSRD = 32
sTAB = 36
sNON = 40
sRT = 42
sMK = 44
sT1, sT2, sT3, sT4 = 60, 61, 62, 63
sEX = 64
sP0 = 66
sP1 = 68
sLO, sMODE, sMAXL, sTP, sL, sS, sEV, sLM = 70, 71, 72, 73, 74, 75, 76, 77
sWM = 78
sP1M = 80
sJ = 82
sSPIN = 85
sEND = 3
sST = 86
sDONE = 42
sK = 63
sNPOLL = 8
sPFM = 10
sF2M = 6


class G:
    def __init__(self, diag=0):
        self.L = []
        self.diag = diag
        self.nst = 0
    def __call__(self, t): self.L.append("    " + t)
    def lab(self, t): self.L.append(t + ":")
    def c(self, t): self.L.append("    ; " + t)
    def raw(self, t): self.L.append(t)
    def stamp(self, name):
        if self.diag and name in self.st:
            self(f"s_memrealtime {s(sST + 2 * self.st[name], 2)}")
        if self.diag and 'c' + name in self.st:
            self(f"s_memtime {s(sST + 2 * self.st['c' + name], 2)}")


def wave_scan(A, r):
    for sh in (1, 2, 4, 8):
        A("s_nop 1")
        A(f"v_add_u32_dpp {v(r)}, {v(r)}, {v(r)} row_shr:{sh} row_mask:0xf bank_mask:0xf")
    A("s_nop 1")
    A(f"v_add_u32_dpp {v(r)}, {v(r)}, {v(r)} row_bcast:15 row_mask:0xa bank_mask:0xf")
    A("s_nop 1")
    A(f"v_add_u32_dpp {v(r)}, {v(r)}, {v(r)} row_bcast:31 row_mask:0xc bank_mask:0xf")


def lds_signal(A, vz, vone, off):
    A("s_mov_b64 exec, 1")
    A(f"ds_add_u32 {v(vz)}, {v(vone)} offset:{off}")
    A("s_mov_b64 exec, -1")


def lds_wait(A, vz, vt, off, target, tag, sleep=0):
    A.lab(f"L_lw_{tag}")
    if sleep: A(f"s_sleep {sleep}")
    A(f"ds_read_b32 {v(vt)}, {v(vz)} offset:{off}")
    A("s_waitcnt lgkmcnt(0)")
    A(f"v_readfirstlane_b32 s3, {v(vt)}")
    A(f"s_cmp_ge_u32 s3, {target}")
    A(f"s_cbranch_scc0 L_lw_{tag}")


def lds_sync(A, vz, vone, vt, off, n, tag):
    A("s_mov_b64 exec, 1")
    A(f"ds_add_rtn_u32 {v(vt)}, {v(vz)}, {v(vone)} offset:{off}")
    A("s_mov_b64 exec, -1")
    A("s_waitcnt lgkmcnt(0)")
    A(f"v_readfirstlane_b32 s3, {v(vt)}")
    A(f"s_cmp_eq_u32 s3, {n-1}")
    A(f"s_cbranch_scc1 L_ls_{tag}")
    lds_wait(A, vz, vt, off, n, tag)
    A.lab(f"L_ls_{tag}")


def nonce_get(A, vz, vn, tag):
    A(f"s_mov_b32 {s(sSPIN)}, {SPIN}")
    A.lab(f"L_nn_{tag}")
    A(f"v_readfirstlane_b32 {s(sNON)}, {v(vn)}")
    A(f"v_readfirstlane_b32 {s(sNON+1)}, {v(vn+1)}")
    A(f"s_cmp_lg_u32 {s(sNON)}, 0")
    A(f"s_cbranch_scc1 L_nd_{tag}")
    A(f"s_sub_u32 {s(sSPIN)}, {s(sSPIN)}, 1")
    A(f"s_cbranch_scc1 L_nd_{tag}")
    A("s_sleep 2")
    A(f"global_load_dwordx2 {v(vn,2)}, {v(vz)}, {s(sDBG,2)} sc1")
    A("s_waitcnt vmcnt(0)")
    A(f"s_branch L_nn_{tag}")
    A.lab(f"L_nd_{tag}")


def nonce_lds(A, vz, vn, tag):
    A.lab(f"L_nl_{tag}")
    A(f"ds_read_b64 {v(vn,2)}, {v(vz)} offset:{M_NONCE}")
    A("s_waitcnt lgkmcnt(0)")
    A(f"v_readfirstlane_b32 {s(sNON)}, {v(vn)}")
    A(f"v_readfirstlane_b32 {s(sNON+1)}, {v(vn+1)}")
    A(f"s_cmp_lg_u32 {s(sNON)}, 0")
    A(f"s_cbranch_scc0 L_nl_{tag}")


def add64(A, d, a, off):
    A(f"s_add_u32 {s(d)}, {s(a)}, {off}")
    A(f"s_addc_u32 {s(d+1)}, {s(a+1)}, 0")


def build(diag=0, **OPT):
    A = G(diag)
    A.st = {}
    for k, grp in enumerate(OPT.get('st', 'pDst|gB3 pOut|gMM ph2 polled recs B6 loopend').split()):
        for n in grp.split('|'): A.st[n] = k + 1
    GF = OPT.get('gf', 'sc1')
    EF = OPT.get('ef', 'nt'); XF_ = OPT.get('xf', 'nt'); WF = OPT.get('wf', ''); SF = OPT.get('sf', 'sc1')
    vL = 1
    vONE = 2
    vZ = 4
    A(f"s_cmp_ge_u32 s2, {NC}")
    A("s_cbranch_scc1 L_end")
    A("s_load_dwordx16 s[4:19], s[0:1], 0")
    A("s_load_dwordx8 s[20:27], s[0:1], 64")
    A(f"s_memrealtime {s(sRT,2)}")
    if diag: A(f"s_memtime {s(sST,2)}")
    A("v_lshrrev_b32 v3, 6, v0")
    A(f"v_and_b32 {v(vL)}, 63, v0")
    A(f"v_readfirstlane_b32 {s(sWAVE)}, v3")
    A(f"v_mov_b32 {v(vONE)}, 1")
    for i in range(4): A(f"v_mov_b32 {v(vZ+i)}, 0")
    A.c("workgroups that share an XCD under round-robin placement get one slice and adjacent buckets")
    A(f"s_and_b32 {s(sSL)}, s2, 1")
    A(f"s_bfe_u32 {s(sT0)}, s2, 0x20001")
    A(f"s_mul_i32 {s(sT1)}, {s(sT0)}, 31")
    A(f"s_min_u32 {s(sT0)}, {s(sT0)}, 1")
    A(f"s_lshr_b32 {s(sBKT)}, s2, 3")
    A(f"s_add_u32 {s(sBKT)}, {s(sBKT)}, {s(sT0)}")
    A(f"s_add_u32 {s(sBKT)}, {s(sBKT)}, {s(sT1)}")
    A(f"s_cmp_lt_u32 {s(sWAVE)}, 5")
    A("s_cbranch_scc0 L_roleG")

    vD, vS, vE, vBA, vR = 8, 12, 16, 24, 28
    vCA, vSUM, vINC, vSTA = 34, 36, 37, 38
    A.c("role P: zero the small LDS area")
    A("s_setprio 3")
    A("v_lshlrev_b32 v3, 4, v0")
    A(f"v_cmp_gt_u32 vcc, {L_WC//16}, v0")
    A(f"s_and_saveexec_b64 {s(sEX,2)}, vcc")
    A(f"ds_write_b128 v3, {v(vZ,4)}")
    A(f"s_mov_b64 exec, {s(sEX,2)}")
    A(f"s_mul_i32 s3, s2, {CE*4}")
    A("v_lshlrev_b32 v62, 5, v0")
    A("s_waitcnt lgkmcnt(0)")
    if OPT.get('wsoff'): add64(A, sWS, sWS, OPT['wsoff'] << 20)
    add64(A, sDST, sDST, "s3")
    A(f"global_load_dwordx4 {v(vD,4)}, v3, {s(sDST,2)} {EF}")
    TF = OPT.get('tfirst', 0)
    def se_loads():
        A(f"global_load_dwordx4 {v(vS,4)}, v3, {s(sSRC,2)} {EF}")
        A(f"global_load_dwordx4 {v(vE,4)}, v62, {s(sE,2)} {EF}")
        A(f"global_load_dwordx4 {v(vE+4,4)}, v62, {s(sE,2)} offset:16 {EF}")
    add64(A, sSRC, sSRC, "s3")
    A("s_lshl_b32 s3, s3, 1")
    add64(A, sE, sE, "s3")
    if not TF: se_loads()
    A("s_barrier")
    A(f"s_mov_b32 {s(sT0)}, -{BN}")
    A(f"s_mov_b32 {s(sT1)}, {L_NS}")
    A(f"s_mul_i32 s3, s2, {RECSZ}")
    A(f"s_add_u32 s3, s3, {OFF_REC}")
    add64(A, sP0, sWS, "s3")
    A(f"v_lshlrev_b32 v33, 3, {v(vL)}")
    A(f"s_mul_i32 s3, {s(sWAVE)}, 3072")
    A(f"v_lshl_add_u32 v56, {v(vL)}, 4, s3")
    A(f"v_add_u32 v57, {L_NS}, v56")
    A(f"s_waitcnt vmcnt({0 if TF else 3})")
    A.stamp('pDst')
    for k in range(4): A(f"v_mul_u32_u24 {v(40+k)}, 52429, {v(vD+k)}")
    for k in range(4): A(f"v_lshrrev_b32 {v(40+k)}, 22, {v(40+k)}")
    for k in range(4):
        A(f"v_lshlrev_b32 {v(vBA+k)}, 2, {v(40+k)}")
        A(f"ds_add_rtn_u32 {v(vR+k)}, {v(vBA+k)}, {v(vONE)} offset:{L_CNT1}")
    for k in range(4): A(f"v_mad_i32_i24 {v(vD+k)}, {v(40+k)}, {s(sT0)}, {v(vD+k)}")
    A("s_waitcnt lgkmcnt(0)")
    if TF:
        lds_wait(A, vZ, 32, M_GI, 7, "gi")
        se_loads()
    A.stamp('pAt')
    lds_sync(A, vZ, vONE, 32, M_P1, 5, "p1")
    A.stamp('pB1')
    A(f"ds_read_b64 {v(vCA,2)}, v33 offset:{L_CNT1}")
    A("s_waitcnt lgkmcnt(0)")
    A(f"v_add_u32 {v(vSUM)}, {v(vCA)}, {v(vCA+1)}")
    A(f"v_add_u32 {v(vINC)}, {v(vCA)}, {v(vCA+1)}")
    wave_scan(A, vINC)
    A(f"v_sub_u32 {v(vSTA)}, {v(vINC)}, {v(vSUM)}")
    A(f"v_add_u32 {v(vSTA+1)}, {v(vSTA)}, {v(vCA)}")
    A(f"ds_write_b64 v33, {v(vSTA,2)} offset:{L_ST1}")
    for k in range(4):
        A(f"ds_read_b32 {v(40+k)}, {v(vBA+k)} offset:{L_ST1}")
    A("s_waitcnt vmcnt(0)")
    for k in range(4):
        A(f"v_lshl_or_b32 {v(vS+k)}, {v(vD+k)}, 16, {v(vS+k)}")
    for k in range(4):
        A(f"s_waitcnt lgkmcnt({3-k})" if k == 0 else f"s_waitcnt lgkmcnt({3-k+2*k})")
        A(f"v_add_u32 {v(40+k)}, {v(40+k)}, {v(vR+k)}")
        A(f"v_mad_u32_u24 {v(40+k)}, {v(40+k)}, 12, {s(sT1)}")
        A(f"ds_write2_b32 {v(40+k)}, {v(vE+2*k)}, {v(vE+2*k+1)} offset0:0 offset1:1")
        A(f"ds_write_b32 {v(40+k)}, {v(vS+k)} offset:8")
    A("s_waitcnt lgkmcnt(0)")
    A.stamp('pSc')
    lds_sync(A, vZ, vONE, 32, M_P2, 5, "p2")
    A.stamp('pB2')
    for k in range(3):
        A(f"ds_read_b128 {v(44+4*k,4)}, v57 offset:{1024*k}")
    for k in range(3):
        A(f"s_waitcnt lgkmcnt({2-k})")
        A(f"global_store_dwordx4 v56, {v(44+4*k,4)}, {s(sP0,2)} offset:{1024*k} {SF}")
    A("s_mov_b64 exec, 1")
    A(f"ds_add_u32 {v(vZ)}, {v(vONE)} offset:{M_CD}")
    A(f"ds_add_u32 {v(vZ)}, {v(vONE)} offset:{M_PO}")
    A("s_mov_b64 exec, -1")
    A.stamp('pOut')
    A(f"s_mul_i32 s3, s2, {GSTR}")
    A(f"s_add_u32 s3, s3, {OFF_G}")
    add64(A, sP0, sWS, "s3")
    A(f"v_lshl_or_b32 v58, {v(vCA)}, 11, {v(vSTA)}")
    A(f"v_lshl_or_b32 v60, {v(vCA+1)}, 11, {v(vSTA+1)}")
    A(f"v_lshlrev_b32 v56, 4, {v(vL)}")
    nonce_lds(A, vZ, 40, "p")
    A(f"v_or_b32 v58, {s(sNON+1)}, v58")
    A(f"v_or_b32 v60, {s(sNON+1)}, v60")
    A(f"v_mov_b32 v59, {s(sNON)}")
    A(f"v_mov_b32 v61, {s(sNON)}")
    A("s_mov_b64 exec, 1")
    A("s_waitcnt vmcnt(0)")
    A.stamp('pDrain')
    A(f"ds_add_rtn_u32 v42, {v(vZ)}, {v(vONE)} offset:{M_CTRA}")
    A("s_mov_b64 exec, -1")
    A("s_waitcnt lgkmcnt(0)")
    A("v_readfirstlane_b32 s3, v42")
    A("s_cmp_eq_u32 s3, 4")
    A("s_cbranch_scc0 L_p_done")
    if OPT.get('prew', 1): lds_wait(A, vZ, 42, M_CD, 10, "pw")
    A(f"global_store_dwordx4 v56, v[58:61], {s(sP0,2)} sc1")
    A.stamp('pPub')
    A.lab("L_p_done")
    A("s_setprio 0")
    A("s_branch L_phase2")

    A.lab("L_roleG")
    vB15, vG4 = 8, 9
    A(f"v_and_b32 {v(vB15)}, 15, {v(vL)}")
    A(f"v_lshrrev_b32 {v(vG4)}, 4, {v(vL)}")
    A.c("x DMA lane offset: r*256 + ((j^r)*16)")
    A(f"v_xor_b32 v10, {v(vB15)}, {v(vG4)}")
    A("v_lshlrev_b32 v10, 4, v10")
    A(f"v_lshl_add_u32 v10, {v(vG4)}, 8, v10")
    A.c("W DMA lane offset: r8*256 + ((j^(2*((r8>>1)&1)))*16) + slice*128")
    A(f"v_lshrrev_b32 v11, 3, {v(vL)}")
    A(f"v_and_b32 v12, 7, {v(vL)}")
    A("v_and_b32 v13, 2, v11")
    A("v_xor_b32 v12, v12, v13")
    A("v_lshlrev_b32 v12, 4, v12")
    A("v_lshl_add_u32 v12, v11, 8, v12")
    A(f"s_lshl_b32 s3, {s(sSL)}, 7")
    A("v_add_u32 v12, s3, v12")
    A(f"s_lshr_b32 {s(sK)}, s2, 3")
    A(f"s_and_b32 {s(sT0)}, {s(sK)}, 1")
    A(f"s_lshl_b32 {s(sT0)}, {s(sT0)}, 6")
    A(f"v_xor_b32 v12, {s(sT0)}, v12")
    A("v_xor_b32 v13, 64, v12")
    A(f"s_mov_b32 {s(sSRD+3)}, 0x20000")
    A(f"s_xor_b32 {s(sT0)}, {s(sWAVE)}, 15")
    A(f"s_or_b32 {s(sT0)}, {s(sT0)}, s2")
    A("s_waitcnt lgkmcnt(0)")
    if OPT.get('wsoff'):
        A(f"s_cselect_b32 {s(sT1)}, 1, 0")
        add64(A, sWS, sWS, OPT['wsoff'] << 20)
        A(f"s_cmp_lg_u32 {s(sT1)}, 0")
    A("s_cbranch_scc1 L_g_nn")
    A.c("workgroup 0 publishes the launch nonce in d_debug")
    A(f"s_or_b32 {s(sT0)}, {s(sRT)}, 1")
    A(f"s_lshl_b32 {s(sT1)}, {s(sRT+1)}, 22")
    A(f"v_mov_b32 v14, {s(sT0)}")
    A(f"v_mov_b32 v15, {s(sT1)}")
    A("s_mov_b64 exec, 1")
    A(f"global_store_dwordx2 {v(vZ)}, v[14:15], {s(sDBG,2)} sc1")
    A("s_mov_b64 exec, -1")
    A.lab("L_g_nn")
    if OPT.get('prew', 1):
        A.c("bring this workgroup's hand-off lines on chip (with no valid tag) long before anyone polls them")
        A(f"s_cmp_eq_u32 {s(sWAVE)}, 5")
        A("s_cbranch_scc0 L_g_nopw")
        A(f"s_mul_i32 {s(sT0)}, s2, {GSTR}")
        A(f"s_add_u32 {s(sT0)}, {s(sT0)}, {OFF_G}")
        A(f"v_lshl_add_u32 v16, {v(vL)}, 4, {s(sT0)}")
        A(f"global_store_dwordx4 v16, {v(vZ,4)}, {s(sWS,2)} sc1")
        A(f"s_mul_i32 {s(sT0)}, {s(sSL)}, {NB*128}")
        A(f"s_lshl_b32 {s(sT1)}, {s(sBKT)}, 7")
        A(f"s_add_u32 {s(sT0)}, {s(sT0)}, {s(sT1)}")
        A(f"s_add_u32 {s(sT0)}, {s(sT0)}, {OFF_F2}")
        A(f"v_lshl_add_u32 v16, {v(vL)}, 4, {s(sT0)}")
        A("s_mov_b64 exec, 0xff")
        A(f"global_store_dwordx4 v16, {v(vZ,4)}, {s(sWS,2)} sc1")
        A("s_mov_b64 exec, -1")
        A.lab("L_g_nopw")
    if OPT.get('wpf', 1):
        A(f"s_cmp_eq_u32 {s(sWAVE)}, 14")
        A("s_cbranch_scc0 L_g_nowpf")
        A.c("16 of the 512 weight lines of this slice per workgroup: row = 4k + (l&3), matrix = (l>>2)&3")
        A(f"s_and_b32 {s(sT0)}, {s(sK)}, 31")
        A(f"s_lshl_b32 {s(sT0)}, {s(sT0)}, 10")
        A(f"s_add_u32 {s(sT0)}, {s(sT0)}, s3")
        A(f"v_and_b32 v16, 3, {v(vL)}")
        A(f"v_lshl_add_u32 v16, v16, 8, {s(sT0)}")
        for m, p in enumerate((sWB, sWV, sWA, sWU)):
            A(f"s_mov_b64 exec, {hex(15 << (4*m))}")
            A(f"global_load_dword v17, v16, {s(p,2)}")
        A("s_mov_b64 exec, -1")
        A.lab("L_g_nowpf")
    A("s_barrier")
    A(f"s_cmp_ge_u32 {s(sWAVE)}, 10")
    A("s_cbranch_scc1 L_g_wdma")
    A(f"s_cmp_eq_u32 {s(sWAVE)}, 6")
    A("s_cbranch_scc0 L_g_not6")
    A.c("wave 6: w_c columns of this slice")
    A(f"v_lshl_add_u32 v14, {v(vL)}, 1, s3")
    for j in range(4):
        A(f"global_load_ushort {v(90+j)}, v14, {s(sWC,2)} offset:{256*j}")
    A.lab("L_g_not6")
    A(f"s_cmp_eq_u32 {s(sWAVE)}, 7")
    A("s_cbranch_scc0 L_g_xdma")
    A.c("wave 7: this workgroup's null table row, and pull the code into L2")
    A(f"s_mul_i32 {s(sT0)}, {s(sSL)}, {TS}")
    A(f"s_lshl_b32 {s(sT1)}, {s(sBKT)}, 8")
    A(f"s_add_u32 {s(sT0)}, {s(sT0)}, {s(sT1)}")
    A(f"s_add_u32 {s(sT0)}, {s(sT0)}, {N*256}")
    add64(A, sP0, sWS, s(sT0))
    A("v_mov_b32 v16, 0x50005000")
    A("v_mov_b32 v17, 0x50005000")
    A("v_mov_b32 v18, 0")
    A("v_mov_b32 v19, 0")
    A(f"v_lshlrev_b32 v14, 4, {v(vL)}")
    A("s_mov_b64 exec, 0xffff")
    A(f"global_store_dwordx4 v14, v[16:19], {s(sP0,2)} sc1")
    A("s_mov_b64 exec, -1")
    A(f"s_getpc_b64 {s(sP1,2)}")
    A.lab("L_pc")
    A(f"v_lshlrev_b32 v14, 7, {v(vL)}")
    A("v_min_u32 v14, L_end-L_pc, v14")
    A(f"global_load_dword v15, v14, {s(sP1,2)}")
    A.lab("L_g_xdma")
    if OPT.get('gx', 0): lds_wait(A, vZ, 11, M_P1, OPT.get('gx', 0), "gx", 1)
    A(f"s_mov_b32 {s(sSRD)}, {s(sX)}")
    A(f"s_mov_b32 {s(sSRD+1)}, {s(sX+1)}")
    A(f"s_mov_b32 {s(sSRD+2)}, {N*256}")
    A(f"s_sub_u32 {s(sT0)}, {s(sWAVE)}, 5")
    A(f"s_lshl_b32 {s(sT0)}, {s(sT0)}, 12")
    A(f"s_mul_i32 {s(sT1)}, {s(sBKT)}, {BN*256}")
    A(f"s_add_u32 {s(sT1)}, {s(sT1)}, {s(sT0)}")
    A(f"s_add_u32 m0, {s(sT0)}, {L_XS}")
    for u in range(4):
        if u:
            A(f"v_xor_b32 v14, {u<<6}, v10")
            A(f"s_add_u32 {s(sT1)}, {s(sT1)}, 1024")
            A("s_add_u32 m0, m0, 1024")
        A("s_nop 0")
        A(f"buffer_load_dwordx4 {'v14' if u else 'v10'}, {s(sSRD,4)}, {s(sT1)} offen {XF_} lds")
    lds_signal(A, vZ, vONE, M_XI)
    A(f"s_cmp_lt_u32 {s(sWAVE)}, 8")
    A("s_cbranch_scc1 L_g_b0")
    A.lab("L_g_wdma")
    A.c("W staging: waves 8..15, matrix (w-8)>>1 in order w_b, w_v, w_a, w_u")
    A(f"s_cmp_ge_u32 {s(sWAVE)}, 10")
    A(f"s_cselect_b64 {s(sSRD,2)}, {s(sWV,2)}, {s(sWB,2)}")
    A(f"s_cmp_ge_u32 {s(sWAVE)}, 12")
    A(f"s_cselect_b64 {s(sSRD,2)}, {s(sWA,2)}, {s(sSRD,2)}")
    A(f"s_cmp_ge_u32 {s(sWAVE)}, 14")
    A(f"s_cselect_b64 {s(sSRD,2)}, {s(sWU,2)}, {s(sSRD,2)}")
    A(f"s_mov_b32 {s(sSRD+2)}, 32768")
    A(f"s_sub_u32 {s(sT0)}, {s(sWAVE)}, 8")
    A(f"s_lshl_b32 {s(sT0)}, {s(sT0)}, 13")
    A(f"s_add_u32 {s(sT0)}, {s(sT0)}, {L_W}")
    A(f"s_and_b32 {s(sT1)}, {s(sWAVE)}, 1")
    A(f"s_lshl_b32 {s(sT1)}, {s(sT1)}, 14")
    A(f"s_cmp_eq_u32 {s(sWAVE)}, 15")
    A("s_cbranch_scc0 L_g_non")
    lds_wait(A, vZ, 11, M_P1, 5, "n15", 1)
    A(f"global_load_dwordx2 v[14:15], {v(vZ)}, {s(sDBG,2)} sc1")
    A("s_waitcnt vmcnt(0)")
    nonce_get(A, vZ, 14, "w")
    A("v_or_b32 v14, 1, v14")
    A(f"ds_write_b64 {v(vZ)}, v[14:15] offset:{M_NONCE}")
    A.lab("L_g_non")
    if OPT.get('gw', 6) == 1: lds_wait(A, vZ, 11, M_CD, 5, "gw", 1)
    if OPT.get('gw', 6) == 2:
        A(f"s_cmp_lt_u32 {s(sWAVE)}, 12")
        A("s_cbranch_scc1 L_gw2")
        lds_wait(A, vZ, 11, M_PO, 5, "gw", 1)
        A.lab("L_gw2")
    if OPT.get('gw', 6) in (5, 6):
        A(f"s_cmp_lt_u32 {s(sWAVE)}, 12")
        A("s_cbranch_scc1 L_gw5")
        if OPT.get('gw', 6) == 5: lds_wait(A, vZ, 11, M_GI, 7, "gwa", 1)
        else: lds_wait(A, vZ, 11, M_PO, 5, "gwa", 1)
        A.lab("L_gw5")
        lds_wait(A, vZ, 11, M_XI, 5, "gwb", 1)
    if OPT.get('gw', 6) == 3: lds_wait(A, vZ, 11, M_P2, 1, "gw", 1)
    if OPT.get('gw', 6) == 4: lds_wait(A, vZ, 11, M_P1, 5, "gw", 1)
    A.c("each workgroup starts at a different row block so an XCD fetches all of W at once")
    for u in range(8):
        A(f"s_and_b32 {s(sK)}, {s(sK)}, 7")
        A(f"s_lshl_b32 {s(sT2)}, {s(sK)}, 10")
        A(f"s_add_u32 m0, {s(sT0)}, {s(sT2)}")
        A(f"s_lshl1_add_u32 {s(sT2)}, {s(sT2)}, {s(sT1)}")
        A(f"buffer_load_dwordx4 {'v13' if u&1 else 'v12'}, {s(sSRD,4)}, {s(sT2)} offen {WF} lds")
        A.stamp(f'w{u}')
        if u < 7 and not OPT.get('norot2'): A(f"s_add_u32 {s(sK)}, {s(sK)}, 1")
    A.lab("L_g_b0")
    A(f"s_cmp_lt_u32 {s(sWAVE)}, 12")
    A("s_cbranch_scc0 L_g_nogi")
    lds_signal(A, vZ, vONE, M_GI)
    A.lab("L_g_nogi")
    A.c("GEMM addresses while the loads fly")
    vA, vACC, vBR, vTA = 16, 32, 64, 84
    NR = 5
    A(f"s_cmp_ge_u32 {s(sWAVE)}, 10")
    A(f"s_cselect_b32 {s(sT2)}, 10, 5")
    A(f"s_cselect_b32 {s(sT3)}, 32768, 0")
    A(f"s_add_u32 {s(sT3)}, {s(sT3)}, {L_W}")
    A(f"s_sub_u32 {s(sT2)}, {s(sWAVE)}, {s(sT2)}")
    A(f"s_lshl_b32 {s(sT4)}, {s(sT2)}, 12")
    A(f"s_add_u32 {s(sT4)}, {s(sT4)}, {L_XS}")
    A(f"v_xor_b32 v10, {v(vB15)}, {v(vG4)}")
    A("v_lshlrev_b32 v10, 4, v10")
    A(f"v_lshl_add_u32 v10, {v(vB15)}, 8, v10")
    A(f"v_bfe_u32 v11, {v(vL)}, 2, 2")
    A(f"v_lshl_add_u32 v12, {v(vG4)}, 3, v11")
    A("v_lshlrev_b32 v12, 7, v12")
    A(f"v_and_b32 v13, 3, {v(vL)}")
    A("v_lshl_add_u32 v12, v13, 3, v12")
    A(f"v_add_u32 v12, {s(sT3)}, v12")
    A("v_lshrrev_b32 v11, 1, v11")
    A(f"v_and_b32 v13, 1, {v(vG4)}")
    A("v_lshl_or_b32 v11, v13, 1, v11")
    for i in range(4):
        A(f"v_xor_b32 v13, {i}, v11")
        A(f"v_lshl_add_u32 {v(vTA+i)}, v13, 5, v12")
    A.stamp('gIss')
    A("s_waitcnt vmcnt(0)")
    A.stamp('gX')
    A(f"s_cmp_ge_u32 {s(sWAVE)}, 12")
    A(f"s_cselect_b32 s3, 0x10000, 1")
    A("v_mov_b32 v11, s3")
    lds_signal(A, vZ, 11, M_G)
    A(f"s_cmp_eq_u32 {s(sWAVE)}, 15")
    A("s_cbranch_scc1 L_phase2")

    A(f"s_cmp_eq_u32 {s(sWAVE)}, 6")
    A("s_cbranch_scc0 L_g_not6b")
    A.c("wave 6: wc' = bf16(-log2e * w_c) -> LDS")
    for j in range(4):
        A(f"v_lshlrev_b32 {v(90+j)}, 16, {v(90+j)}")
    for j in range(4):
        A(f"v_mul_f32 {v(90+j)}, {hex(NL2E)}, {v(90+j)}")
    A("v_cvt_pk_bf16_f32 v90, v90, v91")
    A("v_cvt_pk_bf16_f32 v91, v92, v93")
    A(f"v_lshlrev_b32 v92, 3, {v(vL)}")
    A(f"ds_write_b64 v92, v[90:91] offset:{L_WC}")
    A.lab("L_g_not6b")
    for ks in range(4):
        A(f"v_xor_b32 {v(88+ks)}, {ks<<6}, v10")
        A(f"v_add_u32 {v(88+ks)}, {s(sT4)}, {v(88+ks)}")
    A(f"s_cmp_ge_u32 {s(sWAVE)}, 10")
    A(f"s_cselect_b32 {s(sP0+1)}, -1, 0xffff")
    A(f"s_cselect_b32 {s(sP0)}, 0x40007, 7")
    A.lab("L_lw_g")
    A(f"ds_read_b32 v11, {v(vZ)} offset:{M_G}")
    A("s_waitcnt lgkmcnt(0)")
    A("v_readfirstlane_b32 s3, v11")
    A(f"s_and_b32 s3, s3, {s(sP0+1)}")
    A(f"s_cmp_eq_u32 s3, {s(sP0)}")
    A("s_cbranch_scc0 L_lw_g")
    A.stamp('gB3')
    for ks in range(4):
        A(f"ds_read_b128 {v(vA+4*ks,4)}, {v(88+ks)}")
    def rd(n):
        ks, q = n >> 3, n & 7
        b = vBR + 4 * (n % NR)
        off = ks * 4096 + (q >> 2) * 16384
        A(f"ds_read_b64_tr_b16 {v(b,2)}, {v(vTA+(q&3))} offset:{off}")
        A(f"ds_read_b64_tr_b16 {v(b+2,2)}, {v(vTA+(q&3))} offset:{off+512}")
    for n in range(NR): rd(n)
    A(f"s_cmp_ge_u32 {s(sWAVE)}, 10")
    A("s_cbranch_scc1 L_g_mm")
    A("s_setprio 2")
    A(f"s_waitcnt lgkmcnt({2*NR})")
    lds_signal(A, vZ, vONE, M_CD)
    A.lab("L_g_mm")
    for n in range(32):
        ks, q = n >> 3, n & 7
        left = min(NR - 1, 31 - n)
        A(f"s_waitcnt lgkmcnt({2*left})")
        b = vBR + 4 * (n % NR)
        c = "0" if ks == 0 else v(vACC + 4 * q, 4)
        A(f"v_mfma_f32_16x16x32_bf16 {v(vACC+4*q,4)}, {v(vA+4*ks,4)}, {v(b,4)}, {c}")
        if n + NR < 32: rd(n + NR)
    A.stamp('gMM')
    A(f"s_mov_b32 {s(sP1)}, {hex(NL2E)}")
    A(f"s_cmp_ge_u32 {s(sWAVE)}, 10")
    A("s_cbranch_scc1 L_g_xa")

    A.c("table rows: [XB' x4 | HV x4] per channel group")
    A(f"s_mul_i32 {s(sT0)}, {s(sSL)}, {TS}")
    A(f"s_mul_i32 {s(sT1)}, {s(sBKT)}, {BN*256}")
    A(f"s_add_u32 {s(sT0)}, {s(sT0)}, {s(sT1)}")
    A(f"s_lshl_b32 {s(sT1)}, {s(sT2)}, 12")
    A(f"s_add_u32 {s(sT0)}, {s(sT0)}, {s(sT1)}")
    add64(A, sP0, sWS, s(sT0))
    A(f"v_lshlrev_b32 v10, 4, {v(vB15)}")
    A(f"v_lshl_add_u32 v10, {v(vG4)}, 10, v10")
    for ip in range(4):
        o = vBR + 4 * ip
        for q in range(4):
            A(f"v_mul_f32 {v(vACC+4*q+ip)}, {s(sP1)}, {v(vACC+4*q+ip)}")
        for d in (2, 3, 0, 1):
            A(f"v_cvt_pk_bf16_f32 {v(o+d)}, {v(vACC+8*d+ip)}, {v(vACC+8*d+4+ip)}")
        A(f"global_store_dwordx4 v10, {v(o,4)}, {s(sP0,2)} offset:{256*ip} {SF}")
    A("s_setprio 0")
    A("s_branch L_phase2")
    A.lab("L_g_xa")
    lds_wait(A, vZ, 11, M_CD, 10, "cd")
    A.c("xa' = -log2e*(x@w_a) - SHIFT into the node structs, xu into the x stage (swizzled)")
    A(f"s_mul_i32 {s(sT0)}, {s(sT2)}, {16*NSTR}")
    A(f"s_add_u32 {s(sT0)}, {s(sT0)}, {L_NS}")
    A(f"v_mul_u32_u24 v10, {4*NSTR}, {v(vG4)}")
    A(f"v_mad_u32_u24 v10, {v(vB15)}, 48, v10")
    A(f"v_add_u32 v10, {s(sT0)}, v10")
    A(f"v_mov_b32 v11, {hex(f2u(-float(SHIFT)))}")
    A(f"v_lshlrev_b32 v12, 2, {v(vB15)}")
    A(f"v_lshl_add_u32 v12, {v(vG4)}, 10, v12")
    A(f"v_add_u32 v12, {s(sT4)}, v12")
    for ip in range(4):
        o = vBR + 4 * ip
        for i in range(4):
            A(f"v_fma_f32 {v(o+i)}, {v(vACC+4*i+ip)}, {s(sP1)}, v11")
        A(f"ds_write_b128 v10, {v(o,4)} offset:{NSTR*ip}")
    A(f"v_mul_u32_u24 v11, {NSTR}, {v(vB15)}")
    A(f"v_add_u32 v11, {s(sT0)}, v11")
    A(f"ds_write_b64 v11, {v(vZ,2)} offset:768")
    for ip in range(4):
        if ip: A(f"v_xor_b32 v13, {ip<<4}, v12")
        a = "v13" if ip else "v12"
        for i in (0, 2):
            A(f"ds_write2_b32 {a}, {v(vACC+16+4*i+ip)}, {v(vACC+20+4*i+ip)} offset0:{64*ip+16*i} offset1:{64*ip+16*i+16}")

    A.lab("L_phase2")
    A.stamp('ph2')
    T = [[8, 12], [16, 20]]; H = [[24, 28], [32, 36]]
    P, S, AA, DEN, NUM, XA = 40, 44, 48, 52, 56, 60
    LB = [[64, 70], [76, 82]]
    AE = [88, 92]; IDX = 96; IDM = 100; CB = 102
    vIA, vEA, vEI, vPTR, vZA, vEVB = 104, 105, 106, 107, 108, 109
    vB15, vG4, vGW, vGA, vRB = 110, 111, 112, 114, 115
    vX = 116
    vEIGHT = 3
    vOUT, vDN, vXU, vXL, vNSA, vXA_, vSID = 120, 121, 122, 123, 124, 125, 126
    RB = lambda j: 8 + 4 * j
    vCI = 40
    A(f"v_and_b32 {v(vB15)}, 15, {v(vL)}")
    A(f"v_lshrrev_b32 {v(vG4)}, 4, {v(vL)}")
    A.c("granule of chunk c = 16w + 4(l&15) + (l>>4), lanes with (l&15) < 4")
    A(f"v_lshl_add_u32 v3, {v(vB15)}, 2, {v(vG4)}")
    A(f"s_lshl_b32 s3, {s(sWAVE)}, 4")
    A("v_add_u32 v3, s3, v3")
    A(f"v_cmp_gt_u32 vcc, {NC}, v3")
    A(f"s_mov_b32 {s(sEX)}, 0x000f000f")
    A(f"s_mov_b32 {s(sEX+1)}, 0x000f000f")
    A(f"s_and_b64 {s(sEX,2)}, {s(sEX,2)}, vcc")
    A(f"v_mul_u32_u24 {v(vGA)}, {GSTR}, v3")
    A(f"s_lshl_b32 {s(sT0)}, {s(sBKT)}, 3")
    A(f"s_add_u32 {s(sT0)}, {s(sT0)}, {OFF_G}")
    A(f"v_add_u32 {v(vGA)}, {s(sT0)}, {v(vGA)}")
    A(f"v_mov_b32 {v(vGW)}, 0")
    A.c("constants for the edge loop")
    A(f"v_add_u32 v3, s3, {v(vG4)}")
    A(f"v_mul_u32_u24 {v(vRB)}, {RECSZ}, v3")
    A(f"v_mad_u32_u24 {v(vRB)}, {v(vB15)}, 12, {v(vRB)}")
    add64(A, sSRD, sWS, OFF_REC)
    A(f"s_mov_b32 {s(sSRD+2)}, {NC*RECSZ}")
    A(f"s_mov_b32 {s(sSRD+3)}, 0x20000")
    A(f"s_mul_i32 {s(sT0)}, {s(sSL)}, {TS}")
    add64(A, sTAB, sWS, s(sT0))
    A(f"s_or_b32 {s(sTAB+1)}, {s(sTAB+1)}, {OPT.get('tstride', 256)<<16}")
    A(f"s_mov_b32 {s(sTAB+2)}, {OPT.get('nrows', NROWS)}")
    A(f"s_mov_b32 {s(sTAB+3)}, 0x20000")
    for j in range(1, 4): A(f"s_mov_b32 {s(sJ+j-1)}, {j*4*RECSZ}")
    A(f"s_mov_b32 {s(sLO)}, 0")
    A(f"s_mov_b32 {s(sMODE)}, 0")
    A(f"s_mov_b64 {s(sWM,2)}, -1")
    A(f"s_mov_b64 {s(sP1M,2)}, -1")
    A(f"v_and_b32 v3, 1, {v(vL)}")
    A("v_lshlrev_b32 v3, 4, v3")
    A(f"v_mov_b32 v8, 0x3f80")
    A("v_lshlrev_b32 v3, v3, v8")
    A(f"v_and_b32 v8, 2, {v(vL)}")
    A("v_cmp_eq_u32 vcc, 0, v8")
    A(f"v_bfe_u32 v9, {v(vL)}, 2, 2")
    A(f"v_cmp_eq_u32 {s(sP0,2)}, v9, {v(vG4)}")
    A(f"v_cndmask_b32 {v(IDM)}, 0, v3, vcc")
    A(f"v_cndmask_b32 {v(IDM+1)}, v3, 0, vcc")
    A(f"v_and_b32 v8, 3, {v(vL)}")
    for x in AE:
        A(f"v_cndmask_b32 {v(x+2)}, 0, {v(IDM)}, {s(sP0,2)}")
        A(f"v_cndmask_b32 {v(x+3)}, 0, {v(IDM+1)}, {s(sP0,2)}")
    A(f"v_cmp_eq_u32 vcc, v8, {v(vG4)}")
    A(f"v_mov_b32 {v(CB)}, {hex(CBF | CBF << 16)}")
    A(f"v_mov_b32 {v(CB+1)}, {hex(CBF | CBF << 16)}")
    A(f"v_cndmask_b32 {v(vEI)}, 0, 32, vcc")
    A(f"v_lshlrev_b32 {v(IDX+1)}, 4, {v(vB15)}")
    A(f"v_lshlrev_b32 {v(IDX+3)}, 4, {v(vB15)}")
    A(f"v_mov_b32 {v(vZA)}, {L_ZERO}")
    A.c("table flag f = 8w + l (lanes 0..7); prefetch share: block 8w + (l&7), line 5k + (l>>3)")
    A(f"s_lshl_b32 s3, {s(sWAVE)}, 3")
    A(f"v_add_u32 v48, s3, {v(vL)}")
    A(f"v_cmp_gt_u32 vcc, {NB}, v48")
    A(f"s_and_b64 {s(sF2M,2)}, vcc, 0xff")
    A(f"s_mul_i32 {s(sT0)}, {s(sSL)}, {NB*128}")
    A(f"s_add_u32 {s(sT0)}, {s(sT0)}, {OFF_F2}")
    A(f"v_lshl_add_u32 v56, v48, 7, {s(sT0)}")
    A(f"v_and_b32 v48, 7, {v(vL)}")
    A("v_add_u32 v48, s3, v48")
    A(f"v_cmp_gt_u32 vcc, {NB}, v48")
    A(f"s_bfm_b64 {s(sPFM,2)}, {8*OPT.get('pf', 2)}, 0")
    A(f"s_and_b64 {s(sPFM,2)}, {s(sPFM,2)}, vcc")
    A(f"s_mul_i32 {s(sT0)}, {s(sSL)}, {TS}")
    A(f"v_mul_u32_u24 v48, {BN*256}, v48")
    A(f"v_add_u32 v48, {s(sT0)}, v48")
    A(f"v_lshrrev_b32 v49, 3, {v(vL)}")
    A("s_lshr_b32 s3, s2, 3")
    A("s_mul_i32 s3, s3, 5")
    A("v_add_u32 v49, s3, v49")
    A("v_lshl_add_u32 v119, v49, 7, v48")
    A(f"v_lshlrev_b32 v57, 3, {v(vL)}")
    A.c("addresses for the end of the streams and for the output pass")
    A(f"s_lshl_b32 {s(sT0)}, {s(sWAVE)}, 2")
    A(f"v_add_u32 {v(vSID)}, {s(sT0)}, {v(vG4)}")
    A(f"v_mul_u32_u24 {v(vXA_)}, {XSTR}, {v(vSID)}")
    A(f"v_lshl_add_u32 {v(vXA_)}, {v(vB15)}, 5, {v(vXA_)}")
    A(f"v_add_u32 {v(vXA_)}, {L_EXT}, {v(vXA_)}")
    A(f"v_lshrrev_b32 v8, 5, {v(vL)}")
    A(f"v_and_b32 v9, 3, {v(vL)}")
    A(f"v_bfe_u32 v10, {v(vL)}, 2, 3")
    A(f"s_lshl_b32 {s(sT2)}, {s(sWAVE)}, 3")
    A(f"v_add_u32 v10, {s(sT2)}, v10")
    A("v_lshl_add_u32 v11, v9, 1, v8")
    A("v_lshlrev_b32 v12, 4, v11")
    A("v_lshl_add_u32 v12, v10, 8, v12")
    A(f"s_mul_i32 {s(sT0)}, {s(sBKT)}, {BN*256}")
    A(f"s_lshl_b32 {s(sT1)}, {s(sSL)}, 7")
    A(f"s_add_u32 {s(sT0)}, {s(sT0)}, {s(sT1)}")
    A(f"v_add_u32 {v(vOUT)}, {s(sT0)}, v12")
    A(f"v_mul_u32_u24 {v(vNSA)}, {NSTR}, v10")
    A(f"v_add_u32 {v(vNSA)}, {L_NS}, {v(vNSA)}")
    A("v_mul_u32_u24 v14, 384, v8")
    A("v_lshl_add_u32 v14, v9, 2, v14")
    A(f"v_add3_u32 {v(vDN)}, {v(vNSA)}, v14, 16")
    A("v_lshlrev_b32 v14, 2, v9")
    A("v_lshl_add_u32 v14, v8, 8, v14")
    A(f"v_add_u32 {v(vXL)}, {L_EXT}, v14")
    A("v_and_b32 v14, 3, v10")
    A("v_lshlrev_b32 v15, 1, v11")
    A("v_xor_b32 v14, v14, v15")
    A("v_lshlrev_b32 v14, 4, v14")
    A("v_lshl_add_u32 v14, v10, 8, v14")
    A(f"v_add_u32 {v(vXU)}, {L_XS}, v14")
    A(f"v_mul_u32_u24 v127, 48, {v(vB15)}")
    A(f"v_add_u32 v127, {L_NS-NSTR}, v127")
    A(f"v_mov_b32 {v(vEIGHT)}, 8")
    if diag or OPT.get('hold'): A(f"s_mov_b32 {s(sST+1)}, {s(sRT)}")
    A(f"s_mov_b64 {s(sDONE,2)}, 0")
    for j in range(8): A(f"s_mov_b64 {s(sMK+2*j,2)}, 0")
    A(f"s_mov_b32 {s(sSPIN)}, {SPIN}")
    A.c("table waves: once their stores have drained the last one raises the table flag")
    A(f"s_sub_u32 s3, {s(sWAVE)}, 5")
    A("s_cmp_lt_u32 s3, 5")
    A("s_cbranch_scc0 L_poll0")
    nonce_lds(A, vZ, 48, "t")
    A("s_waitcnt vmcnt(0)")
    A.stamp('tDrain')
    A("s_mov_b64 exec, 1")
    A(f"ds_add_rtn_u32 v48, {v(vZ)}, {v(vONE)} offset:{M_CTRB}")
    A(f"s_mul_i32 {s(sT0)}, {s(sSL)}, {NB*128}")
    A(f"s_lshl_b32 {s(sT1)}, {s(sBKT)}, 7")
    A(f"s_add_u32 {s(sT0)}, {s(sT0)}, {s(sT1)}")
    A(f"s_add_u32 {s(sT0)}, {s(sT0)}, {OFF_F2}")
    A(f"v_mov_b32 v49, {s(sT0)}")
    A(f"v_mov_b32 v50, {s(sNON)}")
    A(f"v_mov_b32 v51, {s(sNON+1)}")
    A("s_waitcnt lgkmcnt(0)")
    A("v_readfirstlane_b32 s3, v48")
    A("s_cmp_eq_u32 s3, 4")
    A("s_cbranch_scc0 L_poll0")
    A(f"global_store_dwordx2 v49, v[50:51], {s(sWS,2)} sc1")
    A.lab("L_poll0")
    A("s_mov_b64 exec, -1")
    lds_wait(A, vZ, 48, M_CTRA, 5, "pa", 1)
    if OPT.get('pgate', 1): lds_wait(A, vZ, 48, M_CTRB, 5, "pb", 1)
    nonce_lds(A, vZ, 48, "q")
    if OPT.get('pdelay'): A(f"s_sleep {OPT['pdelay']}")
    A(f"s_mov_b64 exec, {s(sEX,2)}")
    A(f"global_load_dwordx2 {v(vGW,2)}, {v(vGA)}, {s(sWS,2)} sc1")
    A("s_waitcnt vmcnt(0)")
    A.stamp('poll1')
    A.lab("L_poll")
    def f2_check(tag, skip):
        A(f"s_mov_b64 exec, {s(sF2M,2)}")
        if tag != "b": A(f"s_cbranch_execz {skip}")
        A(f"v_cmp_ne_u32 vcc, {s(sNON)}, v58")
        A(f"v_cmp_ne_u32 {s(sP0,2)}, {s(sNON+1)}, v59")
        A(f"s_or_b64 vcc, vcc, {s(sP0,2)}")
        A(f"s_cbranch_scc1 {skip}")
        if OPT.get('pf', 2):
            A(f"s_mov_b64 exec, {s(sPFM,2)}")
            A(f"global_load_dword v118, v119, {s(sWS,2)} sc1")
        A(f"s_mov_b64 {s(sF2M,2)}, 0")
    A.c("segments whose granule carries this launch's tag are fetched at once")
    A(f"s_andn2_b64 exec, {s(sEX,2)}, {s(sDONE,2)}")
    A(f"v_and_b32 v48, 0xffc00000, {v(vGW)}")
    A(f"v_cmp_eq_u32 vcc, {s(sNON)}, {v(vGW+1)}")
    A(f"v_cmp_eq_u32 {s(sP0,2)}, {s(sNON+1)}, v48")
    A("s_mov_b64 exec, -1")
    A(f"s_and_b64 {s(sP0,2)}, {s(sP0,2)}, vcc")
    A("s_cbranch_scc0 L_repoll")
    A(f"s_or_b64 {s(sDONE,2)}, {s(sDONE,2)}, {s(sP0,2)}")
    A.lab("L_round")
    A(f"v_cndmask_b32 v51, 0, {v(vGW)}, {s(sP0,2)}")
    for j in range(4):
        A(f"s_or_b32 s3, {s(sP0)}, {s(sP0+1)}")
        A(f"s_and_b32 s3, s3, {hex(0x10001 << j)}")
        A(f"s_cbranch_scc0 L_ld{4+j}")
        A(f"v_mov_b32_dpp v48, v51 row_newbcast:{j} row_mask:0xf bank_mask:0xf")
        A("v_and_b32 v49, 0x7ff, v48")
        A("v_bfe_u32 v50, v48, 11, 11")
        A(f"v_add_u32 v49, {s(sLO)}, v49")
        A(f"v_subrev_u32 v50, {s(sLO)}, v50")
        A(f"v_mad_u32_u24 v52, v49, 12, {v(vRB)}")
        A(f"v_cmp_lt_i32 vcc, {v(vB15)}, v50")
        A("v_subrev_u32 v50, 16, v50")
        A(f"v_cmp_lt_i32 {s(sP1,2)}, {v(vB15)}, v50")
        A(f"s_and_b64 exec, vcc, {s(sWM,2)}")
        A(f"s_cbranch_execz L_ld{j}")
        A(f"buffer_load_dwordx3 {v(RB(j),3)}, v52, {s(sSRD,4)}, {s(sJ+j-1) if j else 0} offen sc1")
        A(f"s_or_b64 {s(sMK+2*j,2)}, {s(sMK+2*j,2)}, exec")
        A(f"s_and_b64 exec, {s(sP1,2)}, {s(sP1M,2)}")
        A(f"s_cbranch_execz L_ld{j}")
        A(f"buffer_load_dwordx3 {v(RB(4+j),3)}, v52, {s(sSRD,4)}, {s(sJ+j-1) if j else 0} offen offset:192 sc1")
        A(f"s_or_b64 {s(sMK+8+2*j,2)}, {s(sMK+8+2*j,2)}, exec")
        A.lab(f"L_ld{j}")
        A("s_mov_b64 exec, -1")
        A.lab(f"L_ld{4+j}")
    A.lab("L_repoll")
    A(f"s_andn2_b64 exec, {s(sEX,2)}, {s(sDONE,2)}")
    A("s_cbranch_execz L_polled")
    A(f"s_sub_u32 {s(sSPIN)}, {s(sSPIN)}, 1")
    A("s_cbranch_scc1 L_polled")
    if OPT.get('psleep', 8): A(f"s_sleep {OPT.get('psleep', 8)}")
    A.stamp('plI')
    A(f"global_load_dwordx2 {v(vGW,2)}, {v(vGA)}, {s(sWS,2)} sc1")
    A("s_waitcnt vmcnt(0)")
    A("s_branch L_poll")
    A.lab("L_polled")
    A(f"s_mov_b64 exec, {s(sEX,2)}")
    A(f"v_bfe_u32 v48, {v(vGW)}, 11, 11")
    A(f"ds_max_u32 {v(vZ)}, v48 offset:{M_MAXLEN}")
    A("s_mov_b64 exec, -1")
    A.stamp('polled')
    if diag == 1: A(f"s_sub_u32 {s(sNPOLL)}, {SPIN}, {s(sSPIN)}")
    def f2_load():
        A(f"s_mov_b64 exec, {s(sF2M,2)}")
        A("s_cbranch_execz L_nof2")
        A(f"global_load_dwordx2 v[58:59], v56, {s(sWS,2)} sc1")
        A.lab("L_nof2")
        A("s_mov_b64 exec, -1")
    F2AT = OPT.get('f2at', 1)
    if F2AT == 0: f2_load()
    A("s_waitcnt vmcnt(0)")
    A.stamp('recs')
    if F2AT == 1: f2_load()
    for j in range(8):
        A(f"s_mov_b64 exec, {s(sMK+2*j,2)}")
        if j >= 4: A(f"s_cbranch_execz L_rk{j}")
        A(f"v_lshrrev_b32 {v(vCI+j)}, 14, {v(RB(j)+2)}")
        A(f"ds_add_rtn_u32 {v(RB(j)+3)}, {v(vCI+j)}, {v(vEIGHT)} offset:{L_CNT2}")
        if j >= 4: A.lab(f"L_rk{j}")
    if F2AT == 0:
        f2_check("a", "L_f2back")
        A.lab("L_f2back")
    A("s_mov_b64 exec, -1")
    A("s_waitcnt lgkmcnt(0)")
    A.stamp('rk')
    A("s_barrier")
    A.stamp('B5')
    vCA, vPA, vSUM, vINC, vSTA = 48, 50, 52, 53, 54
    A(f"ds_read_b64 {v(vCA,2)}, v57 offset:{L_CNT2}")
    A(f"ds_read_b32 v60, {v(vZ)} offset:{M_MAXLEN}")
    for bb in LB:
        for x in bb:
            A(f"ds_read_b64 {v(x,2)}, v57 offset:{L_WC}")
    A(f"v_cmp_gt_u32 vcc, {BN//2}, {v(vL)}")
    A("s_waitcnt lgkmcnt(4)")
    A.c("counts are in units of 8 bytes; vPA = bytes of e-list per node = 16 * max(2, ceil(n/2))")
    for k in range(2): A(f"v_add_u32 {v(vPA+k)}, 8, {v(vCA+k)}")
    for k in range(2): A(f"v_and_b32 {v(vPA+k)}, -16, {v(vPA+k)}")
    for k in range(2): A(f"v_max_u32 {v(vPA+k)}, 32, {v(vPA+k)}")
    for k in range(2): A(f"v_cndmask_b32 {v(vPA+k)}, 0, {v(vPA+k)}, vcc")
    A(f"v_readfirstlane_b32 {s(sMAXL)}, v60")
    A(f"v_add_u32 {v(vINC)}, {v(vPA)}, {v(vPA+1)}")
    A(f"v_subrev_u32 {v(vSUM)}, {L_E}, {v(vINC)}")
    wave_scan(A, vINC)
    A(f"v_sub_u32 {v(vSTA)}, {v(vINC)}, {v(vSUM)}")
    A(f"v_readlane_b32 {s(sTP)}, {v(vINC)}, 63")
    A(f"v_add_u32 {v(vSTA+1)}, {v(vPA)}, {v(vSTA)}")
    A(f"s_lshr_b32 {s(sTP)}, {s(sTP)}, 4")
    A.c("first round only: does everything fit in one round?")
    A(f"s_cmp_eq_u32 {s(sMODE)}, 0")
    A("s_cbranch_scc0 L_fits")
    A(f"s_cmp_gt_u32 {s(sMAXL)}, 32")
    A("s_cbranch_scc1 L_goslow")
    A(f"s_cmp_gt_u32 {s(sTP)}, {CAP_PAIRS}")
    A("s_cbranch_scc1 L_goslow")
    A.lab("L_fits")
    A(f"ds_write_b64 v57, {v(vSTA,2)} offset:{L_ST2}")
    for j in range(8):
        A(f"s_mov_b64 exec, {s(sMK+2*j,2)}")
        if j >= 4: A(f"s_cbranch_execz L_sr{j}")
        A(f"ds_read_b32 {v(vCI+j)}, {v(vCI+j)} offset:{L_ST2}")
        if j >= 4: A.lab(f"L_sr{j}")
    A("s_mov_b64 exec, -1")
    if F2AT == 1:
        A("s_waitcnt vmcnt(0)")
        f2_check("a", "L_f2back")
        A.lab("L_f2back")
        A("s_mov_b64 exec, -1")
    A.c("stream geometry")
    A(f"s_add_u32 {s(sT0)}, {s(sTP)}, 3")
    A(f"s_lshr_b32 {s(sT0)}, {s(sT0)}, 2")
    A(f"s_lshr_b32 {s(sT1)}, {s(sT0)}, 4")
    A(f"s_and_b32 {s(sT2)}, {s(sT0)}, 15")
    A(f"s_mul_i32 {s(sS)}, {s(sWAVE)}, {s(sT1)}")
    A(f"s_min_u32 {s(sT3)}, {s(sWAVE)}, {s(sT2)}")
    A(f"s_add_u32 {s(sS)}, {s(sS)}, {s(sT3)}")
    A(f"s_lshl_b32 {s(sS)}, {s(sS)}, 2")
    A(f"s_cmp_lt_u32 {s(sWAVE)}, {s(sT2)}")
    A(f"s_addc_u32 {s(sL)}, {s(sT1)}, 0")
    A(f"s_mov_b32 {s(sT1)}, {L_META}")
    A(f"s_mov_b32 {s(sT2)}, {L_E}")
    A.c("null padding: waves 0-7 pad nodes, wave 8 pads the tail")
    A(f"s_cmp_gt_u32 {s(sWAVE)}, 8")
    A("s_cbranch_scc1 L_nopad")
    A(f"s_cmp_eq_u32 {s(sWAVE)}, 8")
    A("s_cbranch_scc1 L_padtail")
    A(f"s_cmp_ge_u32 {s(sWAVE)}, 4")
    A(f"s_cselect_b64 vcc, -1, 0")
    A(f"s_cselect_b32 {s(sT3)}, 1, 0")
    A(f"s_and_b32 {s(sT4)}, {s(sWAVE)}, 3")
    A(f"s_lshl_b32 {s(sT4)}, {s(sT4)}, 3")
    A(f"v_cndmask_b32 v60, {v(vCA)}, {v(vCA+1)}, vcc")
    A(f"v_cndmask_b32 v61, {v(vPA)}, {v(vPA+1)}, vcc")
    A(f"v_cndmask_b32 v62, {v(vSTA)}, {v(vSTA+1)}, vcc")
    A(f"v_add_u32 v60, {s(sT4)}, v60")
    A("v_add_u32 v62, v62, v60")
    A("v_cmp_lt_u32 vcc, v60, v61")
    A(f"v_lshl_add_u32 v63, {v(vL)}, 1, {s(sT3)}")
    A("s_branch L_padwr")
    A.lab("L_padtail")
    A(f"s_lshl_b32 {s(sT3)}, {s(sTP)}, 1")
    A(f"s_lshl_b32 {s(sT4)}, {s(sT0)}, 3")
    A(f"v_add_u32 v62, {s(sT3)}, {v(vL)}")
    A(f"v_cmp_eq_u32 vcc, {s(sT4)}, v62")
    A(f"v_mov_b32 v63, {BN-1}")
    A("v_mov_b32 v61, 255")
    A("v_cndmask_b32 v63, v63, v61, vcc")
    A(f"v_cmp_ge_u32 vcc, {s(sT4)}, v62")
    A(f"v_lshl_add_u32 v62, v62, 3, {s(sT2)}")
    A.lab("L_padwr")
    A(f"s_add_u32 {s(sT3)}, {s(sBKT)}, {N}")
    A(f"v_lshl_or_b32 v63, v63, 16, {s(sT3)}")
    A("v_lshrrev_b32 v60, 1, v62")
    A("s_mov_b64 exec, vcc")
    A(f"ds_write_b32 v60, v63 offset:{L_META - L_E//2}")
    A(f"ds_write_b64 v62, {v(vZ,2)}")
    A("s_mov_b64 exec, -1")
    A.lab("L_nopad")
    A("s_waitcnt lgkmcnt(0)")
    for j in range(8):
        A(f"s_mov_b64 exec, {s(sMK+2*j,2)}")
        if j >= 4: A(f"s_cbranch_execz L_sw{j}")
        A(f"v_add_u32 {v(vCI+j)}, {v(vCI+j)}, {v(RB(j)+3)}")
        A(f"v_lshrrev_b32 {v(RB(j)+3)}, 1, {v(vCI+j)}")
        A(f"ds_write_b64 {v(vCI+j)}, {v(RB(j),2)}")
        A(f"ds_write_b32 {v(RB(j)+3)}, {v(RB(j)+2)} offset:{L_META - L_E//2}")
        if j >= 4: A.lab(f"L_sw{j}")
    A.c("stream addresses")
    A("s_mov_b64 exec, -1")
    A(f"v_mul_u32_u24 v60, {s(sL)}, {v(vG4)}")
    A(f"v_add_u32 v60, {s(sS)}, v60")
    A(f"v_lshl_add_u32 {v(vIA)}, v60, 3, {s(sT1)}")
    A(f"v_bfe_u32 v61, {v(vL)}, 2, 2")
    A(f"v_mul_u32_u24 v61, {s(sL)}, v61")
    A(f"v_add_u32 v61, {s(sS)}, v61")
    A(f"v_lshl_add_u32 v61, v61, 4, {s(sT2)}")
    A(f"v_cmp_ne_u32 vcc, 0, {v(vEI)}")
    A(f"s_lshl_b32 {s(sT3)}, {s(sS)}, 3")
    A(f"s_add_u32 {s(sT3)}, {s(sT3)}, {s(sT1)}")
    A(f"v_cndmask_b32 {v(vEA)}, {v(vZA)}, v61, vcc")
    A(f"v_lshl_add_u32 v60, {v(vL)}, 3, {s(sT3)}")
    A(f"s_lshl_b32 {s(sT3)}, {s(sL)}, 3")
    for g in range(1, 4):
        A(f"v_add_u32 {v(60+g)}, {s(sT3)}, {v(60+g-1)}")
    for k in range(4): A(f"v_mov_b32 {v(P+k)}, 1.0")
    A.stamp('scat')
    A.c("all table rows of this slice must be published")
    A(f"s_cmp_eq_u64 {s(sF2M,2)}, 0")
    A("s_cbranch_scc0 L_f2")
    A.lab("L_f2_done")
    A.stamp('f2')
    A("s_mov_b64 exec, -1")
    A("s_waitcnt lgkmcnt(0)")
    A("s_barrier")
    if OPT.get('fair', 1): A("s_setprio 3")
    A.stamp('B6')

    def gather(buf, x):
        r = LB[buf][x] + 2
        A(f"buffer_load_dwordx4 {v(r,4)}, {v(IDX+2*x,2)}, {s(sTAB,4)}, 0 idxen offen {GF}")
    def rd_idx(off):
        A(f"ds_read_u16 {v(IDX)}, {v(vIA)} offset:{off}")
        A(f"ds_read_u16 {v(IDX+2)}, {v(vIA)} offset:{off+4}")
    def rd_e(off):
        A(f"ds_read_b64 {v(AE[0],2)}, {v(vEA)} offset:{off}")
        A(f"ds_read_b64 {v(AE[1],2)}, {v(vEA)} offset:{off+8}")
    m32 = lambda d, buf, x: f"v_mfma_f32_16x16x32_bf16 {v(d,4)}, {v(AE[x],4)}, {v(LB[buf][x],4)}, {v(XA,4)}"
    m4h = lambda d, buf, x: f"v_mfma_f32_4x4x4_16b_bf16 {v(d,4)}, {v(IDM,2)}, {v(LB[buf][x]+4,2)}, 0"
    m4c = lambda d: f"v_mfma_f32_4x4x4_16b_bf16 {v(d,4)}, {v(IDM,2)}, {v(CB,2)}, {v(d,4)}"
    ex = lambda d: f"v_exp_f32_e64 {v(d)}, {v(d)} clamp"
    rcp = lambda k: f"v_rcp_f32_e32 {v(P+k)}, {v(P+k)}"

    rd_idx(0)
    A(f"ds_read_u16 v8, {v(vIA)} offset:8")
    A(f"ds_read_u16 v10, {v(vIA)} offset:12")
    A(f"ds_read_u16 v12, {v(vIA)} offset:2")
    for g in range(4):
        A(f"ds_read_u16 {v(16+2*g)}, {v(60+g)} offset:2")
        A(f"ds_read_u16 {v(17+2*g)}, {v(60+g)} offset:10")
    rd_e(0)
    A(f"v_mov_b32 v9, {v(IDX+1)}")
    A(f"v_mov_b32 v11, {v(IDX+1)}")
    A(f"s_cmp_eq_u32 {s(sMODE)}, 0")
    A("s_cbranch_scc1 L_nozero")
    A(f"ds_write_b64 v57, {v(vZ,2)} offset:{L_CNT2}")
    A.lab("L_nozero")
    A(f"s_sub_u32 {s(sT0)}, {s(sL)}, 1")
    A(f"s_bfm_b64 {s(sF2M,2)}, {s(sT0)}, 0")
    A(f"s_mov_b32 {s(sT1)}, {NSTR}")
    A("s_waitcnt lgkmcnt(13)")
    gather(0, 0); gather(0, 1)
    A("s_waitcnt lgkmcnt(10)")
    A(f"buffer_load_dwordx4 {v(LB[1][0]+2,4)}, v[8:9], {s(sTAB,4)}, 0 idxen offen {GF}")
    A(f"buffer_load_dwordx4 {v(LB[1][1]+2,4)}, v[10:11], {s(sTAB,4)}, 0 idxen offen {GF}")
    A(f"v_mad_u32_u24 {v(vPTR)}, v12, {s(sT1)}, v127")
    A(f"ds_read_b128 {v(XA,4)}, {v(vPTR)} offset:{NSTR}")
    rd_idx(16)
    for k in range(4): A(f"ds_read_b128 {v(S+4*k,4)}, {v(vZA)}")
    A("s_waitcnt lgkmcnt(9)")
    A.c("node-end masks -> per-step event byte (switch nibble <<4 | flush nibble), lane = step+1")
    A(f"s_mov_b32 {s(sEND)}, 0")
    for g in (3, 2, 1, 0):
        A(f"v_cmp_ne_u32 vcc, {v(16+2*g)}, {v(17+2*g)}")
        A(f"s_bitcmp1_b32 vcc_lo, {s(sT0)}")
        A(f"s_addc_u32 {s(sEND)}, {s(sEND)}, {s(sEND)}")
        A(f"s_and_b64 {s(sMK+2*g,2)}, vcc, {s(sF2M,2)}")
        A(f"s_lshl_b64 {s(sMK+8+2*g,2)}, {s(sMK+2*g,2)}, 2")
    A(f"v_mov_b32 {v(vEVB)}, 0")
    for k in (3, 2, 1, 0, 7, 6, 5, 4):
        A(f"v_addc_co_u32 {v(vEVB)}, vcc, {v(vEVB)}, {v(vEVB)}, {s(sMK+2*k,2)}")
    A(f"v_cmp_ne_u32 vcc, 0, {v(vEVB)}")
    A(f"s_lshr_b64 {s(sP0,2)}, vcc, 1")
    A(f"s_bitset1_b32 {s(sP0)}, {s(sT0)}")
    if OPT.get('noev'):
        A(f"s_mov_b32 {s(sP0)}, 0")
        A(f"s_bitset1_b32 {s(sP0)}, {s(sT0)}")
    if OPT.get('fair', 1):
        if OPT.get('fair', 1) == 2: A(f"s_or_b32 {s(sP0)}, {s(sP0)}, 0x4210")
    if OPT.get('tail', 1):
        A(f"s_sub_u32 {s(sT1)}, {s(sL)}, 4")
        A(f"s_max_i32 {s(sT1)}, {s(sT1)}, 0")
        A(f"s_bitset1_b32 {s(sP0)}, {s(sT1)}")
    A(f"s_brev_b32 {s(sEV)}, {s(sP0)}")
    A(f"s_sub_u32 {s(sLM)}, {s(sL)}, 32")
    if OPT.get('tail', 1):
        A(f"s_cmp_gt_u32 {s(sL)}, 3")
        A("s_cselect_b64 vcc, 1, 0")
    A(f"v_readfirstlane_b32 {s(sT0)}, {v(vEVB)}")
    A("s_waitcnt vmcnt(2) lgkmcnt(0)")
    A(m32(T[0][0], 0, 0)); A(m32(T[0][1], 0, 1)); A(m4h(H[0][0], 0, 0)); A(m4h(H[0][1], 0, 1))
    gather(0, 0); gather(0, 1)
    rd_e(16)
    rd_idx(24)
    A(f"s_lshr_b32 {s(sT0)}, {s(sT0)}, 4")
    A.stamp('fill')
    A("s_cbranch_scc0 L_loop")
    for _ in range(4): A(f"s_bitreplicate_b64_b32 {s(sP0,2)}, {s(sT0) if _ == 0 else s(sP0)}")
    A(f"s_mov_b64 exec, {s(sP0,2)}")
    A(f"v_add_u32 {v(vPTR)}, {NSTR}, {v(vPTR)}")
    A(f"ds_read_b128 {v(XA,4)}, {v(vPTR)} offset:{NSTR}")
    A("s_mov_b64 exec, -1")

    def body(c, ioff, eoff):
        loopbody.body(A, c, ioff, eoff, sTAB, sEV, GF, OPT.get('sched', 'v7t'))

    def handler(tag, ret):
        A(f"s_ff1_i32_b32 {s(sT0)}, {s(sEV)}")
        A(f"s_cmp_eq_u32 {s(sEV)}, 0")
        A(f"s_cselect_b32 {s(sT0)}, 32, {s(sT0)}")
        A(f"s_add_u32 {s(sT0)}, {s(sT0)}, {s(sLM)}")
        A(f"v_readlane_b32 {s(sT1)}, {v(vEVB)}, {s(sT0)}")
        if OPT.get('tail', 1):
            A(f"s_add_u32 {s(sT2)}, {s(sT0)}, 3")
            A(f"s_cmp_lt_u32 {s(sT2)}, {s(sL)}" if False else f"s_cmp_gt_u32 {s(sL)}, {s(sT2)}")
            A("s_cselect_b64 vcc, 1, 0")
        A(f"s_and_b32 {s(sP0)}, {s(sT1)}, 15")
        A(f"s_cbranch_scc0 L_nofl{tag}")
        for _ in range(4): A(f"s_bitreplicate_b64_b32 {s(sP0,2)}, {s(sP0)}")
        A(f"s_mov_b64 exec, {s(sP0,2)}")
        A(f"ds_write_b128 {v(vPTR)}, {v(DEN,4)} offset:16")
        A(f"ds_write_b128 {v(vPTR)}, {v(NUM,4)} offset:32")
        A(f"ds_read_b128 {v(DEN,4)}, {v(vZA)}")
        A(f"ds_read_b128 {v(NUM,4)}, {v(vZA)}")
        A.lab(f"L_nofl{tag}")
        A(f"s_lshr_b32 {s(sP0)}, {s(sT1)}, 4")
        A(f"s_cbranch_scc0 L_nosw{tag}")
        for _ in range(4): A(f"s_bitreplicate_b64_b32 {s(sP0,2)}, {s(sP0)}")
        A(f"s_mov_b64 exec, {s(sP0,2)}")
        A(f"v_add_u32 {v(vPTR)}, {NSTR}, {v(vPTR)}")
        A(f"ds_read_b128 {v(XA,4)}, {v(vPTR)} offset:{NSTR}")
        A.lab(f"L_nosw{tag}")
        A("s_mov_b64 exec, -1")
        if OPT.get('fair', 1):
            A.c("waves that are ahead yield to the ones behind")
            A(f"s_lshl_b32 {s(sT0)}, {s(sT0)}, 2")
            A(f"s_cmp_lt_u32 {s(sT0)}, {s(sL)}")
            A(f"s_cbranch_scc1 L_pr{tag}")
            A("s_setprio 2")
            A(f"s_lshl_b32 {s(sT1)}, {s(sL)}, 1")
            A(f"s_cmp_lt_u32 {s(sT0)}, {s(sT1)}")
            A(f"s_cbranch_scc1 L_pr{tag}")
            A("s_setprio 1")
            A(f"s_add_u32 {s(sT1)}, {s(sT1)}, {s(sL)}")
            A(f"s_cmp_lt_u32 {s(sT0)}, {s(sT1)}")
            A(f"s_cbranch_scc1 L_pr{tag}")
            A("s_setprio 0")
            A.lab(f"L_pr{tag}")
        A(f"s_cmp_lg_u32 {s(sEV)}, 0")
        A(f"s_cbranch_scc1 {ret}")

    A.raw(".p2align 3")
    A.lab("L_loop")
    body(0, 32, 32)
    A("s_cbranch_scc1 L_h0")
    A.lab("L_r0")
    A(f"v_add_u32 {v(vIA)}, 16, {v(vIA)}")
    body(1, 24, 48)
    A(f"v_add_u32 {v(vEA)}, {v(vEI)}, {v(vEA)}")
    A("s_cbranch_scc0 L_loop")
    handler(1, "L_loop")
    A("s_branch L_drain")
    A.lab("L_h0")
    handler(0, "L_r0")
    A("s_branch L_drain")
    for c in range(2):
        A.lab(f"L_skipg{c}")
        A("s_waitcnt vmcnt(0)")
        A(f"s_branch L_backg{c}")
    A.lab("L_drain")
    A.c("last segment of each stream: node sum if it ends the node, else a partial slot")
    A(f"v_add_u32 v18, {NSTR+16}, {v(vPTR)}")
    for k in range(4): A(rcp(k))
    for _ in range(4): A(f"s_bitreplicate_b64_b32 {s(sP0,2)}, {s(sEND) if _ == 0 else s(sP0)}")
    A(f"s_cmp_lt_u32 {s(sWAVE)}, 10")
    A("s_cbranch_scc0 L_nox")
    A(f"global_load_dwordx4 {v(vX,4)}, {v(vOUT)}, {s(sX,2)}")
    A.lab("L_nox")
    A(f"v_cndmask_b32 v17, {v(vXA_)}, v18, {s(sP0,2)}")
    A(f"s_mov_b32 {s(sP1)}, 0x00010001")
    A(f"s_mov_b32 {s(sP1+1)}, 0x00010001")
    A("s_waitcnt lgkmcnt(0)")
    for k in (0, 2): A(f"v_pk_fma_f32 {v(DEN+k,2)}, {v(S+k,2)}, {v(P+k,2)}, {v(DEN+k,2)}")
    for k in (0, 2): A(f"v_pk_fma_f32 {v(NUM+k,2)}, {v(AA+k,2)}, {v(P+k,2)}, {v(NUM+k,2)}")
    A(f"ds_write_b128 v17, {v(DEN,4)}")
    A(f"ds_write_b128 v17, {v(NUM,4)} offset:16")
    A(f"s_andn2_b64 exec, {s(sP1,2)}, {s(sP0,2)}")
    A(f"ds_add_u32 {v(vPTR)}, {v(vONE)} offset:{NSTR+768}")
    A(f"ds_max_u32 {v(vPTR)}, {v(vSID)} offset:{NSTR+772}")
    A("s_mov_b64 exec, -1")
    A(f"s_mov_b32 {s(sT1)}, {XSTR}")
    A(f"v_xor_b32 v15, 16, {v(vXU)}")
    A.stamp('loopend')
    A("s_waitcnt vmcnt(0) lgkmcnt(0)")
    A("s_barrier")
    A.stamp('B7')
    A(f"s_cmp_lt_u32 {s(sWAVE)}, 10")
    A("s_cbranch_scc0 L_nocomb")
    D8, N8, U8, XF, Q8 = 24, 32, 40, 48, 64
    A(f"ds_read_b64 v[16:17], {v(vNSA)} offset:768")
    for k in range(4):
        A(f"ds_read2_b32 {v(D8+2*k,2)}, {v(vDN)} offset0:{24*k} offset1:{24*k+12}")
    for k in range(4):
        A(f"ds_read2_b32 {v(N8+2*k,2)}, {v(vDN)} offset0:{24*k+4} offset1:{24*k+16}")
    A(f"ds_read_b128 {v(U8,4)}, {v(vXU)}")
    A(f"ds_read_b128 {v(U8+4,4)}, v15")
    A(f"s_mov_b32 {s(sT0)}, 0")
    A("s_waitcnt lgkmcnt(10)")
    A(f"v_mad_u32_u24 v18, v17, {s(sT1)}, {v(vXL)}")
    A.lab("L_part")
    A(f"v_cmp_lt_u32 vcc, {s(sT0)}, v16")
    A("s_cbranch_vccz L_part_done")
    A("s_mov_b64 exec, vcc")
    for k in range(4):
        A(f"ds_read2_b32 {v(XF+2*k,2)}, v18 offset0:{16*k} offset1:{16*k+8}")
    for k in range(4):
        A(f"ds_read2_b32 {v(XF+8+2*k,2)}, v18 offset0:{16*k+4} offset1:{16*k+12}")
    A(f"v_subrev_u32 v18, {XSTR}, v18")
    A(f"s_add_u32 {s(sT0)}, {s(sT0)}, 1")
    A("s_waitcnt lgkmcnt(0)")
    for k in range(8):
        A(f"v_pk_add_f32 {v(D8+2*k,2)}, {v(D8+2*k,2)}, {v(XF+2*k,2)}")
    A("s_mov_b64 exec, -1")
    A("s_branch L_part")
    A.lab("L_part_done")
    A(f"s_cmp_eq_u32 {s(sMODE)}, 0")
    A("s_cbranch_scc0 L_slowcomb")
    A.lab("L_final")
    A(f"s_mov_b32 {s(sP0)}, {hex(EPS)}")
    A(f"s_mov_b32 {s(sP0+1)}, {hex(EPS)}")
    for k in range(4):
        A(f"v_lshlrev_b32 {v(XF+2*k)}, 16, {v(vX+k)}")
        A(f"v_and_b32 {v(XF+2*k+1)}, 0xffff0000, {v(vX+k)}")
    A("s_waitcnt lgkmcnt(0)")
    for k in range(4):
        A(f"v_pk_add_f32 {v(D8+2*k,2)}, {v(D8+2*k,2)}, {s(sP0,2)}")
    for k in range(8):
        A(f"v_rcp_f32 {v(D8+k)}, {v(D8+k)}")
    for k in range(4):
        A(f"v_pk_fma_f32 {v(U8+2*k,2)}, {v(N8+2*k,2)}, {v(D8+2*k,2)}, {v(U8+2*k,2)}")
    for k in range(8):
        A(f"v_max_f32 {v(U8+k)}, 0, {v(U8+k)}")
    for k in range(4):
        A(f"v_pk_add_f32 {v(U8+2*k,2)}, {v(U8+2*k,2)}, {v(XF+2*k,2)}")
    for k in range(4):
        A(f"v_cvt_pk_bf16_f32 {v(D8+k)}, {v(U8+2*k)}, {v(U8+2*k+1)}")
    A(f"global_store_dwordx4 {v(vOUT)}, {v(D8,4)}, {s(sOUT,2)} {OPT.get('of', '')}")
    A.lab("L_out_done")
    if OPT.get('hold'):
        A.lab("L_hold")
        A(f"s_memrealtime {s(sP0,2)}")
        A("s_waitcnt lgkmcnt(0)")
        A(f"s_sub_u32 {s(sT0)}, {s(sP0)}, {s(sST+1)}")
        A(f"s_cmp_lt_u32 {s(sT0)}, {OPT['hold']}")
        A("s_cbranch_scc1 L_hold")
    if diag == 2:
        A("s_waitcnt vmcnt(0)")
        A(f"s_memrealtime {s(sP0,2)}")
        A(f"s_memtime {s(sP1,2)}")
        A("s_waitcnt lgkmcnt(0)")
        A(f"s_not_b32 {s(sT0)}, {s(sST+1)}")
        A("v_mov_b32 v8, 0")
        A(f"v_writelane_b32 v8, {s(sT0)}, 0")
        for k in range(1, 8): A(f"v_writelane_b32 v8, {s(sST+2*k)}, {k}")
        A(f"v_writelane_b32 v8, {s(sP0)}, 8")
        A(f"s_sub_u32 {s(sT0)}, {s(sP0)}, {s(sST+1)}")
        A(f"s_sub_u32 {s(sT1)}, {s(sP1)}, {s(sST)}")
        A(f"v_writelane_b32 v8, {s(sT0)}, 9")
        A(f"v_writelane_b32 v8, {s(sT1)}, 10")
        A(f"v_writelane_b32 v8, {s(sST+1)}, 11")
        A(f"v_lshl_add_u32 v9, {v(vL)}, 2, 8")
        A(f"s_cmp_eq_u32 {s(sWAVE)}, {OPT.get('dw', 0)}")
        A("s_cbranch_scc0 L_dg")
        A("s_mov_b64 exec, 0xfff")
        A(f"global_atomic_umax v9, v8, {s(sDBG,2)}")
        A.lab("L_dg")
    elif diag:
        A("s_waitcnt vmcnt(0)")
        A(f"s_memrealtime {s(sP0,2)}")
        A(f"s_memtime {s(sP1,2)}")
        A("s_waitcnt lgkmcnt(0)")
        A(f"s_sub_u32 {s(sT1)}, {s(sP1)}, {s(sST)}")
        A(f"s_mov_b32 {s(sST)}, {s(sST+1)}")
        A("v_mov_b32 v8, 0")
        for k in range(8): A(f"v_writelane_b32 v8, {s(sST+2*k)}, {k}")
        A(f"v_writelane_b32 v8, {s(sP0)}, 8")
        A(f"v_writelane_b32 v8, {s(sL)}, 9")
        A(f"v_writelane_b32 v8, {s(sT1)}, 10")
        A(f"v_writelane_b32 v8, {s(sNPOLL)}, 11")
        A(f"s_getreg_b32 {s(sT0)}, hwreg(HW_REG_XCC_ID)")
        A(f"v_writelane_b32 v8, {s(sT0)}, 12")
        A(f"s_getreg_b32 {s(sT0)}, hwreg(HW_REG_HW_ID)")
        A(f"v_writelane_b32 v8, {s(sT0)}, 13")
        A("s_lshl_b32 s3, s2, 4")
        A(f"s_add_u32 s3, s3, {s(sWAVE)}")
        A("s_lshl_b32 s3, s3, 6")
        A(f"s_add_u32 s3, s3, {OFF_DIAG}")
        A(f"v_lshl_add_u32 v9, {v(vL)}, 2, s3")
        A("s_mov_b64 exec, 0xffff")
        A(f"global_store_dword v9, v8, {s(sWS,2)}")
    A("s_endpgm")
    A.lab("L_f2")
    A(f"s_mov_b32 {s(sSPIN)}, {SPIN}")
    A(f"s_mov_b64 exec, {s(sF2M,2)}")
    A(f"global_load_dwordx2 v[58:59], v56, {s(sWS,2)} sc1")
    A.lab("L_f2l")
    A("s_waitcnt vmcnt(0)")
    f2_check("b", "L_f2r")
    A("s_branch L_f2_done")
    A.lab("L_f2r")
    A(f"s_sub_u32 {s(sSPIN)}, {s(sSPIN)}, 1")
    A("s_cbranch_scc1 L_f2_done")
    A("s_sleep 1")
    A(f"global_load_dwordx2 v[58:59], v56, {s(sWS,2)} sc1")
    A("s_branch L_f2l")
    A.c("more records than one round holds: restart in rounds of 15 records per segment")
    A.lab("L_goslow")
    A(f"s_mov_b32 {s(sMODE)}, 1")
    A(f"s_mov_b32 {s(sWM)}, {hex(((1 << SLOWK) - 1) * 0x10001)}")
    A(f"s_mov_b32 {s(sWM+1)}, {hex(((1 << SLOWK) - 1) * 0x10001)}")
    A(f"s_mov_b64 {s(sP1M,2)}, 0")
    A("s_waitcnt vmcnt(0)")
    A("s_barrier")
    A(f"ds_write_b64 v57, {v(vZ,2)} offset:{L_CNT2}")
    A("s_waitcnt lgkmcnt(0)")
    A("s_barrier")
    A("s_branch L_nextround2")
    A.lab("L_nextround")
    A(f"s_mov_b64 {s(sF2M,2)}, 0")
    A(f"v_lshlrev_b32 v57, 3, {v(vL)}")
    A.lab("L_nextround2")
    for j in range(8): A(f"s_mov_b64 {s(sMK+2*j,2)}, 0")
    A(f"s_mov_b64 {s(sP0,2)}, {s(sEX,2)}")
    A("s_branch L_round")
    A.c("multi-round mode: waves without output work just go on")
    A.lab("L_nocomb")
    A(f"s_cmp_eq_u32 {s(sMODE)}, 0")
    A("s_cbranch_scc1 L_out_done")
    A(f"s_add_u32 {s(sLO)}, {s(sLO)}, {SLOWK}")
    A(f"s_cmp_lt_u32 {s(sLO)}, {s(sMAXL)}")
    A("s_cbranch_scc1 L_nextround")
    A("s_branch L_out_done")
    A.c("multi-round mode: running sums live in this workgroup's scratch, one 64-byte record per thread")
    A.lab("L_slowcomb")
    A(f"s_mul_i32 {s(sT0)}, s2, 40960")
    A(f"s_add_u32 {s(sT0)}, {s(sT0)}, {OFF_ACC}")
    add64(A, sP0, sWS, s(sT0))
    A("v_lshlrev_b32 v20, 6, v0")
    A("s_waitcnt lgkmcnt(0)")
    A(f"ds_write_b64 v124, {v(vZ,2)} offset:768")
    A(f"s_cmp_eq_u32 {s(sLO)}, 0")
    A("s_cbranch_scc1 L_slow1")
    for k in range(4):
        A(f"global_load_dwordx4 {v(48+4*k,4)}, v20, {s(sP0,2)} offset:{16*k} sc1")
    A("s_waitcnt vmcnt(0)")
    for k in range(8):
        A(f"v_pk_add_f32 {v(24+2*k,2)}, {v(24+2*k,2)}, {v(48+2*k,2)}")
    A.lab("L_slow1")
    A(f"s_add_u32 {s(sLO)}, {s(sLO)}, {SLOWK}")
    A(f"s_cmp_lt_u32 {s(sLO)}, {s(sMAXL)}")
    A("s_cbranch_scc0 L_final")
    for k in range(4):
        A(f"global_store_dwordx4 v20, {v(24+4*k,4)}, {s(sP0,2)} offset:{16*k} sc1")
    A("s_waitcnt vmcnt(0) lgkmcnt(0)")
    A("s_branch L_nextround")
    A.lab("L_end")
    A("s_endpgm")
    return A.L


HEADER = open(os.path.join(os.path.dirname(os.path.abspath(__file__)), "header.txt")).read()


def emit(path, diag=0, **o):
    body = build(diag, **o)
    errs = hazard.check(body, "linear")
    for e in errs: print("HAZARD", e)
    out = [HEADER.rstrip("\n")] + ([f"; stamps: {o.get('st', 'pDst|gB3 pOut|gMM ph2 polled recs B6 loopend')}"] if diag else []) + [
           f"; @launch grid=({NC},1,1) block=(1024,1,1) lds={LDS_SIZE}",
           '.amdgcn_target "amdgcn-amd-amdhsa--gfx950"', ".text", f".globl {KNAME}", ".p2align 8",
           f".type {KNAME},@function", f"{KNAME}:"]
    out += body
    out += ['.section .rodata,"a"', ".p2align 6", f".amdhsa_kernel {KNAME}",
            "  .amdhsa_next_free_vgpr 128", "  .amdhsa_next_free_sgpr 102", "  .amdhsa_accum_offset 128",
            "  .amdhsa_group_segment_fixed_size 0", "  .amdhsa_kernarg_size 96", "  .amdhsa_user_sgpr_count 2",
            "  .amdhsa_user_sgpr_kernarg_segment_ptr 1", "  .amdhsa_system_sgpr_workgroup_id_x 1",
            ".end_amdhsa_kernel"]
    open(path, "w").write("\n".join(out) + "\n")
    return len(errs)


if __name__ == "__main__":
    root = os.path.dirname(os.path.dirname(os.path.abspath(__file__)))
    emit(os.path.join(root, "cdna_kernels", "standalone__edge_featured_mpnn_gatedgcn__graph.s"), 0)
    emit(os.path.join(root, "gen", "diag.s"), 1)
    for a in sys.argv[1:]:
        name, _, rest = a.partition(':')
        o = {}
        for kv in rest.split(','):
            if kv:
                k, _, val = kv.partition('=')
                o[k] = int(val) if val.lstrip('-').isdigit() else val.replace('+', ' ')
        emit(os.path.join(root, "gen", f"diag_{name}.s"), o.pop('diag', 1), **o)
```

```python
import sys, os, struct
sys.path.insert(0, os.path.dirname(os.path.abspath(__file__)))
import hazard
import loopbody

KNAME = "standalone__edge_featured_mpnn_gatedgcn__graph_kernel"

N = 10000; NB = 125; NC = 250; BN = 80; CE = 1280
TS = 2592768
NROWS = N + NB
OFF_REC = 0x500000; RECSZ = CE * 12
OFF_G = 0x900000; GSTR = 1152
OFF_F2 = 0x950000
OFF_DIAG = 0xA00000
L_CNT1 = 0; L_ST1 = 512; L_CNT2 = 1024; L_ST2 = 1536; L_ZERO = 2048; L_MISC = 2176; L_WC = 2304
M_CTRA = L_MISC; M_CTRB = L_MISC + 4; M_MAXLEN = L_MISC + 8; M_P1 = L_MISC + 12; M_P2 = L_MISC + 16; M_G = L_MISC + 20; M_CD = L_MISC + 24; M_GI = L_MISC + 28; M_PO = L_MISC + 32; M_NONCE = L_MISC + 40; M_XI = L_MISC + 48
L_NS = 3072; NSTR = 784
L_XS = L_NS + BN * NSTR
L_W = L_XS + 20480
CAP = 3328
L_META = L_W; L_E = L_W + 13568; L_EXT = L_E + 26880; XSTR = 528
LDS_SIZE = L_EXT + 64 * XSTR
CAP_PAIRS = CAP // 2 - 4
SLOWK = 12
OFF_ACC = 0xB00000
SPIN = 1 << 22

def f2u(x): return struct.unpack('<I', struct.pack('<f', x))[0]
NL2E = f2u(-1.4426950408889634)
SHIFT = 60
EPS = f2u(1e-6 * 2.0 ** SHIFT)
CBF = (127 - SHIFT) << 7

def v(a, n=1): return f"v{a}" if n == 1 else f"v[{a}:{a+n-1}]"
def s(a, n=1): return f"s{a}" if n == 1 else f"s[{a}:{a+n-1}]"

sX, sE, sSRC, sDST, sWA, sWB, sWC, sWU, sWV, sOUT, sDBG, sWS = 4, 6, 8, 10, 12, 14, 16, 18, 20, 22, 24, 26
sWAVE, sBKT, sSL, sT0 = 28, 29, 30, 31
sSRD = 32
sTAB = 36
sNON = 40
sRT = 42
sMK = 44
sT1, sT2, sT3, sT4 = 60, 61, 62, 63
sEX = 64
sP0 = 66
sP1 = 68
sLO, sMODE, sMAXL, sTP, sL, sS, sEV, sLM = 70, 71, 72, 73, 74, 75, 76, 77
sWM = 78
sP1M = 80
sJ = 82
sSPIN = 85
sEND = 3
sST = 86
sDONE = 42
sK = 63
sNPOLL = 8
sPFM = 10
sF2M = 6


class G:
    def __init__(self, diag=0):
        self.L = []
        self.diag = diag
        self.nst = 0
    def __call__(self, t): self.L.append("    " + t)
    def lab(self, t): self.L.append(t + ":")
    def c(self, t): self.L.append("    ; " + t)
    def raw(self, t): self.L.append(t)
    def stamp(self, name):
        if self.diag and name in self.st:
            self(f"s_memrealtime {s(sST + 2 * self.st[name], 2)}")
        if self.diag and 'c' + name in self.st:
            self(f"s_memtime {s(sST + 2 * self.st['c' + name], 2)}")


def wave_scan(A, r):
    for sh in (1, 2, 4, 8):
        A("s_nop 1")
        A(f"v_add_u32_dpp {v(r)}, {v(r)}, {v(r)} row_shr:{sh} row_mask:0xf bank_mask:0xf")
    A("s_nop 1")
    A(f"v_add_u32_dpp {v(r)}, {v(r)}, {v(r)} row_bcast:15 row_mask:0xa bank_mask:0xf")
    A("s_nop 1")
    A(f"v_add_u32_dpp {v(r)}, {v(r)}, {v(r)} row_bcast:31 row_mask:0xc bank_mask:0xf")


def lds_signal(A, vz, vone, off):
    A("s_mov_b64 exec, 1")
    A(f"ds_add_u32 {v(vz)}, {v(vone)} offset:{off}")
    A("s_mov_b64 exec, -1")


def lds_wait(A, vz, vt, off, target, tag, sleep=0):
    A.lab(f"L_lw_{tag}")
    if sleep: A(f"s_sleep {sleep}")
    A(f"ds_read_b32 {v(vt)}, {v(vz)} offset:{off}")
    A("s_waitcnt lgkmcnt(0)")
    A(f"v_readfirstlane_b32 s3, {v(vt)}")
    A(f"s_cmp_ge_u32 s3, {target}")
    A(f"s_cbranch_scc0 L_lw_{tag}")


def lds_sync(A, vz, vone, vt, off, n, tag):
    A("s_mov_b64 exec, 1")
    A(f"ds_add_rtn_u32 {v(vt)}, {v(vz)}, {v(vone)} offset:{off}")
    A("s_mov_b64 exec, -1")
    A("s_waitcnt lgkmcnt(0)")
    A(f"v_readfirstlane_b32 s3, {v(vt)}")
    A(f"s_cmp_eq_u32 s3, {n-1}")
    A(f"s_cbranch_scc1 L_ls_{tag}")
    lds_wait(A, vz, vt, off, n, tag)
    A.lab(f"L_ls_{tag}")


def nonce_get(A, vz, vn, tag):
    A(f"s_mov_b32 {s(sSPIN)}, {SPIN}")
    A.lab(f"L_nn_{tag}")
    A(f"v_readfirstlane_b32 {s(sNON)}, {v(vn)}")
    A(f"v_readfirstlane_b32 {s(sNON+1)}, {v(vn+1)}")
    A(f"s_cmp_lg_u32 {s(sNON)}, 0")
    A(f"s_cbranch_scc1 L_nd_{tag}")
    A(f"s_sub_u32 {s(sSPIN)}, {s(sSPIN)}, 1")
    A(f"s_cbranch_scc1 L_nd_{tag}")
    A("s_sleep 2")
    A(f"global_load_dwordx2 {v(vn,2)}, {v(vz)}, {s(sDBG,2)} sc1")
    A("s_waitcnt vmcnt(0)")
    A(f"s_branch L_nn_{tag}")
    A.lab(f"L_nd_{tag}")


def nonce_lds(A, vz, vn, tag):
    A.lab(f"L_nl_{tag}")
    A(f"ds_read_b64 {v(vn,2)}, {v(vz)} offset:{M_NONCE}")
    A("s_waitcnt lgkmcnt(0)")
    A(f"v_readfirstlane_b32 {s(sNON)}, {v(vn)}")
    A(f"v_readfirstlane_b32 {s(sNON+1)}, {v(vn+1)}")
    A(f"s_cmp_lg_u32 {s(sNON)}, 0")
    A(f"s_cbranch_scc0 L_nl_{tag}")


def add64(A, d, a, off):
    A(f"s_add_u32 {s(d)}, {s(a)}, {off}")
    A(f"s_addc_u32 {s(d+1)}, {s(a+1)}, 0")


def build(diag=0, **OPT):
    A = G(diag)
    A.st = {}
    for k, grp in enumerate(OPT.get('st', 'pDst|gB3 pOut|gMM ph2 polled recs B6 loopend').split()):
        for n in grp.split('|'): A.st[n] = k + 1
    GF = OPT.get('gf', 'sc1')
    EF = OPT.get('ef', 'nt'); XF_ = OPT.get('xf', 'nt'); WF = OPT.get('wf', ''); SF = OPT.get('sf', 'sc1')
    vL = 1
    vONE = 2
    vZ = 4
    A(f"s_cmp_ge_u32 s2, {NC}")
    A("s_cbranch_scc1 L_end")
    A("s_load_dwordx16 s[4:19], s[0:1], 0")
    A("s_load_dwordx8 s[20:27], s[0:1], 64")
    A(f"s_memrealtime {s(sRT,2)}")
    if diag: A(f"s_memtime {s(sST,2)}")
    A("v_lshrrev_b32 v3, 6, v0")
    A(f"v_and_b32 {v(vL)}, 63, v0")
    A(f"v_readfirstlane_b32 {s(sWAVE)}, v3")
    A(f"v_mov_b32 {v(vONE)}, 1")
    for i in range(4): A(f"v_mov_b32 {v(vZ+i)}, 0")
    A.c("workgroups that share an XCD under round-robin placement get one slice and adjacent buckets")
    A(f"s_and_b32 {s(sSL)}, s2, 1")
    A(f"s_bfe_u32 {s(sT0)}, s2, 0x20001")
    A(f"s_mul_i32 {s(sT1)}, {s(sT0)}, 31")
    A(f"s_min_u32 {s(sT0)}, {s(sT0)}, 1")
    A(f"s_lshr_b32 {s(sBKT)}, s2, 3")
    A(f"s_add_u32 {s(sBKT)}, {s(sBKT)}, {s(sT0)}")
    A(f"s_add_u32 {s(sBKT)}, {s(sBKT)}, {s(sT1)}")
    if OPT.get('badmap'):
        A.c("experiment: XCD-unfriendly map")
        A(f"s_cmp_ge_u32 s2, {NB}")
        A(f"s_cselect_b32 {s(sSL)}, 1, 0")
        A(f"s_cselect_b32 {s(sT0)}, {NB}, 0")
        A(f"s_sub_u32 {s(sBKT)}, s2, {s(sT0)}")
    A(f"s_cmp_lt_u32 {s(sWAVE)}, 5")
    A("s_cbranch_scc0 L_roleG")

    vD, vS, vE, vBA, vR = 8, 12, 16, 24, 28
    vCA, vSUM, vINC, vSTA = 34, 36, 37, 38
    A.c("role P: zero the small LDS area")
    A("s_setprio 3")
    A("v_lshlrev_b32 v3, 4, v0")
    A(f"v_cmp_gt_u32 vcc, {L_WC//16}, v0")
    A(f"s_and_saveexec_b64 {s(sEX,2)}, vcc")
    A(f"ds_write_b128 v3, {v(vZ,4)}")
    A(f"s_mov_b64 exec, {s(sEX,2)}")
    A(f"s_mul_i32 s3, s2, {CE*4}")
    A("v_lshlrev_b32 v62, 5, v0")
    A("s_waitcnt lgkmcnt(0)")
    if OPT.get('wsoff'): add64(A, sWS, sWS, OPT['wsoff'] << 20)
    add64(A, sDST, sDST, "s3")
    A(f"global_load_dwordx4 {v(vD,4)}, v3, {s(sDST,2)} {EF}")
    TF = OPT.get('tfirst', 0)
    def se_loads():
        A(f"global_load_dwordx4 {v(vS,4)}, v3, {s(sSRC,2)} {EF}")
        A(f"global_load_dwordx4 {v(vE,4)}, v62, {s(sE,2)} {EF}")
        A(f"global_load_dwordx4 {v(vE+4,4)}, v62, {s(sE,2)} offset:16 {EF}")
    add64(A, sSRC, sSRC, "s3")
    A("s_lshl_b32 s3, s3, 1")
    add64(A, sE, sE, "s3")
    if not TF: se_loads()
    A("s_barrier")
    A(f"s_mov_b32 {s(sT0)}, -{BN}")
    A(f"s_mov_b32 {s(sT1)}, {L_NS}")
    A(f"s_mul_i32 s3, s2, {RECSZ}")
    A(f"s_add_u32 s3, s3, {OFF_REC}")
    add64(A, sP0, sWS, "s3")
    A(f"v_lshlrev_b32 v33, 3, {v(vL)}")
    A(f"s_mul_i32 s3, {s(sWAVE)}, 3072")
    A(f"v_lshl_add_u32 v56, {v(vL)}, 4, s3")
    A(f"v_add_u32 v57, {L_NS}, v56")
    A(f"s_waitcnt vmcnt({0 if TF else 3})")
    A.stamp('pDst')
    for k in range(4): A(f"v_mul_u32_u24 {v(40+k)}, 52429, {v(vD+k)}")
    for k in range(4): A(f"v_lshrrev_b32 {v(40+k)}, 22, {v(40+k)}")
    for k in range(4):
        A(f"v_lshlrev_b32 {v(vBA+k)}, 2, {v(40+k)}")
        A(f"ds_add_rtn_u32 {v(vR+k)}, {v(vBA+k)}, {v(vONE)} offset:{L_CNT1}")
    for k in range(4): A(f"v_mad_i32_i24 {v(vD+k)}, {v(40+k)}, {s(sT0)}, {v(vD+k)}")
    A("s_waitcnt lgkmcnt(0)")
    if TF:
        lds_wait(A, vZ, 32, M_GI, 7, "gi")
        se_loads()
    A.stamp('pAt')
    lds_sync(A, vZ, vONE, 32, M_P1, 5, "p1")
    A.stamp('pB1')
    A(f"ds_read_b64 {v(vCA,2)}, v33 offset:{L_CNT1}")
    A("s_waitcnt lgkmcnt(0)")
    A(f"v_add_u32 {v(vSUM)}, {v(vCA)}, {v(vCA+1)}")
    A(f"v_add_u32 {v(vINC)}, {v(vCA)}, {v(vCA+1)}")
    wave_scan(A, vINC)
    A(f"v_sub_u32 {v(vSTA)}, {v(vINC)}, {v(vSUM)}")
    A(f"v_add_u32 {v(vSTA+1)}, {v(vSTA)}, {v(vCA)}")
    A(f"ds_write_b64 v33, {v(vSTA,2)} offset:{L_ST1}")
    for k in range(4):
        A(f"ds_read_b32 {v(40+k)}, {v(vBA+k)} offset:{L_ST1}")
    A("s_waitcnt vmcnt(0)")
    for k in range(4):
        A(f"v_lshl_or_b32 {v(vS+k)}, {v(vD+k)}, 16, {v(vS+k)}")
    for k in range(4):
        A(f"s_waitcnt lgkmcnt({3-k})" if k == 0 else f"s_waitcnt lgkmcnt({3-k+2*k})")
        A(f"v_add_u32 {v(40+k)}, {v(40+k)}, {v(vR+k)}")
        A(f"v_mad_u32_u24 {v(40+k)}, {v(40+k)}, 12, {s(sT1)}")
        A(f"ds_write2_b32 {v(40+k)}, {v(vE+2*k)}, {v(vE+2*k+1)} offset0:0 offset1:1")
        A(f"ds_write_b32 {v(40+k)}, {v(vS+k)} offset:8")
    A("s_waitcnt lgkmcnt(0)")
    A.stamp('pSc')
    lds_sync(A, vZ, vONE, 32, M_P2, 5, "p2")
    A.stamp('pB2')
    for k in range(3):
        A(f"ds_read_b128 {v(44+4*k,4)}, v57 offset:{1024*k}")
    for k in range(3):
        A(f"s_waitcnt lgkmcnt({2-k})")
        A(f"global_store_dwordx4 v56, {v(44+4*k,4)}, {s(sP0,2)} offset:{1024*k} {SF}")
    A("s_mov_b64 exec, 1")
    A(f"ds_add_u32 {v(vZ)}, {v(vONE)} offset:{M_CD}")
    A(f"ds_add_u32 {v(vZ)}, {v(vONE)} offset:{M_PO}")
    A("s_mov_b64 exec, -1")
    A.stamp('pOut')
    A(f"s_mul_i32 s3, s2, {GSTR}")
    A(f"s_add_u32 s3, s3, {OFF_G}")
    add64(A, sP0, sWS, "s3")
    A(f"v_lshl_or_b32 v58, {v(vCA)}, 11, {v(vSTA)}")
    A(f"v_lshl_or_b32 v60, {v(vCA+1)}, 11, {v(vSTA+1)}")
    A(f"v_lshlrev_b32 v56, 4, {v(vL)}")
    nonce_lds(A, vZ, 40, "p")
    A(f"v_or_b32 v58, {s(sNON+1)}, v58")
    A(f"v_or_b32 v60, {s(sNON+1)}, v60")
    A(f"v_mov_b32 v59, {s(sNON)}")
    A(f"v_mov_b32 v61, {s(sNON)}")
    A("s_mov_b64 exec, 1")
    A("s_waitcnt vmcnt(0)")
    A.stamp('pDrain')
    A(f"ds_add_rtn_u32 v42, {v(vZ)}, {v(vONE)} offset:{M_CTRA}")
    A("s_mov_b64 exec, -1")
    A("s_waitcnt lgkmcnt(0)")
    A("v_readfirstlane_b32 s3, v42")
    A("s_cmp_eq_u32 s3, 4")
    A("s_cbranch_scc0 L_p_done")
    if OPT.get('prew', 1): lds_wait(A, vZ, 42, M_CD, 10, "pw")
    A(f"global_store_dwordx4 v56, v[58:61], {s(sP0,2)} sc1")
    A.stamp('pPub')
    A.lab("L_p_done")
    A("s_setprio 0")
    A("s_branch L_phase2")

    A.lab("L_roleG")
    vB15, vG4 = 8, 9
    A(f"v_and_b32 {v(vB15)}, 15, {v(vL)}")
    A(f"v_lshrrev_b32 {v(vG4)}, 4, {v(vL)}")
    A.c("x DMA lane offset: r*256 + ((j^r)*16)")
    A(f"v_xor_b32 v10, {v(vB15)}, {v(vG4)}")
    A("v_lshlrev_b32 v10, 4, v10")
    A(f"v_lshl_add_u32 v10, {v(vG4)}, 8, v10")
    A.c("W DMA lane offset: r8*256 + ((j^(2*((r8>>1)&1)))*16) + slice*128")
    A(f"v_lshrrev_b32 v11, 3, {v(vL)}")
    A(f"v_and_b32 v12, 7, {v(vL)}")
    A("v_and_b32 v13, 2, v11")
    A("v_xor_b32 v12, v12, v13")
    A("v_lshlrev_b32 v12, 4, v12")
    A("v_lshl_add_u32 v12, v11, 8, v12")
    A(f"s_lshl_b32 s3, {s(sSL)}, 7")
    A("v_add_u32 v12, s3, v12")
    A(f"s_lshr_b32 {s(sK)}, s2, 3")
    A(f"s_and_b32 {s(sT0)}, {s(sK)}, 1")
    A(f"s_lshl_b32 {s(sT0)}, {s(sT0)}, 6")
    A(f"v_xor_b32 v12, {s(sT0)}, v12")
    A("v_xor_b32 v13, 64, v12")
    A(f"s_mov_b32 {s(sSRD+3)}, 0x20000")
    A(f"s_xor_b32 {s(sT0)}, {s(sWAVE)}, 15")
    A(f"s_or_b32 {s(sT0)}, {s(sT0)}, s2")
    A("s_waitcnt lgkmcnt(0)")
    if OPT.get('wsoff'):
        A(f"s_cselect_b32 {s(sT1)}, 1, 0")
        add64(A, sWS, sWS, OPT['wsoff'] << 20)
        A(f"s_cmp_lg_u32 {s(sT1)}, 0")
    A("s_cbranch_scc1 L_g_nn")
    A.c("workgroup 0 publishes the launch nonce in d_debug")
    A(f"s_or_b32 {s(sT0)}, {s(sRT)}, 1")
    A(f"s_lshl_b32 {s(sT1)}, {s(sRT+1)}, 22")
    A(f"v_mov_b32 v14, {s(sT0)}")
    A(f"v_mov_b32 v15, {s(sT1)}")
    A("s_mov_b64 exec, 1")
    A(f"global_store_dwordx2 {v(vZ)}, v[14:15], {s(sDBG,2)} sc1")
    A("s_mov_b64 exec, -1")
    A.lab("L_g_nn")
    if OPT.get('prew', 1):
        A.c("bring this workgroup's hand-off lines on chip (with no valid tag) long before anyone polls them")
        A(f"s_cmp_eq_u32 {s(sWAVE)}, 5")
        A("s_cbranch_scc0 L_g_nopw")
        A(f"s_mul_i32 {s(sT0)}, s2, {GSTR}")
        A(f"s_add_u32 {s(sT0)}, {s(sT0)}, {OFF_G}")
        A(f"v_lshl_add_u32 v16, {v(vL)}, 4, {s(sT0)}")
        A(f"global_store_dwordx4 v16, {v(vZ,4)}, {s(sWS,2)} sc1")
        A(f"s_mul_i32 {s(sT0)}, {s(sSL)}, {NB*128}")
        A(f"s_lshl_b32 {s(sT1)}, {s(sBKT)}, 7")
        A(f"s_add_u32 {s(sT0)}, {s(sT0)}, {s(sT1)}")
        A(f"s_add_u32 {s(sT0)}, {s(sT0)}, {OFF_F2}")
        A(f"v_lshl_add_u32 v16, {v(vL)}, 4, {s(sT0)}")
        A("s_mov_b64 exec, 0xff")
        A(f"global_store_dwordx4 v16, {v(vZ,4)}, {s(sWS,2)} sc1")
        A("s_mov_b64 exec, -1")
        A.lab("L_g_nopw")
    if OPT.get('wpf', 1):
        A(f"s_cmp_eq_u32 {s(sWAVE)}, 14")
        A("s_cbranch_scc0 L_g_nowpf")
        A.c("16 of the 512 weight lines of this slice per workgroup: row = 4k + (l&3), matrix = (l>>2)&3")
        A(f"s_and_b32 {s(sT0)}, {s(sK)}, 31")
        A(f"s_lshl_b32 {s(sT0)}, {s(sT0)}, 10")
        A(f"s_add_u32 {s(sT0)}, {s(sT0)}, s3")
        A(f"v_and_b32 v16, 3, {v(vL)}")
        A(f"v_lshl_add_u32 v16, v16, 8, {s(sT0)}")
        for m, p in enumerate((sWB, sWV, sWA, sWU)):
            A(f"s_mov_b64 exec, {hex(15 << (4*m))}")
            A(f"global_load_dword v17, v16, {s(p,2)}")
        A("s_mov_b64 exec, -1")
        A.lab("L_g_nowpf")
    A("s_barrier")
    A(f"s_cmp_ge_u32 {s(sWAVE)}, 10")
    A("s_cbranch_scc1 L_g_wdma")
    A(f"s_cmp_eq_u32 {s(sWAVE)}, 6")
    A("s_cbranch_scc0 L_g_not6")
    A.c("wave 6: w_c columns of this slice")
    A(f"v_lshl_add_u32 v14, {v(vL)}, 1, s3")
    for j in range(4):
        A(f"global_load_ushort {v(90+j)}, v14, {s(sWC,2)} offset:{256*j}")
    A.lab("L_g_not6")
    A(f"s_cmp_eq_u32 {s(sWAVE)}, 7")
    A("s_cbranch_scc0 L_g_xdma")
    A.c("wave 7: this workgroup's null table row, and pull the code into L2")
    A(f"s_mul_i32 {s(sT0)}, {s(sSL)}, {TS}")
    A(f"s_lshl_b32 {s(sT1)}, {s(sBKT)}, 8")
    A(f"s_add_u32 {s(sT0)}, {s(sT0)}, {s(sT1)}")
    A(f"s_add_u32 {s(sT0)}, {s(sT0)}, {N*256}")
    add64(A, sP0, sWS, s(sT0))
    A("v_mov_b32 v16, 0x50005000")
    A("v_mov_b32 v17, 0x50005000")
    A("v_mov_b32 v18, 0")
    A("v_mov_b32 v19, 0")
    A(f"v_lshlrev_b32 v14, 4, {v(vL)}")
    A("s_mov_b64 exec, 0xffff")
    A(f"global_store_dwordx4 v14, v[16:19], {s(sP0,2)} sc1")
    A("s_mov_b64 exec, -1")
    A(f"s_getpc_b64 {s(sP1,2)}")
    A.lab("L_pc")
    A(f"v_lshlrev_b32 v14, 7, {v(vL)}")
    A("v_min_u32 v14, L_end-L_pc, v14")
    A(f"global_load_dword v15, v14, {s(sP1,2)}")
    A.lab("L_g_xdma")
    if OPT.get('gx', 0): lds_wait(A, vZ, 11, M_P1, OPT.get('gx', 0), "gx", 1)
    A(f"s_mov_b32 {s(sSRD)}, {s(sX)}")
    A(f"s_mov_b32 {s(sSRD+1)}, {s(sX+1)}")
    A(f"s_mov_b32 {s(sSRD+2)}, {N*256}")
    A(f"s_sub_u32 {s(sT0)}, {s(sWAVE)}, 5")
    A(f"s_lshl_b32 {s(sT0)}, {s(sT0)}, 12")
    A(f"s_mul_i32 {s(sT1)}, {s(sBKT)}, {BN*256}")
    A(f"s_add_u32 {s(sT1)}, {s(sT1)}, {s(sT0)}")
    A(f"s_add_u32 m0, {s(sT0)}, {L_XS}")
    for u in range(4):
        if u:
            A(f"v_xor_b32 v14, {u<<6}, v10")
            A(f"s_add_u32 {s(sT1)}, {s(sT1)}, 1024")
            A("s_add_u32 m0, m0, 1024")
        A("s_nop 0")
        A(f"buffer_load_dwordx4 {'v14' if u else 'v10'}, {s(sSRD,4)}, {s(sT1)} offen {XF_} lds")
    lds_signal(A, vZ, vONE, M_XI)
    A(f"s_cmp_lt_u32 {s(sWAVE)}, 8")
    A("s_cbranch_scc1 L_g_b0")
    A.lab("L_g_wdma")
    A.c("W staging: waves 8..15, matrix (w-8)>>1 in order w_b, w_v, w_a, w_u")
    A(f"s_cmp_ge_u32 {s(sWAVE)}, 10")
    A(f"s_cselect_b64 {s(sSRD,2)}, {s(sWV,2)}, {s(sWB,2)}")
    A(f"s_cmp_ge_u32 {s(sWAVE)}, 12")
    A(f"s_cselect_b64 {s(sSRD,2)}, {s(sWA,2)}, {s(sSRD,2)}")
    A(f"s_cmp_ge_u32 {s(sWAVE)}, 14")
    A(f"s_cselect_b64 {s(sSRD,2)}, {s(sWU,2)}, {s(sSRD,2)}")
    A(f"s_mov_b32 {s(sSRD+2)}, 32768")
    A(f"s_sub_u32 {s(sT0)}, {s(sWAVE)}, 8")
    A(f"s_lshl_b32 {s(sT0)}, {s(sT0)}, 13")
    A(f"s_add_u32 {s(sT0)}, {s(sT0)}, {L_W}")
    A(f"s_and_b32 {s(sT1)}, {s(sWAVE)}, 1")
    A(f"s_lshl_b32 {s(sT1)}, {s(sT1)}, 14")
    A(f"s_cmp_eq_u32 {s(sWAVE)}, 15")
    A("s_cbranch_scc0 L_g_non")
    lds_wait(A, vZ, 11, M_P1, 5, "n15", 1)
    A(f"global_load_dwordx2 v[14:15], {v(vZ)}, {s(sDBG,2)} sc1")
    A("s_waitcnt vmcnt(0)")
    nonce_get(A, vZ, 14, "w")
    A("v_or_b32 v14, 1, v14")
    A(f"ds_write_b64 {v(vZ)}, v[14:15] offset:{M_NONCE}")
    A.lab("L_g_non")
    if OPT.get('gw', 6) == 1: lds_wait(A, vZ, 11, M_CD, 5, "gw", 1)
    if OPT.get('gw', 6) == 2:
        A(f"s_cmp_lt_u32 {s(sWAVE)}, 12")
        A("s_cbranch_scc1 L_gw2")
        lds_wait(A, vZ, 11, M_PO, 5, "gw", 1)
        A.lab("L_gw2")
    if OPT.get('gw', 6) in (5, 6):
        A(f"s_cmp_lt_u32 {s(sWAVE)}, 12")
        A("s_cbranch_scc1 L_gw5")
        if OPT.get('gw', 6) == 5: lds_wait(A, vZ, 11, M_GI, 7, "gwa", 1)
        else: lds_wait(A, vZ, 11, M_PO, 5, "gwa", 1)
        A.lab("L_gw5")
        lds_wait(A, vZ, 11, M_XI, 5, "gwb", 1)
    if OPT.get('gw', 6) == 3: lds_wait(A, vZ, 11, M_P2, 1, "gw", 1)
    if OPT.get('gw', 6) == 4: lds_wait(A, vZ, 11, M_P1, 5, "gw", 1)
    A.c("each workgroup starts at a different row block so an XCD fetches all of W at once")
    for u in range(8):
        A(f"s_and_b32 {s(sK)}, {s(sK)}, 7")
        A(f"s_lshl_b32 {s(sT2)}, {s(sK)}, 10")
        A(f"s_add_u32 m0, {s(sT0)}, {s(sT2)}")
        A(f"s_lshl1_add_u32 {s(sT2)}, {s(sT2)}, {s(sT1)}")
        A(f"buffer_load_dwordx4 {'v13' if u&1 else 'v12'}, {s(sSRD,4)}, {s(sT2)} offen {WF} lds")
        A.stamp(f'w{u}')
        if u < 7 and not OPT.get('norot2'): A(f"s_add_u32 {s(sK)}, {s(sK)}, 1")
    A.lab("L_g_b0")
    A(f"s_cmp_lt_u32 {s(sWAVE)}, 12")
    A("s_cbranch_scc0 L_g_nogi")
    lds_signal(A, vZ, vONE, M_GI)
    A.lab("L_g_nogi")
    A.c("GEMM addresses while the loads fly")
    vA, vACC, vBR, vTA = 16, 32, 64, 84
    NR = 5
    A(f"s_cmp_ge_u32 {s(sWAVE)}, 10")
    A(f"s_cselect_b32 {s(sT2)}, 10, 5")
    A(f"s_cselect_b32 {s(sT3)}, 32768, 0")
    A(f"s_add_u32 {s(sT3)}, {s(sT3)}, {L_W}")
    A(f"s_sub_u32 {s(sT2)}, {s(sWAVE)}, {s(sT2)}")
    A(f"s_lshl_b32 {s(sT4)}, {s(sT2)}, 12")
    A(f"s_add_u32 {s(sT4)}, {s(sT4)}, {L_XS}")
    A(f"v_xor_b32 v10, {v(vB15)}, {v(vG4)}")
    A("v_lshlrev_b32 v10, 4, v10")
    A(f"v_lshl_add_u32 v10, {v(vB15)}, 8, v10")
    A(f"v_bfe_u32 v11, {v(vL)}, 2, 2")
    A(f"v_lshl_add_u32 v12, {v(vG4)}, 3, v11")
    A("v_lshlrev_b32 v12, 7, v12")
    A(f"v_and_b32 v13, 3, {v(vL)}")
    A("v_lshl_add_u32 v12, v13, 3, v12")
    A(f"v_add_u32 v12, {s(sT3)}, v12")
    A("v_lshrrev_b32 v11, 1, v11")
    A(f"v_and_b32 v13, 1, {v(vG4)}")
    A("v_lshl_or_b32 v11, v13, 1, v11")
    for i in range(4):
        A(f"v_xor_b32 v13, {i}, v11")
        A(f"v_lshl_add_u32 {v(vTA+i)}, v13, 5, v12")
    A.stamp('gIss')
    A("s_waitcnt vmcnt(0)")
    A.stamp('gX')
    A(f"s_cmp_ge_u32 {s(sWAVE)}, 12")
    A(f"s_cselect_b32 s3, 0x10000, 1")
    A("v_mov_b32 v11, s3")
    lds_signal(A, vZ, 11, M_G)
    A(f"s_cmp_eq_u32 {s(sWAVE)}, 15")
    A("s_cbranch_scc1 L_phase2")

    A(f"s_cmp_eq_u32 {s(sWAVE)}, 6")
    A("s_cbranch_scc0 L_g_not6b")
    A.c("wave 6: wc' = bf16(-log2e * w_c) -> LDS")
    for j in range(4):
        A(f"v_lshlrev_b32 {v(90+j)}, 16, {v(90+j)}")
    for j in range(4):
        A(f"v_mul_f32 {v(90+j)}, {hex(NL2E)}, {v(90+j)}")
    A("v_cvt_pk_bf16_f32 v90, v90, v91")
    A("v_cvt_pk_bf16_f32 v91, v92, v93")
    A(f"v_lshlrev_b32 v92, 3, {v(vL)}")
    A(f"ds_write_b64 v92, v[90:91] offset:{L_WC}")
    A.lab("L_g_not6b")
    for ks in range(4):
        A(f"v_xor_b32 {v(88+ks)}, {ks<<6}, v10")
        A(f"v_add_u32 {v(88+ks)}, {s(sT4)}, {v(88+ks)}")
    A(f"s_cmp_ge_u32 {s(sWAVE)}, 10")
    A(f"s_cselect_b32 {s(sP0+1)}, -1, 0xffff")
    A(f"s_cselect_b32 {s(sP0)}, 0x40007, 7")
    A.lab("L_lw_g")
    A(f"ds_read_b32 v11, {v(vZ)} offset:{M_G}")
    A("s_waitcnt lgkmcnt(0)")
    A("v_readfirstlane_b32 s3, v11")
    A(f"s_and_b32 s3, s3, {s(sP0+1)}")
    A(f"s_cmp_eq_u32 s3, {s(sP0)}")
    A("s_cbranch_scc0 L_lw_g")
    A.stamp('gB3')
    for ks in range(4):
        A(f"ds_read_b128 {v(vA+4*ks,4)}, {v(88+ks)}")
    def rd(n):
        ks, q = n >> 3, n & 7
        b = vBR + 4 * (n % NR)
        off = ks * 4096 + (q >> 2) * 16384
        A(f"ds_read_b64_tr_b16 {v(b,2)}, {v(vTA+(q&3))} offset:{off}")
        A(f"ds_read_b64_tr_b16 {v(b+2,2)}, {v(vTA+(q&3))} offset:{off+512}")
    for n in range(NR): rd(n)
    A(f"s_cmp_ge_u32 {s(sWAVE)}, 10")
    A("s_cbranch_scc1 L_g_mm")
    A("s_setprio 2")
    A(f"s_waitcnt lgkmcnt({2*NR})")
    lds_signal(A, vZ, vONE, M_CD)
    A.lab("L_g_mm")
    for n in range(32):
        ks, q = n >> 3, n & 7
        left = min(NR - 1, 31 - n)
        A(f"s_waitcnt lgkmcnt({2*left})")
        b = vBR + 4 * (n % NR)
        c = "0" if ks == 0 else v(vACC + 4 * q, 4)
        A(f"v_mfma_f32_16x16x32_bf16 {v(vACC+4*q,4)}, {v(vA+4*ks,4)}, {v(b,4)}, {c}")
        if n + NR < 32: rd(n + NR)
    A.stamp('gMM')
    A(f"s_mov_b32 {s(sP1)}, {hex(NL2E)}")
    A(f"s_cmp_ge_u32 {s(sWAVE)}, 10")
    A("s_cbranch_scc1 L_g_xa")

    A.c("table rows: [XB' x4 | HV x4] per channel group")
    A(f"s_mul_i32 {s(sT0)}, {s(sSL)}, {TS}")
    A(f"s_mul_i32 {s(sT1)}, {s(sBKT)}, {BN*256}")
    A(f"s_add_u32 {s(sT0)}, {s(sT0)}, {s(sT1)}")
    A(f"s_lshl_b32 {s(sT1)}, {s(sT2)}, 12")
    A(f"s_add_u32 {s(sT0)}, {s(sT0)}, {s(sT1)}")
    add64(A, sP0, sWS, s(sT0))
    A(f"v_lshlrev_b32 v10, 4, {v(vB15)}")
    A(f"v_lshl_add_u32 v10, {v(vG4)}, 10, v10")
    for ip in range(4):
        o = vBR + 4 * ip
        for q in range(4):
            A(f"v_mul_f32 {v(vACC+4*q+ip)}, {s(sP1)}, {v(vACC+4*q+ip)}")
        for d in (2, 3, 0, 1):
            A(f"v_cvt_pk_bf16_f32 {v(o+d)}, {v(vACC+8*d+ip)}, {v(vACC+8*d+4+ip)}")
        A(f"global_store_dwordx4 v10, {v(o,4)}, {s(sP0,2)} offset:{256*ip} {SF}")
    A("s_setprio 0")
    A("s_branch L_phase2")
    A.lab("L_g_xa")
    lds_wait(A, vZ, 11, M_CD, 10, "cd")
    A.c("xa' = -log2e*(x@w_a) - SHIFT into the node structs, xu into the x stage (swizzled)")
    A(f"s_mul_i32 {s(sT0)}, {s(sT2)}, {16*NSTR}")
    A(f"s_add_u32 {s(sT0)}, {s(sT0)}, {L_NS}")
    A(f"v_mul_u32_u24 v10, {4*NSTR}, {v(vG4)}")
    A(f"v_mad_u32_u24 v10, {v(vB15)}, 48, v10")
    A(f"v_add_u32 v10, {s(sT0)}, v10")
    A(f"v_mov_b32 v11, {hex(f2u(-float(SHIFT)))}")
    A(f"v_lshlrev_b32 v12, 2, {v(vB15)}")
    A(f"v_lshl_add_u32 v12, {v(vG4)}, 10, v12")
    A(f"v_add_u32 v12, {s(sT4)}, v12")
    for ip in range(4):
        o = vBR + 4 * ip
        for i in range(4):
            A(f"v_fma_f32 {v(o+i)}, {v(vACC+4*i+ip)}, {s(sP1)}, v11")
        A(f"ds_write_b128 v10, {v(o,4)} offset:{NSTR*ip}")
    A(f"v_mul_u32_u24 v11, {NSTR}, {v(vB15)}")
    A(f"v_add_u32 v11, {s(sT0)}, v11")
    A(f"ds_write_b64 v11, {v(vZ,2)} offset:768")
    for ip in range(4):
        if ip: A(f"v_xor_b32 v13, {ip<<4}, v12")
        a = "v13" if ip else "v12"
        for i in (0, 2):
            A(f"ds_write2_b32 {a}, {v(vACC+16+4*i+ip)}, {v(vACC+20+4*i+ip)} offset0:{64*ip+16*i} offset1:{64*ip+16*i+16}")

    A.lab("L_phase2")
    A.stamp('ph2')
    T = [[8, 12], [16, 20]]; H = [[24, 28], [32, 36]]
    P, S, AA, DEN, NUM, XA = 40, 44, 48, 52, 56, 60
    LB = [[64, 70], [76, 82]]
    AE = [88, 92]; IDX = 96; IDM = 100; CB = 102
    vIA, vEA, vEI, vPTR, vZA, vEVB = 104, 105, 106, 107, 108, 109
    vB15, vG4, vGW, vGA, vRB = 110, 111, 112, 114, 115
    vX = 116
    vEIGHT = 3
    vOUT, vDN, vXU, vXL, vNSA, vXA_, vSID = 120, 121, 122, 123, 124, 125, 126
    RB = lambda j: 8 + 4 * j
    vCI = 40
    A(f"v_and_b32 {v(vB15)}, 15, {v(vL)}")
    A(f"v_lshrrev_b32 {v(vG4)}, 4, {v(vL)}")
    A.c("granule of chunk c = 16w + 4(l&15) + (l>>4), lanes with (l&15) < 4")
    A(f"v_lshl_add_u32 v3, {v(vB15)}, 2, {v(vG4)}")
    A(f"s_lshl_b32 s3, {s(sWAVE)}, 4")
    A("v_add_u32 v3, s3, v3")
    A(f"v_cmp_gt_u32 vcc, {NC}, v3")
    A(f"s_mov_b32 {s(sEX)}, 0x000f000f")
    A(f"s_mov_b32 {s(sEX+1)}, 0x000f000f")
    A(f"s_and_b64 {s(sEX,2)}, {s(sEX,2)}, vcc")
    A(f"v_mul_u32_u24 {v(vGA)}, {GSTR}, v3")
    A(f"s_lshl_b32 {s(sT0)}, {s(sBKT)}, 3")
    A(f"s_add_u32 {s(sT0)}, {s(sT0)}, {OFF_G}")
    A(f"v_add_u32 {v(vGA)}, {s(sT0)}, {v(vGA)}")
    A(f"v_mov_b32 {v(vGW)}, 0")
    A.c("constants for the edge loop")
    A(f"v_add_u32 v3, s3, {v(vG4)}")
    A(f"v_mul_u32_u24 {v(vRB)}, {RECSZ}, v3")
    A(f"v_mad_u32_u24 {v(vRB)}, {v(vB15)}, 12, {v(vRB)}")
    add64(A, sSRD, sWS, OFF_REC)
    A(f"s_mov_b32 {s(sSRD+2)}, {NC*RECSZ}")
    A(f"s_mov_b32 {s(sSRD+3)}, 0x20000")
    A(f"s_mul_i32 {s(sT0)}, {s(sSL)}, {TS}")
    add64(A, sTAB, sWS, s(sT0))
    A(f"s_or_b32 {s(sTAB+1)}, {s(sTAB+1)}, {OPT.get('tstride', 256)<<16}")
    A(f"s_mov_b32 {s(sTAB+2)}, {OPT.get('nrows', NROWS)}")
    A(f"s_mov_b32 {s(sTAB+3)}, 0x20000")
    for j in range(1, 4): A(f"s_mov_b32 {s(sJ+j-1)}, {j*4*RECSZ}")
    A(f"s_mov_b32 {s(sLO)}, 0")
    A(f"s_mov_b32 {s(sMODE)}, 0")
    A(f"s_mov_b64 {s(sWM,2)}, -1")
    A(f"s_mov_b64 {s(sP1M,2)}, -1")
    A(f"v_and_b32 v3, 1, {v(vL)}")
    A("v_lshlrev_b32 v3, 4, v3")
    A(f"v_mov_b32 v8, 0x3f80")
    A("v_lshlrev_b32 v3, v3, v8")
    A(f"v_and_b32 v8, 2, {v(vL)}")
    A("v_cmp_eq_u32 vcc, 0, v8")
    A(f"v_bfe_u32 v9, {v(vL)}, 2, 2")
    A(f"v_cmp_eq_u32 {s(sP0,2)}, v9, {v(vG4)}")
    A(f"v_cndmask_b32 {v(IDM)}, 0, v3, vcc")
    A(f"v_cndmask_b32 {v(IDM+1)}, v3, 0, vcc")
    A(f"v_and_b32 v8, 3, {v(vL)}")
    for x in AE:
        A(f"v_cndmask_b32 {v(x+2)}, 0, {v(IDM)}, {s(sP0,2)}")
        A(f"v_cndmask_b32 {v(x+3)}, 0, {v(IDM+1)}, {s(sP0,2)}")
    A(f"v_cmp_eq_u32 vcc, v8, {v(vG4)}")
    A(f"v_mov_b32 {v(CB)}, {hex(CBF | CBF << 16)}")
    A(f"v_mov_b32 {v(CB+1)}, {hex(CBF | CBF << 16)}")
    A(f"v_cndmask_b32 {v(vEI)}, 0, 32, vcc")
    A(f"v_lshlrev_b32 {v(IDX+1)}, 4, {v(vB15)}")
    A(f"v_lshlrev_b32 {v(IDX+3)}, 4, {v(vB15)}")
    A(f"v_mov_b32 {v(vZA)}, {L_ZERO}")
    A.c("table flag f = 8w + l (lanes 0..7); prefetch share: block 8w + (l&7), line 5k + (l>>3)")
    A(f"s_lshl_b32 s3, {s(sWAVE)}, 3")
    A(f"v_add_u32 v48, s3, {v(vL)}")
    A(f"v_cmp_gt_u32 vcc, {NB}, v48")
    A(f"s_and_b64 {s(sF2M,2)}, vcc, 0xff")
    A(f"s_mul_i32 {s(sT0)}, {s(sSL)}, {NB*128}")
    A(f"s_add_u32 {s(sT0)}, {s(sT0)}, {OFF_F2}")
    A(f"v_lshl_add_u32 v56, v48, 7, {s(sT0)}")
    A(f"v_and_b32 v48, 7, {v(vL)}")
    A("v_add_u32 v48, s3, v48")
    A(f"v_cmp_gt_u32 vcc, {NB}, v48")
    A(f"s_bfm_b64 {s(sPFM,2)}, {8*OPT.get('pf', 2)}, 0")
    A(f"s_and_b64 {s(sPFM,2)}, {s(sPFM,2)}, vcc")
    A(f"s_mul_i32 {s(sT0)}, {s(sSL)}, {TS}")
    A(f"v_mul_u32_u24 v48, {BN*256}, v48")
    A(f"v_add_u32 v48, {s(sT0)}, v48")
    A(f"v_lshrrev_b32 v49, 3, {v(vL)}")
    A("s_lshr_b32 s3, s2, 3")
    A("s_mul_i32 s3, s3, 5")
    A("v_add_u32 v49, s3, v49")
    A("v_lshl_add_u32 v119, v49, 7, v48")
    A(f"v_lshlrev_b32 v57, 3, {v(vL)}")
    A.c("addresses for the end of the streams and for the output pass")
    A(f"s_lshl_b32 {s(sT0)}, {s(sWAVE)}, 2")
    A(f"v_add_u32 {v(vSID)}, {s(sT0)}, {v(vG4)}")
    A(f"v_mul_u32_u24 {v(vXA_)}, {XSTR}, {v(vSID)}")
    A(f"v_lshl_add_u32 {v(vXA_)}, {v(vB15)}, 5, {v(vXA_)}")
    A(f"v_add_u32 {v(vXA_)}, {L_EXT}, {v(vXA_)}")
    A(f"v_lshrrev_b32 v8, 5, {v(vL)}")
    A(f"v_and_b32 v9, 3, {v(vL)}")
    A(f"v_bfe_u32 v10, {v(vL)}, 2, 3")
    A(f"s_lshl_b32 {s(sT2)}, {s(sWAVE)}, 3")
    A(f"v_add_u32 v10, {s(sT2)}, v10")
    A("v_lshl_add_u32 v11, v9, 1, v8")
    A("v_lshlrev_b32 v12, 4, v11")
    A("v_lshl_add_u32 v12, v10, 8, v12")
    A(f"s_mul_i32 {s(sT0)}, {s(sBKT)}, {BN*256}")
    A(f"s_lshl_b32 {s(sT1)}, {s(sSL)}, 7")
    A(f"s_add_u32 {s(sT0)}, {s(sT0)}, {s(sT1)}")
    A(f"v_add_u32 {v(vOUT)}, {s(sT0)}, v12")
    A(f"v_mul_u32_u24 {v(vNSA)}, {NSTR}, v10")
    A(f"v_add_u32 {v(vNSA)}, {L_NS}, {v(vNSA)}")
    A("v_mul_u32_u24 v14, 384, v8")
    A("v_lshl_add_u32 v14, v9, 2, v14")
    A(f"v_add3_u32 {v(vDN)}, {v(vNSA)}, v14, 16")
    A("v_lshlrev_b32 v14, 2, v9")
    A("v_lshl_add_u32 v14, v8, 8, v14")
    A(f"v_add_u32 {v(vXL)}, {L_EXT}, v14")
    A("v_and_b32 v14, 3, v10")
    A("v_lshlrev_b32 v15, 1, v11")
    A("v_xor_b32 v14, v14, v15")
    A("v_lshlrev_b32 v14, 4, v14")
    A("v_lshl_add_u32 v14, v10, 8, v14")
    A(f"v_add_u32 {v(vXU)}, {L_XS}, v14")
    A(f"v_mul_u32_u24 v127, 48, {v(vB15)}")
    A(f"v_add_u32 v127, {L_NS-NSTR}, v127")
    A(f"v_mov_b32 {v(vEIGHT)}, 8")
    if diag or OPT.get('hold'): A(f"s_mov_b32 {s(sST+1)}, {s(sRT)}")
    A(f"s_mov_b64 {s(sDONE,2)}, 0")
    for j in range(8): A(f"s_mov_b64 {s(sMK+2*j,2)}, 0")
    A(f"s_mov_b32 {s(sSPIN)}, {SPIN}")
    A.c("table waves: once their stores have drained the last one raises the table flag")
    A(f"s_sub_u32 s3, {s(sWAVE)}, 5")
    A("s_cmp_lt_u32 s3, 5")
    A("s_cbranch_scc0 L_poll0")
    nonce_lds(A, vZ, 48, "t")
    A("s_waitcnt vmcnt(0)")
    A.stamp('tDrain')
    A("s_mov_b64 exec, 1")
    A(f"ds_add_rtn_u32 v48, {v(vZ)}, {v(vONE)} offset:{M_CTRB}")
    A(f"s_mul_i32 {s(sT0)}, {s(sSL)}, {NB*128}")
    A(f"s_lshl_b32 {s(sT1)}, {s(sBKT)}, 7")
    A(f"s_add_u32 {s(sT0)}, {s(sT0)}, {s(sT1)}")
    A(f"s_add_u32 {s(sT0)}, {s(sT0)}, {OFF_F2}")
    A(f"v_mov_b32 v49, {s(sT0)}")
    A(f"v_mov_b32 v50, {s(sNON)}")
    A(f"v_mov_b32 v51, {s(sNON+1)}")
    A("s_waitcnt lgkmcnt(0)")
    A("v_readfirstlane_b32 s3, v48")
    A("s_cmp_eq_u32 s3, 4")
    A("s_cbranch_scc0 L_poll0")
    A(f"global_store_dwordx2 v49, v[50:51], {s(sWS,2)} sc1")
    A.lab("L_poll0")
    A("s_mov_b64 exec, -1")
    lds_wait(A, vZ, 48, M_CTRA, 5, "pa", 1)
    if OPT.get('pgate', 1): lds_wait(A, vZ, 48, M_CTRB, 5, "pb", 1)
    nonce_lds(A, vZ, 48, "q")
    if OPT.get('pdelay'): A(f"s_sleep {OPT['pdelay']}")
    A(f"s_mov_b64 exec, {s(sEX,2)}")
    A(f"global_load_dwordx2 {v(vGW,2)}, {v(vGA)}, {s(sWS,2)} sc1")
    A("s_waitcnt vmcnt(0)")
    A.stamp('poll1')
    A.lab("L_poll")
    def f2_check(tag, skip):
        A(f"s_mov_b64 exec, {s(sF2M,2)}")
        if tag != "b": A(f"s_cbranch_execz {skip}")
        A(f"v_cmp_ne_u32 vcc, {s(sNON)}, v58")
        A(f"v_cmp_ne_u32 {s(sP0,2)}, {s(sNON+1)}, v59")
        A(f"s_or_b64 vcc, vcc, {s(sP0,2)}")
        A(f"s_cbranch_scc1 {skip}")
        if OPT.get('pf', 2):
            A(f"s_mov_b64 exec, {s(sPFM,2)}")
            A(f"global_load_dword v118, v119, {s(sWS,2)} sc1")
        A(f"s_mov_b64 {s(sF2M,2)}, 0")
    A.c("segments whose granule carries this launch's tag are fetched at once")
    A(f"s_andn2_b64 exec, {s(sEX,2)}, {s(sDONE,2)}")
    A(f"v_and_b32 v48, 0xffc00000, {v(vGW)}")
    A(f"v_cmp_eq_u32 vcc, {s(sNON)}, {v(vGW+1)}")
    A(f"v_cmp_eq_u32 {s(sP0,2)}, {s(sNON+1)}, v48")
    A("s_mov_b64 exec, -1")
    A(f"s_and_b64 {s(sP0,2)}, {s(sP0,2)}, vcc")
    A("s_cbranch_scc0 L_repoll")
    A(f"s_or_b64 {s(sDONE,2)}, {s(sDONE,2)}, {s(sP0,2)}")
    A.lab("L_round")
    A(f"v_cndmask_b32 v51, 0, {v(vGW)}, {s(sP0,2)}")
    for j in range(4):
        A(f"s_or_b32 s3, {s(sP0)}, {s(sP0+1)}")
        A(f"s_and_b32 s3, s3, {hex(0x10001 << j)}")
        A(f"s_cbranch_scc0 L_ld{4+j}")
        A(f"v_mov_b32_dpp v48, v51 row_newbcast:{j} row_mask:0xf bank_mask:0xf")
        A("v_and_b32 v49, 0x7ff, v48")
        A("v_bfe_u32 v50, v48, 11, 11")
        A(f"v_add_u32 v49, {s(sLO)}, v49")
        A(f"v_subrev_u32 v50, {s(sLO)}, v50")
        A(f"v_mad_u32_u24 v52, v49, 12, {v(vRB)}")
        A(f"v_cmp_lt_i32 vcc, {v(vB15)}, v50")
        A("v_subrev_u32 v50, 16, v50")
        A(f"v_cmp_lt_i32 {s(sP1,2)}, {v(vB15)}, v50")
        A(f"s_and_b64 exec, vcc, {s(sWM,2)}")
        A(f"s_cbranch_execz L_ld{j}")
        A(f"buffer_load_dwordx3 {v(RB(j),3)}, v52, {s(sSRD,4)}, {s(sJ+j-1) if j else 0} offen sc1")
        A(f"s_or_b64 {s(sMK+2*j,2)}, {s(sMK+2*j,2)}, exec")
        A(f"s_and_b64 exec, {s(sP1,2)}, {s(sP1M,2)}")
        A(f"s_cbranch_execz L_ld{j}")
        A(f"buffer_load_dwordx3 {v(RB(4+j),3)}, v52, {s(sSRD,4)}, {s(sJ+j-1) if j else 0} offen offset:192 sc1")
        A(f"s_or_b64 {s(sMK+8+2*j,2)}, {s(sMK+8+2*j,2)}, exec")
        A.lab(f"L_ld{j}")
        A("s_mov_b64 exec, -1")
        A.lab(f"L_ld{4+j}")
    A.lab("L_repoll")
    A(f"s_andn2_b64 exec, {s(sEX,2)}, {s(sDONE,2)}")
    A("s_cbranch_execz L_polled")
    A(f"s_sub_u32 {s(sSPIN)}, {s(sSPIN)}, 1")
    A("s_cbranch_scc1 L_polled")
    if OPT.get('psleep', 8): A(f"s_sleep {OPT.get('psleep', 8)}")
    A.stamp('plI')
    A(f"global_load_dwordx2 {v(vGW,2)}, {v(vGA)}, {s(sWS,2)} sc1")
    A("s_waitcnt vmcnt(0)")
    A("s_branch L_poll")
    A.lab("L_polled")
    A(f"s_mov_b64 exec, {s(sEX,2)}")
    A(f"v_bfe_u32 v48, {v(vGW)}, 11, 11")
    A(f"ds_max_u32 {v(vZ)}, v48 offset:{M_MAXLEN}")
    A("s_mov_b64 exec, -1")
    A.stamp('polled')
    if diag == 1: A(f"s_sub_u32 {s(sNPOLL)}, {SPIN}, {s(sSPIN)}")
    def f2_load():
        A(f"s_mov_b64 exec, {s(sF2M,2)}")
        A("s_cbranch_execz L_nof2")
        A(f"global_load_dwordx2 v[58:59], v56, {s(sWS,2)} sc1")
        A.lab("L_nof2")
        A("s_mov_b64 exec, -1")
    F2AT = OPT.get('f2at', 1)
    if F2AT == 0: f2_load()
    A("s_waitcnt vmcnt(0)")
    A.stamp('recs')
    if F2AT == 1: f2_load()
    for j in range(8):
        A(f"s_mov_b64 exec, {s(sMK+2*j,2)}")
        if j >= 4: A(f"s_cbranch_execz L_rk{j}")
        A(f"v_lshrrev_b32 {v(vCI+j)}, 14, {v(RB(j)+2)}")
        A(f"ds_add_rtn_u32 {v(RB(j)+3)}, {v(vCI+j)}, {v(vEIGHT)} offset:{L_CNT2}")
        if j >= 4: A.lab(f"L_rk{j}")
    if F2AT == 0:
        f2_check("a", "L_f2back")
        A.lab("L_f2back")
    A("s_mov_b64 exec, -1")
    A("s_waitcnt lgkmcnt(0)")
    A.stamp('rk')
    A("s_barrier")
    A.stamp('B5')
    vCA, vPA, vSUM, vINC, vSTA = 48, 50, 52, 53, 54
    A(f"ds_read_b64 {v(vCA,2)}, v57 offset:{L_CNT2}")
    A(f"ds_read_b32 v60, {v(vZ)} offset:{M_MAXLEN}")
    for bb in LB:
        for x in bb:
            A(f"ds_read_b64 {v(x,2)}, v57 offset:{L_WC}")
    A(f"v_cmp_gt_u32 vcc, {BN//2}, {v(vL)}")
    A("s_waitcnt lgkmcnt(4)")
    A.c("counts are in units of 8 bytes; vPA = bytes of e-list per node = 16 * max(2, ceil(n/2))")
    for k in range(2): A(f"v_add_u32 {v(vPA+k)}, 8, {v(vCA+k)}")
    for k in range(2): A(f"v_and_b32 {v(vPA+k)}, -16, {v(vPA+k)}")
    for k in range(2): A(f"v_max_u32 {v(vPA+k)}, 32, {v(vPA+k)}")
    for k in range(2): A(f"v_cndmask_b32 {v(vPA+k)}, 0, {v(vPA+k)}, vcc")
    A(f"v_readfirstlane_b32 {s(sMAXL)}, v60")
    A(f"v_add_u32 {v(vINC)}, {v(vPA)}, {v(vPA+1)}")
    A(f"v_subrev_u32 {v(vSUM)}, {L_E}, {v(vINC)}")
    wave_scan(A, vINC)
    A(f"v_sub_u32 {v(vSTA)}, {v(vINC)}, {v(vSUM)}")
    A(f"v_readlane_b32 {s(sTP)}, {v(vINC)}, 63")
    A(f"v_add_u32 {v(vSTA+1)}, {v(vPA)}, {v(vSTA)}")
    A(f"s_lshr_b32 {s(sTP)}, {s(sTP)}, 4")
    A.c("first round only: does everything fit in one round?")
    A(f"s_cmp_eq_u32 {s(sMODE)}, 0")
    A("s_cbranch_scc0 L_fits")
    A(f"s_cmp_gt_u32 {s(sMAXL)}, 32")
    A("s_cbranch_scc1 L_goslow")
    A(f"s_cmp_gt_u32 {s(sTP)}, {CAP_PAIRS}")
    A("s_cbranch_scc1 L_goslow")
    A.lab("L_fits")
    A(f"ds_write_b64 v57, {v(vSTA,2)} offset:{L_ST2}")
    for j in range(8):
        A(f"s_mov_b64 exec, {s(sMK+2*j,2)}")
        if j >= 4: A(f"s_cbranch_execz L_sr{j}")
        A(f"ds_read_b32 {v(vCI+j)}, {v(vCI+j)} offset:{L_ST2}")
        if j >= 4: A.lab(f"L_sr{j}")
    A("s_mov_b64 exec, -1")
    if F2AT == 1:
        A("s_waitcnt vmcnt(0)")
        f2_check("a", "L_f2back")
        A.lab("L_f2back")
        A("s_mov_b64 exec, -1")
    A.c("stream geometry")
    A(f"s_add_u32 {s(sT0)}, {s(sTP)}, 3")
    A(f"s_lshr_b32 {s(sT0)}, {s(sT0)}, 2")
    A(f"s_lshr_b32 {s(sT1)}, {s(sT0)}, 4")
    A(f"s_and_b32 {s(sT2)}, {s(sT0)}, 15")
    A(f"s_mul_i32 {s(sS)}, {s(sWAVE)}, {s(sT1)}")
    A(f"s_min_u32 {s(sT3)}, {s(sWAVE)}, {s(sT2)}")
    A(f"s_add_u32 {s(sS)}, {s(sS)}, {s(sT3)}")
    A(f"s_lshl_b32 {s(sS)}, {s(sS)}, 2")
    A(f"s_cmp_lt_u32 {s(sWAVE)}, {s(sT2)}")
    A(f"s_addc_u32 {s(sL)}, {s(sT1)}, 0")
    A(f"s_mov_b32 {s(sT1)}, {L_META}")
    A(f"s_mov_b32 {s(sT2)}, {L_E}")
    A.c("null padding: waves 0-7 pad nodes, wave 8 pads the tail")
    A(f"s_cmp_gt_u32 {s(sWAVE)}, 8")
    A("s_cbranch_scc1 L_nopad")
    A(f"s_cmp_eq_u32 {s(sWAVE)}, 8")
    A("s_cbranch_scc1 L_padtail")
    A(f"s_cmp_ge_u32 {s(sWAVE)}, 4")
    A(f"s_cselect_b64 vcc, -1, 0")
    A(f"s_cselect_b32 {s(sT3)}, 1, 0")
    A(f"s_and_b32 {s(sT4)}, {s(sWAVE)}, 3")
    A(f"s_lshl_b32 {s(sT4)}, {s(sT4)}, 3")
    A(f"v_cndmask_b32 v60, {v(vCA)}, {v(vCA+1)}, vcc")
    A(f"v_cndmask_b32 v61, {v(vPA)}, {v(vPA+1)}, vcc")
    A(f"v_cndmask_b32 v62, {v(vSTA)}, {v(vSTA+1)}, vcc")
    A(f"v_add_u32 v60, {s(sT4)}, v60")
    A("v_add_u32 v62, v62, v60")
    A("v_cmp_lt_u32 vcc, v60, v61")
    A(f"v_lshl_add_u32 v63, {v(vL)}, 1, {s(sT3)}")
    A("s_branch L_padwr")
    A.lab("L_padtail")
    A(f"s_lshl_b32 {s(sT3)}, {s(sTP)}, 1")
    A(f"s_lshl_b32 {s(sT4)}, {s(sT0)}, 3")
    A(f"v_add_u32 v62, {s(sT3)}, {v(vL)}")
    A(f"v_cmp_eq_u32 vcc, {s(sT4)}, v62")
    A(f"v_mov_b32 v63, {BN-1}")
    A("v_mov_b32 v61, 255")
    A("v_cndmask_b32 v63, v63, v61, vcc")
    A(f"v_cmp_ge_u32 vcc, {s(sT4)}, v62")
    A(f"v_lshl_add_u32 v62, v62, 3, {s(sT2)}")
    A.lab("L_padwr")
    A(f"s_add_u32 {s(sT3)}, {s(sBKT)}, {N}")
    A(f"v_lshl_or_b32 v63, v63, 16, {s(sT3)}")
    A("v_lshrrev_b32 v60, 1, v62")
    A("s_mov_b64 exec, vcc")
    A(f"ds_write_b32 v60, v63 offset:{L_META - L_E//2}")
    A(f"ds_write_b64 v62, {v(vZ,2)}")
    A("s_mov_b64 exec, -1")
    A.lab("L_nopad")
    A("s_waitcnt lgkmcnt(0)")
    for j in range(8):
        A(f"s_mov_b64 exec, {s(sMK+2*j,2)}")
        if j >= 4: A(f"s_cbranch_execz L_sw{j}")
        A(f"v_add_u32 {v(vCI+j)}, {v(vCI+j)}, {v(RB(j)+3)}")
        A(f"v_lshrrev_b32 {v(RB(j)+3)}, 1, {v(vCI+j)}")
        A(f"ds_write_b64 {v(vCI+j)}, {v(RB(j),2)}")
        A(f"ds_write_b32 {v(RB(j)+3)}, {v(RB(j)+2)} offset:{L_META - L_E//2}")
        if j >= 4: A.lab(f"L_sw{j}")
    A.c("stream addresses")
    A("s_mov_b64 exec, -1")
    A(f"v_mul_u32_u24 v60, {s(sL)}, {v(vG4)}")
    A(f"v_add_u32 v60, {s(sS)}, v60")
    A(f"v_lshl_add_u32 {v(vIA)}, v60, 3, {s(sT1)}")
    A(f"v_bfe_u32 v61, {v(vL)}, 2, 2")
    A(f"v_mul_u32_u24 v61, {s(sL)}, v61")
    A(f"v_add_u32 v61, {s(sS)}, v61")
    A(f"v_lshl_add_u32 v61, v61, 4, {s(sT2)}")
    A(f"v_cmp_ne_u32 vcc, 0, {v(vEI)}")
    A(f"s_lshl_b32 {s(sT3)}, {s(sS)}, 3")
    A(f"s_add_u32 {s(sT3)}, {s(sT3)}, {s(sT1)}")
    A(f"v_cndmask_b32 {v(vEA)}, {v(vZA)}, v61, vcc")
    A(f"v_lshl_add_u32 v60, {v(vL)}, 3, {s(sT3)}")
    A(f"s_lshl_b32 {s(sT3)}, {s(sL)}, 3")
    for g in range(1, 4):
        A(f"v_add_u32 {v(60+g)}, {s(sT3)}, {v(60+g-1)}")
    for k in range(4): A(f"v_mov_b32 {v(P+k)}, 1.0")
    A.stamp('scat')
    A.c("all table rows of this slice must be published")
    A(f"s_cmp_eq_u64 {s(sF2M,2)}, 0")
    A("s_cbranch_scc0 L_f2")
    A.lab("L_f2_done")
    A.stamp('f2')
    A("s_mov_b64 exec, -1")
    A("s_waitcnt lgkmcnt(0)")
    A("s_barrier")
    if OPT.get('fair', 1): A("s_setprio 3")
    A.stamp('B6')

    def gather(buf, x):
        r = LB[buf][x] + 2
        A(f"buffer_load_dwordx4 {v(r,4)}, {v(IDX+2*x,2)}, {s(sTAB,4)}, 0 idxen offen {GF}")
    def rd_idx(off):
        A(f"ds_read_u16 {v(IDX)}, {v(vIA)} offset:{off}")
        A(f"ds_read_u16 {v(IDX+2)}, {v(vIA)} offset:{off+4}")
    def rd_e(off):
        A(f"ds_read_b64 {v(AE[0],2)}, {v(vEA)} offset:{off}")
        A(f"ds_read_b64 {v(AE[1],2)}, {v(vEA)} offset:{off+8}")
    m32 = lambda d, buf, x: f"v_mfma_f32_16x16x32_bf16 {v(d,4)}, {v(AE[x],4)}, {v(LB[buf][x],4)}, {v(XA,4)}"
    m4h = lambda d, buf, x: f"v_mfma_f32_4x4x4_16b_bf16 {v(d,4)}, {v(IDM,2)}, {v(LB[buf][x]+4,2)}, 0"
    m4c = lambda d: f"v_mfma_f32_4x4x4_16b_bf16 {v(d,4)}, {v(IDM,2)}, {v(CB,2)}, {v(d,4)}"
    ex = lambda d: f"v_exp_f32_e64 {v(d)}, {v(d)} clamp"
    rcp = lambda k: f"v_rcp_f32_e32 {v(P+k)}, {v(P+k)}"

    rd_idx(0)
    A(f"ds_read_u16 v8, {v(vIA)} offset:8")
    A(f"ds_read_u16 v10, {v(vIA)} offset:12")
    A(f"ds_read_u16 v12, {v(vIA)} offset:2")
    for g in range(4):
        A(f"ds_read_u16 {v(16+2*g)}, {v(60+g)} offset:2")
        A(f"ds_read_u16 {v(17+2*g)}, {v(60+g)} offset:10")
    rd_e(0)
    A(f"v_mov_b32 v9, {v(IDX+1)}")
    A(f"v_mov_b32 v11, {v(IDX+1)}")
    A(f"s_cmp_eq_u32 {s(sMODE)}, 0")
    A("s_cbranch_scc1 L_nozero")
    A(f"ds_write_b64 v57, {v(vZ,2)} offset:{L_CNT2}")
    A.lab("L_nozero")
    A(f"s_sub_u32 {s(sT0)}, {s(sL)}, 1")
    A(f"s_bfm_b64 {s(sF2M,2)}, {s(sT0)}, 0")
    A(f"s_mov_b32 {s(sT1)}, {NSTR}")
    A("s_waitcnt lgkmcnt(13)")
    gather(0, 0); gather(0, 1)
    A("s_waitcnt lgkmcnt(10)")
    A(f"buffer_load_dwordx4 {v(LB[1][0]+2,4)}, v[8:9], {s(sTAB,4)}, 0 idxen offen {GF}")
    A(f"buffer_load_dwordx4 {v(LB[1][1]+2,4)}, v[10:11], {s(sTAB,4)}, 0 idxen offen {GF}")
    A(f"v_mad_u32_u24 {v(vPTR)}, v12, {s(sT1)}, v127")
    A(f"ds_read_b128 {v(XA,4)}, {v(vPTR)} offset:{NSTR}")
    rd_idx(16)
    for k in range(4): A(f"ds_read_b128 {v(S+4*k,4)}, {v(vZA)}")
    A("s_waitcnt lgkmcnt(9)")
    A.c("node-end masks -> per-step event byte (switch nibble <<4 | flush nibble), lane = step+1")
    A(f"s_mov_b32 {s(sEND)}, 0")
    for g in (3, 2, 1, 0):
        A(f"v_cmp_ne_u32 vcc, {v(16+2*g)}, {v(17+2*g)}")
        A(f"s_bitcmp1_b32 vcc_lo, {s(sT0)}")
        A(f"s_addc_u32 {s(sEND)}, {s(sEND)}, {s(sEND)}")
        A(f"s_and_b64 {s(sMK+2*g,2)}, vcc, {s(sF2M,2)}")
        A(f"s_lshl_b64 {s(sMK+8+2*g,2)}, {s(sMK+2*g,2)}, 2")
    A(f"v_mov_b32 {v(vEVB)}, 0")
    for k in (3, 2, 1, 0, 7, 6, 5, 4):
        A(f"v_addc_co_u32 {v(vEVB)}, vcc, {v(vEVB)}, {v(vEVB)}, {s(sMK+2*k,2)}")
    A(f"v_cmp_ne_u32 vcc, 0, {v(vEVB)}")
    A(f"s_lshr_b64 {s(sP0,2)}, vcc, 1")
    A(f"s_bitset1_b32 {s(sP0)}, {s(sT0)}")
    if OPT.get('noev'):
        A(f"s_mov_b32 {s(sP0)}, 0")
        A(f"s_bitset1_b32 {s(sP0)}, {s(sT0)}")
    if OPT.get('fair', 1):
        if OPT.get('fair', 1) == 2: A(f"s_or_b32 {s(sP0)}, {s(sP0)}, 0x4210")
    if OPT.get('tail', 1):
        A(f"s_sub_u32 {s(sT1)}, {s(sL)}, 4")
        A(f"s_max_i32 {s(sT1)}, {s(sT1)}, 0")
        A(f"s_bitset1_b32 {s(sP0)}, {s(sT1)}")
    A(f"s_brev_b32 {s(sEV)}, {s(sP0)}")
    A(f"s_sub_u32 {s(sLM)}, {s(sL)}, 32")
    if OPT.get('tail', 1):
        A(f"s_cmp_gt_u32 {s(sL)}, 3")
        A("s_cselect_b64 vcc, 1, 0")
    A(f"v_readfirstlane_b32 {s(sT0)}, {v(vEVB)}")
    A("s_waitcnt vmcnt(2) lgkmcnt(0)")
    A(m32(T[0][0], 0, 0)); A(m32(T[0][1], 0, 1)); A(m4h(H[0][0], 0, 0)); A(m4h(H[0][1], 0, 1))
    gather(0, 0); gather(0, 1)
    rd_e(16)
    rd_idx(24)
    A(f"s_lshr_b32 {s(sT0)}, {s(sT0)}, 4")
    A.stamp('fill')
    A("s_cbranch_scc0 L_loop")
    for _ in range(4): A(f"s_bitreplicate_b64_b32 {s(sP0,2)}, {s(sT0) if _ == 0 else s(sP0)}")
    A(f"s_mov_b64 exec, {s(sP0,2)}")
    A(f"v_add_u32 {v(vPTR)}, {NSTR}, {v(vPTR)}")
    A(f"ds_read_b128 {v(XA,4)}, {v(vPTR)} offset:{NSTR}")
    A("s_mov_b64 exec, -1")

    def body(c, ioff, eoff):
        loopbody.body(A, c, ioff, eoff, sTAB, sEV, GF, OPT.get('sched', 'v7t'))

    def handler(tag, ret):
        A(f"s_ff1_i32_b32 {s(sT0)}, {s(sEV)}")
        A(f"s_cmp_eq_u32 {s(sEV)}, 0")
        A(f"s_cselect_b32 {s(sT0)}, 32, {s(sT0)}")
        A(f"s_add_u32 {s(sT0)}, {s(sT0)}, {s(sLM)}")
        A(f"v_readlane_b32 {s(sT1)}, {v(vEVB)}, {s(sT0)}")
        if OPT.get('tail', 1):
            A(f"s_add_u32 {s(sT2)}, {s(sT0)}, 3")
            A(f"s_cmp_lt_u32 {s(sT2)}, {s(sL)}" if False else f"s_cmp_gt_u32 {s(sL)}, {s(sT2)}")
            A("s_cselect_b64 vcc, 1, 0")
        A(f"s_and_b32 {s(sP0)}, {s(sT1)}, 15")
        A(f"s_cbranch_scc0 L_nofl{tag}")
        for _ in range(4): A(f"s_bitreplicate_b64_b32 {s(sP0,2)}, {s(sP0)}")
        A(f"s_mov_b64 exec, {s(sP0,2)}")
        A(f"ds_write_b128 {v(vPTR)}, {v(DEN,4)} offset:16")
        A(f"ds_write_b128 {v(vPTR)}, {v(NUM,4)} offset:32")
        A(f"ds_read_b128 {v(DEN,4)}, {v(vZA)}")
        A(f"ds_read_b128 {v(NUM,4)}, {v(vZA)}")
        A.lab(f"L_nofl{tag}")
        A(f"s_lshr_b32 {s(sP0)}, {s(sT1)}, 4")
        A(f"s_cbranch_scc0 L_nosw{tag}")
        for _ in range(4): A(f"s_bitreplicate_b64_b32 {s(sP0,2)}, {s(sP0)}")
        A(f"s_mov_b64 exec, {s(sP0,2)}")
        A(f"v_add_u32 {v(vPTR)}, {NSTR}, {v(vPTR)}")
        A(f"ds_read_b128 {v(XA,4)}, {v(vPTR)} offset:{NSTR}")
        A.lab(f"L_nosw{tag}")
        A("s_mov_b64 exec, -1")
        if OPT.get('fair', 1):
            A.c("waves that are ahead yield to the ones behind")
            A(f"s_lshl_b32 {s(sT0)}, {s(sT0)}, 2")
            A(f"s_cmp_lt_u32 {s(sT0)}, {s(sL)}")
            A(f"s_cbranch_scc1 L_pr{tag}")
            A("s_setprio 2")
            A(f"s_lshl_b32 {s(sT1)}, {s(sL)}, 1")
            A(f"s_cmp_lt_u32 {s(sT0)}, {s(sT1)}")
            A(f"s_cbranch_scc1 L_pr{tag}")
            A("s_setprio 1")
            A(f"s_add_u32 {s(sT1)}, {s(sT1)}, {s(sL)}")
            A(f"s_cmp_lt_u32 {s(sT0)}, {s(sT1)}")
            A(f"s_cbranch_scc1 L_pr{tag}")
            A("s_setprio 0")
            A.lab(f"L_pr{tag}")
        A(f"s_cmp_lg_u32 {s(sEV)}, 0")
        A(f"s_cbranch_scc1 {ret}")

    A.raw(".p2align 3")
    A.lab("L_loop")
    body(0, 32, 32)
    A("s_cbranch_scc1 L_h0")
    A.lab("L_r0")
    A(f"v_add_u32 {v(vIA)}, 16, {v(vIA)}")
    body(1, 24, 48)
    A(f"v_add_u32 {v(vEA)}, {v(vEI)}, {v(vEA)}")
    A("s_cbranch_scc0 L_loop")
    handler(1, "L_loop")
    A("s_branch L_drain")
    A.lab("L_h0")
    handler(0, "L_r0")
    A("s_branch L_drain")
    for c in range(2):
        A.lab(f"L_skipg{c}")
        A("s_waitcnt vmcnt(0)")
        A(f"s_branch L_backg{c}")
    A.lab("L_drain")
    A.c("last segment of each stream: node sum if it ends the node, else a partial slot")
    A(f"v_add_u32 v18, {NSTR+16}, {v(vPTR)}")
    for k in range(4): A(rcp(k))
    for _ in range(4): A(f"s_bitreplicate_b64_b32 {s(sP0,2)}, {s(sEND) if _ == 0 else s(sP0)}")
    A(f"s_cmp_lt_u32 {s(sWAVE)}, 10")
    A("s_cbranch_scc0 L_nox")
    A(f"global_load_dwordx4 {v(vX,4)}, {v(vOUT)}, {s(sX,2)}")
    A.lab("L_nox")
    A(f"v_cndmask_b32 v17, {v(vXA_)}, v18, {s(sP0,2)}")
    A(f"s_mov_b32 {s(sP1)}, 0x00010001")
    A(f"s_mov_b32 {s(sP1+1)}, 0x00010001")
    A("s_waitcnt lgkmcnt(0)")
    for k in (0, 2): A(f"v_pk_fma_f32 {v(DEN+k,2)}, {v(S+k,2)}, {v(P+k,2)}, {v(DEN+k,2)}")
    for k in (0, 2): A(f"v_pk_fma_f32 {v(NUM+k,2)}, {v(AA+k,2)}, {v(P+k,2)}, {v(NUM+k,2)}")
    A(f"ds_write_b128 v17, {v(DEN,4)}")
    A(f"ds_write_b128 v17, {v(NUM,4)} offset:16")
    A(f"s_andn2_b64 exec, {s(sP1,2)}, {s(sP0,2)}")
    A(f"ds_add_u32 {v(vPTR)}, {v(vONE)} offset:{NSTR+768}")
    A(f"ds_max_u32 {v(vPTR)}, {v(vSID)} offset:{NSTR+772}")
    A("s_mov_b64 exec, -1")
    A(f"s_mov_b32 {s(sT1)}, {XSTR}")
    A(f"v_xor_b32 v15, 16, {v(vXU)}")
    A.stamp('loopend')
    A("s_waitcnt vmcnt(0) lgkmcnt(0)")
    A("s_barrier")
    A.stamp('B7')
    A(f"s_cmp_lt_u32 {s(sWAVE)}, 10")
    A("s_cbranch_scc0 L_nocomb")
    D8, N8, U8, XF, Q8 = 24, 32, 40, 48, 64
    A(f"ds_read_b64 v[16:17], {v(vNSA)} offset:768")
    for k in range(4):
        A(f"ds_read2_b32 {v(D8+2*k,2)}, {v(vDN)} offset0:{24*k} offset1:{24*k+12}")
    for k in range(4):
        A(f"ds_read2_b32 {v(N8+2*k,2)}, {v(vDN)} offset0:{24*k+4} offset1:{24*k+16}")
    A(f"ds_read_b128 {v(U8,4)}, {v(vXU)}")
    A(f"ds_read_b128 {v(U8+4,4)}, v15")
    A(f"s_mov_b32 {s(sT0)}, 0")
    A("s_waitcnt lgkmcnt(10)")
    A(f"v_mad_u32_u24 v18, v17, {s(sT1)}, {v(vXL)}")
    A.lab("L_part")
    A(f"v_cmp_lt_u32 vcc, {s(sT0)}, v16")
    A("s_cbranch_vccz L_part_done")
    A("s_mov_b64 exec, vcc")
    for k in range(4):
        A(f"ds_read2_b32 {v(XF+2*k,2)}, v18 offset0:{16*k} offset1:{16*k+8}")
    for k in range(4):
        A(f"ds_read2_b32 {v(XF+8+2*k,2)}, v18 offset0:{16*k+4} offset1:{16*k+12}")
    A(f"v_subrev_u32 v18, {XSTR}, v18")
    A(f"s_add_u32 {s(sT0)}, {s(sT0)}, 1")
    A("s_waitcnt lgkmcnt(0)")
    for k in range(8):
        A(f"v_pk_add_f32 {v(D8+2*k,2)}, {v(D8+2*k,2)}, {v(XF+2*k,2)}")
    A("s_mov_b64 exec, -1")
    A("s_branch L_part")
    A.lab("L_part_done")
    A(f"s_cmp_eq_u32 {s(sMODE)}, 0")
    A("s_cbranch_scc0 L_slowcomb")
    A.lab("L_final")
    A(f"s_mov_b32 {s(sP0)}, {hex(EPS)}")
    A(f"s_mov_b32 {s(sP0+1)}, {hex(EPS)}")
    for k in range(4):
        A(f"v_lshlrev_b32 {v(XF+2*k)}, 16, {v(vX+k)}")
        A(f"v_and_b32 {v(XF+2*k+1)}, 0xffff0000, {v(vX+k)}")
    A("s_waitcnt lgkmcnt(0)")
    for k in range(4):
        A(f"v_pk_add_f32 {v(D8+2*k,2)}, {v(D8+2*k,2)}, {s(sP0,2)}")
    for k in range(8):
        A(f"v_rcp_f32 {v(D8+k)}, {v(D8+k)}")
    for k in range(4):
        A(f"v_pk_fma_f32 {v(U8+2*k,2)}, {v(N8+2*k,2)}, {v(D8+2*k,2)}, {v(U8+2*k,2)}")
    for k in range(8):
        A(f"v_max_f32 {v(U8+k)}, 0, {v(U8+k)}")
    for k in range(4):
        A(f"v_pk_add_f32 {v(U8+2*k,2)}, {v(U8+2*k,2)}, {v(XF+2*k,2)}")
    for k in range(4):
        A(f"v_cvt_pk_bf16_f32 {v(D8+k)}, {v(U8+2*k)}, {v(U8+2*k+1)}")
    A(f"global_store_dwordx4 {v(vOUT)}, {v(D8,4)}, {s(sOUT,2)} {OPT.get('of', '')}")
    A.lab("L_out_done")
    if OPT.get('hold'):
        A.lab("L_hold")
        A(f"s_memrealtime {s(sP0,2)}")
        A("s_waitcnt lgkmcnt(0)")
        A(f"s_sub_u32 {s(sT0)}, {s(sP0)}, {s(sST+1)}")
        A(f"s_cmp_lt_u32 {s(sT0)}, {OPT['hold']}")
        A("s_cbranch_scc1 L_hold")
    if diag == 2:
        A("s_waitcnt vmcnt(0)")
        A(f"s_memrealtime {s(sP0,2)}")
        A(f"s_memtime {s(sP1,2)}")
        A("s_waitcnt lgkmcnt(0)")
        A(f"s_not_b32 {s(sT0)}, {s(sST+1)}")
        A("v_mov_b32 v8, 0")
        A(f"v_writelane_b32 v8, {s(sT0)}, 0")
        for k in range(1, 8): A(f"v_writelane_b32 v8, {s(sST+2*k)}, {k}")
        A(f"v_writelane_b32 v8, {s(sP0)}, 8")
        A(f"s_sub_u32 {s(sT0)}, {s(sP0)}, {s(sST+1)}")
        A(f"s_sub_u32 {s(sT1)}, {s(sP1)}, {s(sST)}")
        A(f"v_writelane_b32 v8, {s(sT0)}, 9")
        A(f"v_writelane_b32 v8, {s(sT1)}, 10")
        A(f"v_writelane_b32 v8, {s(sST+1)}, 11")
        A(f"v_lshl_add_u32 v9, {v(vL)}, 2, 8")
        A(f"s_cmp_eq_u32 {s(sWAVE)}, {OPT.get('dw', 0)}")
        A("s_cbranch_scc0 L_dg")
        A("s_mov_b64 exec, 0xfff")
        A(f"global_atomic_umax v9, v8, {s(sDBG,2)}")
        A.lab("L_dg")
    elif diag:
        A("s_waitcnt vmcnt(0)")
        A(f"s_memrealtime {s(sP0,2)}")
        A(f"s_memtime {s(sP1,2)}")
        A("s_waitcnt lgkmcnt(0)")
        A(f"s_sub_u32 {s(sT1)}, {s(sP1)}, {s(sST)}")
        A(f"s_mov_b32 {s(sST)}, {s(sST+1)}")
        A("v_mov_b32 v8, 0")
        for k in range(8): A(f"v_writelane_b32 v8, {s(sST+2*k)}, {k}")
        A(f"v_writelane_b32 v8, {s(sP0)}, 8")
        A(f"v_writelane_b32 v8, {s(sL)}, 9")
        A(f"v_writelane_b32 v8, {s(sT1)}, 10")
        A(f"v_writelane_b32 v8, {s(sNPOLL)}, 11")
        A(f"s_getreg_b32 {s(sT0)}, hwreg(HW_REG_XCC_ID)")
        A(f"v_writelane_b32 v8, {s(sT0)}, 12")
        A(f"s_getreg_b32 {s(sT0)}, hwreg(HW_REG_HW_ID)")
        A(f"v_writelane_b32 v8, {s(sT0)}, 13")
        A("s_lshl_b32 s3, s2, 4")
        A(f"s_add_u32 s3, s3, {s(sWAVE)}")
        A("s_lshl_b32 s3, s3, 6")
        A(f"s_add_u32 s3, s3, {OFF_DIAG}")
        A(f"v_lshl_add_u32 v9, {v(vL)}, 2, s3")
        A("s_mov_b64 exec, 0xffff")
        A(f"global_store_dword v9, v8, {s(sWS,2)}")
    A("s_endpgm")
    A.lab("L_f2")
    A(f"s_mov_b32 {s(sSPIN)}, {SPIN}")
    A(f"s_mov_b64 exec, {s(sF2M,2)}")
    A(f"global_load_dwordx2 v[58:59], v56, {s(sWS,2)} sc1")
    A.lab("L_f2l")
    A("s_waitcnt vmcnt(0)")
    f2_check("b", "L_f2r")
    A("s_branch L_f2_done")
    A.lab("L_f2r")
    A(f"s_sub_u32 {s(sSPIN)}, {s(sSPIN)}, 1")
    A("s_cbranch_scc1 L_f2_done")
    A("s_sleep 1")
    A(f"global_load_dwordx2 v[58:59], v56, {s(sWS,2)} sc1")
    A("s_branch L_f2l")
    A.c("more records than one round holds: restart in rounds of 15 records per segment")
    A.lab("L_goslow")
    A(f"s_mov_b32 {s(sMODE)}, 1")
    A(f"s_mov_b32 {s(sWM)}, {hex(((1 << SLOWK) - 1) * 0x10001)}")
    A(f"s_mov_b32 {s(sWM+1)}, {hex(((1 << SLOWK) - 1) * 0x10001)}")
    A(f"s_mov_b64 {s(sP1M,2)}, 0")
    A("s_waitcnt vmcnt(0)")
    A("s_barrier")
    A(f"ds_write_b64 v57, {v(vZ,2)} offset:{L_CNT2}")
    A("s_waitcnt lgkmcnt(0)")
    A("s_barrier")
    A("s_branch L_nextround2")
    A.lab("L_nextround")
    A(f"s_mov_b64 {s(sF2M,2)}, 0")
    A(f"v_lshlrev_b32 v57, 3, {v(vL)}")
    A.lab("L_nextround2")
    for j in range(8): A(f"s_mov_b64 {s(sMK+2*j,2)}, 0")
    A(f"s_mov_b64 {s(sP0,2)}, {s(sEX,2)}")
    A("s_branch L_round")
    A.c("multi-round mode: waves without output work just go on")
    A.lab("L_nocomb")
    A(f"s_cmp_eq_u32 {s(sMODE)}, 0")
    A("s_cbranch_scc1 L_out_done")
    A(f"s_add_u32 {s(sLO)}, {s(sLO)}, {SLOWK}")
    A(f"s_cmp_lt_u32 {s(sLO)}, {s(sMAXL)}")
    A("s_cbranch_scc1 L_nextround")
    A("s_branch L_out_done")
    A.c("multi-round mode: running sums live in this workgroup's scratch, one 64-byte record per thread")
    A.lab("L_slowcomb")
    A(f"s_mul_i32 {s(sT0)}, s2, 40960")
    A(f"s_add_u32 {s(sT0)}, {s(sT0)}, {OFF_ACC}")
    add64(A, sP0, sWS, s(sT0))
    A("v_lshlrev_b32 v20, 6, v0")
    A("s_waitcnt lgkmcnt(0)")
    A(f"ds_write_b64 v124, {v(vZ,2)} offset:768")
    A(f"s_cmp_eq_u32 {s(sLO)}, 0")
    A("s_cbranch_scc1 L_slow1")
    for k in range(4):
        A(f"global_load_dwordx4 {v(48+4*k,4)}, v20, {s(sP0,2)} offset:{16*k} sc1")
    A("s_waitcnt vmcnt(0)")
    for k in range(8):
        A(f"v_pk_add_f32 {v(24+2*k,2)}, {v(24+2*k,2)}, {v(48+2*k,2)}")
    A.lab("L_slow1")
    A(f"s_add_u32 {s(sLO)}, {s(sLO)}, {SLOWK}")
    A(f"s_cmp_lt_u32 {s(sLO)}, {s(sMAXL)}")
    A("s_cbranch_scc0 L_final")
    for k in range(4):
        A(f"global_store_dwordx4 v20, {v(24+4*k,4)}, {s(sP0,2)} offset:{16*k} sc1")
    A("s_waitcnt vmcnt(0) lgkmcnt(0)")
    A("s_branch L_nextround")
    A.lab("L_end")
    A("s_endpgm")
    return A.L


HEADER = open(os.path.join(os.path.dirname(os.path.abspath(__file__)), "header.txt")).read()


def emit(path, diag=0, **o):
    body = build(diag, **o)
    errs = hazard.check(body, "linear")
    for e in errs: print("HAZARD", e)
    out = [HEADER.rstrip("\n")] + ([f"; stamps: {o.get('st', 'pDst|gB3 pOut|gMM ph2 polled recs B6 loopend')}"] if diag else []) + [
           f"; @launch grid=({NC},1,1) block=(1024,1,1) lds={LDS_SIZE}",
           '.amdgcn_target "amdgcn-amd-amdhsa--gfx950"', ".text", f".globl {KNAME}", ".p2align 8",
           f".type {KNAME},@function", f"{KNAME}:"]
    out += body
    out += ['.section .rodata,"a"', ".p2align 6", f".amdhsa_kernel {KNAME}",
            "  .amdhsa_next_free_vgpr 128", "  .amdhsa_next_free_sgpr 102", "  .amdhsa_accum_offset 128",
            "  .amdhsa_group_segment_fixed_size 0", "  .amdhsa_kernarg_size 96", "  .amdhsa_user_sgpr_count 2",
            "  .amdhsa_user_sgpr_kernarg_segment_ptr 1", "  .amdhsa_system_sgpr_workgroup_id_x 1",
            ".end_amdhsa_kernel"]
    open(path, "w").write("\n".join(out) + "\n")
    return len(errs)


if __name__ == "__main__":
    root = os.path.dirname(os.path.dirname(os.path.abspath(__file__)))
    emit(os.path.join(root, "cdna_kernels", "standalone__edge_featured_mpnn_gatedgcn__graph.s"), 0)
    emit(os.path.join(root, "gen", "diag.s"), 1)
    for a in sys.argv[1:]:
        name, _, rest = a.partition(':')
        o = {}
        for kv in rest.split(','):
            if kv:
                k, _, val = kv.partition('=')
                o[k] = int(val) if val.lstrip('-').isdigit() else val.replace('+', ' ')
        emit(os.path.join(root, "gen", f"diag_{name}.s"), o.pop('diag', 1), **o)
```

```python
def v(a, n=1): return f"v{a}" if n == 1 else f"v[{a}:{a+n-1}]"
def s(a, n=1): return f"s{a}" if n == 1 else f"s[{a}:{a+n-1}]"
T = [[8, 12], [16, 20]]; H = [[24, 28], [32, 36]]
P, S, AA, DEN, NUM, XA = 40, 44, 48, 52, 56, 60
LB = [[64, 70], [76, 82]]
AE = [88, 92]; IDX = 96; IDM = 100; CB = 102
vIA, vEA, vEI, vPTR, vZA, vEVB = 104, 105, 106, 107, 108, 109

def parts(c, ioff, eoff, sTAB, sEV, GF):
    n = 1 - c
    tA, tB = T[c]; hA, hB = H[c]; tA2, tB2 = T[n]; hA2, hB2 = H[n]
    d = {}
    m32 = lambda dd, x: f"v_mfma_f32_16x16x32_bf16 {v(dd,4)}, {v(AE[x],4)}, {v(LB[n][x],4)}, {v(XA,4)}"
    m4h = lambda dd, x: f"v_mfma_f32_4x4x4_16b_bf16 {v(dd,4)}, {v(IDM,2)}, {v(LB[n][x]+4,2)}, 0"
    m4c = lambda dd: f"v_mfma_f32_4x4x4_16b_bf16 {v(dd,4)}, {v(IDM,2)}, {v(CB,2)}, {v(dd,4)}"
    for k in range(4):
        d[f"a{k}"] = f"v_exp_f32_e64 {v(tA+k)}, {v(tA+k)} clamp"
        d[f"b{k}"] = f"v_exp_f32_e64 {v(tB+k)}, {v(tB+k)} clamp"
        d[f"r{k}"] = f"v_rcp_f32_e32 {v(P+k)}, {v(P+k)}"
        d[f"R{k}"] = f"v_rcp_f32_e64 {v(P+k)}, {v(P+k)}"
    d["MA"] = m32(tA2, 0); d["MB"] = m32(tB2, 1)
    d["HA"] = m4h(hA2, 0); d["HB"] = m4h(hB2, 1)
    d["CA"] = m4c(tA); d["CB"] = m4c(tB)
    m16 = lambda dd, x: f"v_mfma_f32_16x16x16_bf16 {v(dd,4)}, {v(AE[x],2)}, {v(LB[n][x],2)}, {v(XA,4)}"
    m4x = lambda dd, x: f"v_mfma_f32_4x4x4_16b_bf16 {v(dd,4)}, {v(IDM,2)}, {v(LB[n][x]+2,2)}, {v(dd,4)}"
    m4y = lambda dd, x: f"v_mfma_f32_4x4x4_16b_bf16 {v(dd,4)}, {v(IDM,2)}, {v(LB[n][x]+2,2)}, {v(XA,4)}"
    d["EA"] = m16(tA2, 0); d["EB"] = m16(tB2, 1); d["XA"] = m4x(tA2, 0); d["XB"] = m4x(tB2, 1)
    d["YA"] = m4y(tA2, 0); d["YB"] = m4y(tB2, 1)
    for k in range(4):
        d[f"ma{k}"] = f"v_mov_b32_e64 {v(tA+k)}, {v(tA+k)}"
        d[f"mb{k}"] = f"v_mov_b32_e64 {v(tB+k)}, {v(tB+k)}"
    d["W"] = "s_waitcnt vmcnt(2) lgkmcnt(0)"
    d["Wv"] = "s_waitcnt vmcnt(2)"; d["Wl"] = "s_waitcnt lgkmcnt(0)"
    d["E"] = f"s_add_u32 {s(sEV)}, {s(sEV)}, {s(sEV)}"
    d["N"] = "s_nop 0"
    d["K"] = f"s_cbranch_vccz L_skipg{c}"
    d["L"] = f"L_backg{c}:"
    d["P1"] = "s_setprio 1"; d["P0"] = "s_setprio 0"
    d["eA"] = f"ds_read_b64 {v(AE[0],2)}, {v(vEA)} offset:{eoff}"
    d["eB"] = f"ds_read_b64 {v(AE[1],2)}, {v(vEA)} offset:{eoff+8}"
    d["iA"] = f"ds_read_u16 {v(IDX)}, {v(vIA)} offset:{ioff}"
    d["iB"] = f"ds_read_u16 {v(IDX+2)}, {v(vIA)} offset:{ioff+4}"
    d["gA"] = f"buffer_load_dwordx4 {v(LB[n][0]+2,4)}, {v(IDX,2)}, {s(sTAB,4)}, 0 idxen offen {GF}"
    d["gB"] = f"buffer_load_dwordx4 {v(LB[n][1]+2,4)}, {v(IDX+2,2)}, {s(sTAB,4)}, 0 idxen offen {GF}"
    for k in (0, 2):
        d[f"D{k}"] = f"v_pk_fma_f32 {v(DEN+k,2)}, {v(S+k,2)}, {v(P+k,2)}, {v(DEN+k,2)}"
        d[f"U{k}"] = f"v_pk_fma_f32 {v(NUM+k,2)}, {v(AA+k,2)}, {v(P+k,2)}, {v(NUM+k,2)}"
        d[f"p{k}"] = f"v_pk_mul_f32 {v(P+k,2)}, {v(tA+k,2)}, {v(tB+k,2)}"
        d[f"q{k}"] = f"v_pk_mul_f32 {v(AA+k,2)}, {v(hA+k,2)}, {v(tB+k,2)}"
        d[f"s{k}"] = f"v_pk_add_f32 {v(S+k,2)}, {v(tA+k,2)}, {v(tB+k,2)}"
        d[f"n{k}"] = f"v_pk_fma_f32 {v(AA+k,2)}, {v(hB+k,2)}, {v(tA+k,2)}, {v(AA+k,2)}"
        d[f"cA{k}"] = f"v_pk_add_f32 {v(tA+k,2)}, {v(tA+k,2)}, s[12:13]"
        d[f"cB{k}"] = f"v_pk_add_f32 {v(tB+k,2)}, {v(tB+k,2)}, s[12:13]"
    for k in range(4):
        d[f"xD{k}"] = f"v_fmac_f32 {v(DEN+k)}, {v(S+k)}, {v(P+k)}"
        d[f"xU{k}"] = f"v_fmac_f32 {v(NUM+k)}, {v(AA+k)}, {v(P+k)}"
        d[f"xp{k}"] = f"v_mul_f32 {v(P+k)}, {v(tA+k)}, {v(tB+k)}"
        d[f"xq{k}"] = f"v_mul_f32 {v(AA+k)}, {v(hA+k)}, {v(tB+k)}"
        d[f"xs{k}"] = f"v_add_f32 {v(S+k)}, {v(tA+k)}, {v(tB+k)}"
        d[f"xn{k}"] = f"v_fmac_f32 {v(AA+k)}, {v(hB+k)}, {v(tA+k)}"
    return d

PK = "D0 D2 U0 U2 p0 p2 q0 q2 s0 s2 n0 n2"
XK = " ".join(f"x{o}{k}" for o in "DUpqsn" for k in range(4))
CORE = "a0 MA a1 a2 MB a3 b0 HA b1 CA b2 HB b3 r0 r1 CB r2 r3 "
SCHED = {
 'v0': "a0 W E MA a1 a2 MB a3 eA eB b0 HA b1 CA b2 HB gA gB b3 iA iB r0 r1 CB r2 r3 " + PK,
 'v7': "a0 W E MA a1 a2 MB a3 b0 HA b1 CA b2 HB b3 r0 r1 CB r2 r3 gA gB eA eB iA iB " + PK,
 'v7t': "a0 W E MA a1 a2 MB a3 b0 HA b1 CA b2 HB b3 r0 r1 CB R2 r3 K gA gB L eA eB iA iB " + PK,
 't16': "a0 W E EA a1 EB a2 HA a3 HB b0 b1 CA XA b2 XB b3 r0 r1 CB R2 r3 K gA gB L eA eB iA iB " + PK,
 'tpk': "a0 W E MA a1 a2 MB a3 b0 HA b1 b2 HB b3 r0 r1 R2 r3 K gA gB L eA eB iA iB cA0 cA2 cB0 cB2 " + PK,
 'dnoe': "a0 W E YA a1 a2 YB a3 b0 HA b1 CA b2 HB b3 r0 r1 CB R2 r3 K gA gB L eA eB iA iB " + PK,
 'dnom': "a0 W E a1 a2 a3 b0 b1 b2 b3 r0 r1 R2 r3 K gA gB L eA eB iA iB " + PK,
 'dnopk': "a0 W E MA a1 a2 MB a3 b0 HA b1 CA b2 HB b3 r0 r1 CB R2 r3 K gA gB L eA eB iA iB",
 'dnoex': "W E MA N N MB N N N HA N N CA N N HB r0 r1 CB R2 r3 K gA gB L eA eB iA iB " + PK,
 'v10': "a0 W E P1 N MA a1 a2 MB a3 eA eB b0 HA b1 CA b2 HB gA gB b3 iA iB r0 r1 CB r2 r3 " + PK + " P0 N",
 'w1': "a0 W E P1 N MA a1 a2 MB a3 b0 HA b1 CA b2 HB b3 r0 r1 CB r2 r3 gA gB eA eB iA iB " + PK + " P0 N",
 'w2': "P0 W P1 E a0 MA a1 a2 MB a3 b0 HA b1 CA b2 HB b3 r0 r1 CB r2 r3 gA gB eA eB iA iB " + PK,
 'w3': "P0 W P1 E a0 MA a1 a2 MB a3 eA eB b0 HA b1 CA b2 HB gA gB b3 iA iB r0 r1 CB r2 r3 " + PK,
 'w4': "a0 P0 W P1 E MA a1 a2 MB a3 eA eB b0 HA b1 CA b2 HB gA gB b3 iA iB r0 r1 CB r2 r3 " + PK,
 'w5': "a0 W E MA a1 a2 MB a3 b0 HA b1 CA b2 HB b3 gA gB eA eB iA iB r0 r1 CB r2 r3 " + PK,
 'w6': "a0 W E MA a1 a2 MB a3 b0 HA b1 CA b2 HB b3 r0 r1 CB r2 gA gB eA eB iA iB r3 " + PK,
 'w7': "P0 W P1 E MA a0 a1 MB a2 a3 HA b0 eA eB b1 CA b2 HB gA gB b3 iA iB r0 r1 CB r2 r3 " + PK,
 'w8': "P0 W P1 E MA a0 a1 MB a2 HA a3 HB b0 gA gB eA eB iA iB b1 CA b2 b3 r0 r1 CB r2 r3 " + PK,
}
def body(A, c, ioff, eoff, sTAB, sEV, GF, sched):
    d = parts(c, ioff, eoff, sTAB, sEV, GF)
    for k in SCHED[sched].split():
        if d[k].endswith(':'): A.lab(d[k][:-1])
        else: A(d[k])
```

```python
import sys, os, struct
sys.path.insert(0, os.path.dirname(os.path.abspath(__file__)))
import hazard
import loopbody

KNAME = "standalone__edge_featured_mpnn_gatedgcn__graph_kernel"

N = 10000; NB = 125; NC = 250; BN = 80; CE = 1280
TS = 2592768
NROWS = N + NB
OFF_REC = 0x500000; RECSZ = CE * 12
OFF_G = 0x900000; GSTR = 1152
OFF_F2 = 0x950000
OFF_DIAG = 0xA00000
L_CNT1 = 0; L_ST1 = 512; L_CNT2 = 1024; L_ST2 = 1536; L_ZERO = 2048; L_MISC = 2176; L_WC = 2304
M_CTRA = L_MISC; M_CTRB = L_MISC + 4; M_MAXLEN = L_MISC + 8; M_P1 = L_MISC + 12; M_P2 = L_MISC + 16; M_G = L_MISC + 20; M_CD = L_MISC + 24; M_GI = L_MISC + 28; M_PO = L_MISC + 32; M_NONCE = L_MISC + 40; M_XI = L_MISC + 48; M_TS = L_MISC + 52
L_NS = 3072; NSTR = 784
L_XS = L_NS + BN * NSTR
L_W = L_XS + 20480
CAP = 3328
L_META = L_W; L_E = L_W + 13568; L_EXT = L_E + 26880; XSTR = 528
LDS_SIZE = L_EXT + 64 * XSTR
CAP_PAIRS = CAP // 2 - 4
SLOWK = 12
OFF_ACC = 0xB00000
SPIN = 1 << 22

def f2u(x): return struct.unpack('<I', struct.pack('<f', x))[0]
NL2E = f2u(-1.4426950408889634)
SHIFT = 60
EPS = f2u(1e-6 * 2.0 ** SHIFT)
CBF = (127 - SHIFT) << 7

def v(a, n=1): return f"v{a}" if n == 1 else f"v[{a}:{a+n-1}]"
def s(a, n=1): return f"s{a}" if n == 1 else f"s[{a}:{a+n-1}]"

sX, sE, sSRC, sDST, sWA, sWB, sWC, sWU, sWV, sOUT, sDBG, sWS = 4, 6, 8, 10, 12, 14, 16, 18, 20, 22, 24, 26
sWAVE, sBKT, sSL, sT0 = 28, 29, 30, 31
sSRD = 32
sTAB = 36
sNON = 40
sRT = 42
sMK = 44
sT1, sT2, sT3, sT4 = 60, 61, 62, 63
sEX = 64
sP0 = 66
sP1 = 68
sLO, sMODE, sMAXL, sTP, sL, sS, sEV, sLM = 70, 71, 72, 73, 74, 75, 76, 77
sWM = 78
sP1M = 80
sJ = 82
sSPIN = 85
sEND = 3
sST = 86
sDONE = 42
sK = 63
sNPOLL = 8
sPFM = 10
sF2M = 6


class G:
    def __init__(self, diag=0):
        self.L = []
        self.diag = diag
        self.nst = 0
    def __call__(self, t): self.L.append("    " + t)
    def lab(self, t): self.L.append(t + ":")
    def c(self, t): self.L.append("    ; " + t)
    def raw(self, t): self.L.append(t)
    def stamp(self, name):
        if self.diag and name in self.st:
            self(f"s_memrealtime {s(sST + 2 * self.st[name], 2)}")
        if self.diag and 'c' + name in self.st:
            self(f"s_memtime {s(sST + 2 * self.st['c' + name], 2)}")


def wave_scan(A, r):
    for sh in (1, 2, 4, 8):
        A("s_nop 1")
        A(f"v_add_u32_dpp {v(r)}, {v(r)}, {v(r)} row_shr:{sh} row_mask:0xf bank_mask:0xf")
    A("s_nop 1")
    A(f"v_add_u32_dpp {v(r)}, {v(r)}, {v(r)} row_bcast:15 row_mask:0xa bank_mask:0xf")
    A("s_nop 1")
    A(f"v_add_u32_dpp {v(r)}, {v(r)}, {v(r)} row_bcast:31 row_mask:0xc bank_mask:0xf")


def lds_signal(A, vz, vone, off):
    A("s_mov_b64 exec, 1")
    A(f"ds_add_u32 {v(vz)}, {v(vone)} offset:{off}")
    A("s_mov_b64 exec, -1")


def lds_wait(A, vz, vt, off, target, tag, sleep=0):
    A.lab(f"L_lw_{tag}")
    if sleep: A(f"s_sleep {sleep}")
    A(f"ds_read_b32 {v(vt)}, {v(vz)} offset:{off}")
    A("s_waitcnt lgkmcnt(0)")
    A(f"v_readfirstlane_b32 s3, {v(vt)}")
    A(f"s_cmp_ge_u32 s3, {target}")
    A(f"s_cbranch_scc0 L_lw_{tag}")


def lds_sync(A, vz, vone, vt, off, n, tag):
    A("s_mov_b64 exec, 1")
    A(f"ds_add_rtn_u32 {v(vt)}, {v(vz)}, {v(vone)} offset:{off}")
    A("s_mov_b64 exec, -1")
    A("s_waitcnt lgkmcnt(0)")
    A(f"v_readfirstlane_b32 s3, {v(vt)}")
    A(f"s_cmp_eq_u32 s3, {n-1}")
    A(f"s_cbranch_scc1 L_ls_{tag}")
    lds_wait(A, vz, vt, off, n, tag)
    A.lab(f"L_ls_{tag}")


def nonce_get(A, vz, vn, tag):
    A(f"s_mov_b32 {s(sSPIN)}, {SPIN}")
    A.lab(f"L_nn_{tag}")
    A(f"v_readfirstlane_b32 {s(sNON)}, {v(vn)}")
    A(f"v_readfirstlane_b32 {s(sNON+1)}, {v(vn+1)}")
    A(f"s_cmp_lg_u32 {s(sNON)}, 0")
    A(f"s_cbranch_scc1 L_nd_{tag}")
    A(f"s_sub_u32 {s(sSPIN)}, {s(sSPIN)}, 1")
    A(f"s_cbranch_scc1 L_nd_{tag}")
    A("s_sleep 2")
    A(f"global_load_dwordx2 {v(vn,2)}, {v(vz)}, {s(sDBG,2)} sc1")
    A("s_waitcnt vmcnt(0)")
    A(f"s_branch L_nn_{tag}")
    A.lab(f"L_nd_{tag}")


def nonce_lds(A, vz, vn, tag):
    A.lab(f"L_nl_{tag}")
    A(f"ds_read_b64 {v(vn,2)}, {v(vz)} offset:{M_NONCE}")
    A("s_waitcnt lgkmcnt(0)")
    A(f"v_readfirstlane_b32 {s(sNON)}, {v(vn)}")
    A(f"v_readfirstlane_b32 {s(sNON+1)}, {v(vn+1)}")
    A(f"s_cmp_lg_u32 {s(sNON)}, 0")
    A(f"s_cbranch_scc0 L_nl_{tag}")


def add64(A, d, a, off):
    A(f"s_add_u32 {s(d)}, {s(a)}, {off}")
    A(f"s_addc_u32 {s(d+1)}, {s(a+1)}, 0")


def build(diag=0, **OPT):
    A = G(diag)
    A.st = {}
    for k, grp in enumerate(OPT.get('st', 'pDst|gB3 pOut|gMM ph2 polled recs B6 loopend').split()):
        for n in grp.split('|'): A.st[n] = k + 1
    GF = OPT.get('gf', 'sc1')
    EF = OPT.get('ef', 'nt'); XF_ = OPT.get('xf', 'nt'); WF = OPT.get('wf', ''); SF = OPT.get('sf', 'sc1')
    vL = 1
    vONE = 2
    vZ = 4
    A(f"s_cmp_ge_u32 s2, {NC}")
    A("s_cbranch_scc1 L_end")
    A("s_load_dwordx16 s[4:19], s[0:1], 0")
    A("s_load_dwordx8 s[20:27], s[0:1], 64")
    A(f"s_memrealtime {s(sRT,2)}")
    if diag: A(f"s_memtime {s(sST,2)}")
    A("v_lshrrev_b32 v3, 6, v0")
    A(f"v_and_b32 {v(vL)}, 63, v0")
    A(f"v_readfirstlane_b32 {s(sWAVE)}, v3")
    A(f"v_mov_b32 {v(vONE)}, 1")
    for i in range(4): A(f"v_mov_b32 {v(vZ+i)}, 0")
    A.c("workgroups that share an XCD under round-robin placement get one slice and adjacent buckets")
    A(f"s_and_b32 {s(sSL)}, s2, 1")
    A(f"s_bfe_u32 {s(sT0)}, s2, 0x20001")
    A(f"s_mul_i32 {s(sT1)}, {s(sT0)}, 31")
    A(f"s_min_u32 {s(sT0)}, {s(sT0)}, 1")
    A(f"s_lshr_b32 {s(sBKT)}, s2, 3")
    A(f"s_add_u32 {s(sBKT)}, {s(sBKT)}, {s(sT0)}")
    A(f"s_add_u32 {s(sBKT)}, {s(sBKT)}, {s(sT1)}")
    if OPT.get('badmap'):
        A.c("experiment: XCD-unfriendly map")
        A(f"s_cmp_ge_u32 s2, {NB}")
        A(f"s_cselect_b32 {s(sSL)}, 1, 0")
        A(f"s_cselect_b32 {s(sT0)}, {NB}, 0")
        A(f"s_sub_u32 {s(sBKT)}, s2, {s(sT0)}")
    A(f"s_cmp_lt_u32 {s(sWAVE)}, 5")
    A("s_cbranch_scc0 L_roleG")

    vD, vS, vE, vBA, vR = 8, 12, 16, 24, 28
    vCA, vSUM, vINC, vSTA = 34, 36, 37, 38
    A.c("role P: zero the small LDS area")
    A("s_setprio 3")
    A("v_lshlrev_b32 v3, 4, v0")
    A(f"v_cmp_gt_u32 vcc, {L_WC//16}, v0")
    A(f"s_and_saveexec_b64 {s(sEX,2)}, vcc")
    A(f"ds_write_b128 v3, {v(vZ,4)}")
    A(f"s_mov_b64 exec, {s(sEX,2)}")
    A(f"s_mul_i32 s3, s2, {CE*4}")
    A("v_lshlrev_b32 v62, 5, v0")
    A("s_waitcnt lgkmcnt(0)")
    if OPT.get('wsoff'): add64(A, sWS, sWS, OPT['wsoff'] << 20)
    add64(A, sDST, sDST, "s3")
    A(f"global_load_dwordx4 {v(vD,4)}, v3, {s(sDST,2)} {EF}")
    TF = OPT.get('tfirst', 0)
    def se_loads():
        A(f"global_load_dwordx4 {v(vS,4)}, v3, {s(sSRC,2)} {EF}")
        A(f"global_load_dwordx4 {v(vE,4)}, v62, {s(sE,2)} {EF}")
        A(f"global_load_dwordx4 {v(vE+4,4)}, v62, {s(sE,2)} offset:16 {EF}")
    add64(A, sSRC, sSRC, "s3")
    A("s_lshl_b32 s3, s3, 1")
    add64(A, sE, sE, "s3")
    if not TF: se_loads()
    A("s_barrier")
    A(f"s_mov_b32 {s(sT0)}, -{BN}")
    A(f"s_mov_b32 {s(sT1)}, {L_NS}")
    A(f"s_mul_i32 s3, s2, {RECSZ}")
    A(f"s_add_u32 s3, s3, {OFF_REC}")
    add64(A, sP0, sWS, "s3")
    A(f"v_lshlrev_b32 v33, 3, {v(vL)}")
    A(f"s_mul_i32 s3, {s(sWAVE)}, 3072")
    A(f"v_lshl_add_u32 v56, {v(vL)}, 4, s3")
    A(f"v_add_u32 v57, {L_NS}, v56")
    if TF == 2:
        A("s_setprio 0")
        lds_wait(A, vZ, 32, M_XI, 5, "xi")
        se_loads()
        A("s_setprio 3")
    A(f"s_waitcnt vmcnt({0 if TF == 1 else 3})")
    A.stamp('pDst')
    for k in range(4): A(f"v_mul_u32_u24 {v(40+k)}, 52429, {v(vD+k)}")
    for k in range(4): A(f"v_lshrrev_b32 {v(40+k)}, 22, {v(40+k)}")
    for k in range(4):
        A(f"v_lshlrev_b32 {v(vBA+k)}, 2, {v(40+k)}")
        A(f"ds_add_rtn_u32 {v(vR+k)}, {v(vBA+k)}, {v(vONE)} offset:{L_CNT1}")
    for k in range(4): A(f"v_mad_i32_i24 {v(vD+k)}, {v(40+k)}, {s(sT0)}, {v(vD+k)}")
    A("s_waitcnt lgkmcnt(0)")
    if TF == 1:
        lds_wait(A, vZ, 32, M_GI, 7, "gi")
        se_loads()
    A.stamp('pAt')
    lds_sync(A, vZ, vONE, 32, M_P1, 5, "p1")
    A.stamp('pB1')
    A(f"ds_read_b64 {v(vCA,2)}, v33 offset:{L_CNT1}")
    A("s_waitcnt lgkmcnt(0)")
    A(f"v_add_u32 {v(vSUM)}, {v(vCA)}, {v(vCA+1)}")
    A(f"v_add_u32 {v(vINC)}, {v(vCA)}, {v(vCA+1)}")
    wave_scan(A, vINC)
    A(f"v_sub_u32 {v(vSTA)}, {v(vINC)}, {v(vSUM)}")
    A(f"v_add_u32 {v(vSTA+1)}, {v(vSTA)}, {v(vCA)}")
    A(f"ds_write_b64 v33, {v(vSTA,2)} offset:{L_ST1}")
    for k in range(4):
        A(f"ds_read_b32 {v(40+k)}, {v(vBA+k)} offset:{L_ST1}")
    A("s_waitcnt vmcnt(0)")
    for k in range(4):
        A(f"v_lshl_or_b32 {v(vS+k)}, {v(vD+k)}, 16, {v(vS+k)}")
    for k in range(4):
        A(f"s_waitcnt lgkmcnt({3-k})" if k == 0 else f"s_waitcnt lgkmcnt({3-k+2*k})")
        A(f"v_add_u32 {v(40+k)}, {v(40+k)}, {v(vR+k)}")
        A(f"v_mad_u32_u24 {v(40+k)}, {v(40+k)}, 12, {s(sT1)}")
        A(f"ds_write2_b32 {v(40+k)}, {v(vE+2*k)}, {v(vE+2*k+1)} offset0:0 offset1:1")
        A(f"ds_write_b32 {v(40+k)}, {v(vS+k)} offset:8")
    A("s_waitcnt lgkmcnt(0)")
    A.stamp('pSc')
    lds_sync(A, vZ, vONE, 32, M_P2, 5, "p2")
    A.stamp('pB2')
    for k in range(3):
        A(f"ds_read_b128 {v(44+4*k,4)}, v57 offset:{1024*k}")
    if OPT.get('ord2', 1): lds_wait(A, vZ, 32, M_TS, 5, "ts")
    for k in range(3):
        A(f"s_waitcnt lgkmcnt({2-k})")
        A(f"global_store_dwordx4 v56, {v(44+4*k,4)}, {s(sP0,2)} offset:{1024*k} {SF}")
    A("s_mov_b64 exec, 1")
    A(f"ds_add_u32 {v(vZ)}, {v(vONE)} offset:{M_CD}")
    A(f"ds_add_u32 {v(vZ)}, {v(vONE)} offset:{M_PO}")
    A("s_mov_b64 exec, -1")
    A.stamp('pOut')
    A(f"s_mul_i32 s3, s2, {GSTR}")
    A(f"s_add_u32 s3, s3, {OFF_G}")
    add64(A, sP0, sWS, "s3")
    A(f"v_lshl_or_b32 v58, {v(vCA)}, 11, {v(vSTA)}")
    A(f"v_lshl_or_b32 v60, {v(vCA+1)}, 11, {v(vSTA+1)}")
    A(f"v_lshlrev_b32 v56, 4, {v(vL)}")
    nonce_lds(A, vZ, 40, "p")
    A(f"v_or_b32 v58, {s(sNON+1)}, v58")
    A(f"v_or_b32 v60, {s(sNON+1)}, v60")
    A(f"v_mov_b32 v59, {s(sNON)}")
    A(f"v_mov_b32 v61, {s(sNON)}")
    A("s_mov_b64 exec, 1")
    A("s_waitcnt vmcnt(0)")
    A.stamp('pDrain')
    A(f"ds_add_rtn_u32 v42, {v(vZ)}, {v(vONE)} offset:{M_CTRA}")
    A("s_mov_b64 exec, -1")
    A("s_waitcnt lgkmcnt(0)")
    A("v_readfirstlane_b32 s3, v42")
    A("s_cmp_eq_u32 s3, 4")
    A("s_cbranch_scc0 L_p_done")
    if OPT.get('prew', 1): lds_wait(A, vZ, 42, M_CD, 10, "pw")
    A(f"global_store_dwordx4 v56, v[58:61], {s(sP0,2)} sc1")
    A.stamp('pPub')
    A.lab("L_p_done")
    A("s_setprio 0")
    A("s_branch L_phase2")

    A.lab("L_roleG")
    vB15, vG4 = 8, 9
    A(f"v_and_b32 {v(vB15)}, 15, {v(vL)}")
    A(f"v_lshrrev_b32 {v(vG4)}, 4, {v(vL)}")
    A.c("x DMA lane offset: r*256 + ((j^r)*16)")
    A(f"v_xor_b32 v10, {v(vB15)}, {v(vG4)}")
    A("v_lshlrev_b32 v10, 4, v10")
    A(f"v_lshl_add_u32 v10, {v(vG4)}, 8, v10")
    A.c("W DMA lane offset: r8*256 + ((j^(2*((r8>>1)&1)))*16) + slice*128")
    A(f"v_lshrrev_b32 v11, 3, {v(vL)}")
    A(f"v_and_b32 v12, 7, {v(vL)}")
    A("v_and_b32 v13, 2, v11")
    A("v_xor_b32 v12, v12, v13")
    A("v_lshlrev_b32 v12, 4, v12")
    A("v_lshl_add_u32 v12, v11, 8, v12")
    A(f"s_lshl_b32 s3, {s(sSL)}, 7")
    A("v_add_u32 v12, s3, v12")
    A(f"s_lshr_b32 {s(sK)}, s2, 3")
    A(f"s_and_b32 {s(sT0)}, {s(sK)}, 1")
    A(f"s_lshl_b32 {s(sT0)}, {s(sT0)}, 6")
    A(f"v_xor_b32 v12, {s(sT0)}, v12")
    A("v_xor_b32 v13, 64, v12")
    A(f"s_mov_b32 {s(sSRD+3)}, 0x20000")
    A(f"s_xor_b32 {s(sT0)}, {s(sWAVE)}, 15")
    A(f"s_or_b32 {s(sT0)}, {s(sT0)}, s2")
    A("s_waitcnt lgkmcnt(0)")
    if OPT.get('wsoff'):
        A(f"s_cselect_b32 {s(sT1)}, 1, 0")
        add64(A, sWS, sWS, OPT['wsoff'] << 20)
        A(f"s_cmp_lg_u32 {s(sT1)}, 0")
    A("s_cbranch_scc1 L_g_nn")
    A.c("workgroup 0 publishes the launch nonce in d_debug")
    A(f"s_or_b32 {s(sT0)}, {s(sRT)}, 1")
    A(f"s_lshl_b32 {s(sT1)}, {s(sRT+1)}, 22")
    A(f"v_mov_b32 v14, {s(sT0)}")
    A(f"v_mov_b32 v15, {s(sT1)}")
    A("s_mov_b64 exec, 1")
    A(f"global_store_dwordx2 {v(vZ)}, v[14:15], {s(sDBG,2)} sc1")
    A("s_mov_b64 exec, -1")
    A.lab("L_g_nn")
    if OPT.get('prew', 1):
        A.c("bring this workgroup's hand-off lines on chip (with no valid tag) long before anyone polls them")
        A(f"s_cmp_eq_u32 {s(sWAVE)}, 5")
        A("s_cbranch_scc0 L_g_nopw")
        A(f"s_mul_i32 {s(sT0)}, s2, {GSTR}")
        A(f"s_add_u32 {s(sT0)}, {s(sT0)}, {OFF_G}")
        A(f"v_lshl_add_u32 v16, {v(vL)}, 4, {s(sT0)}")
        A(f"global_store_dwordx4 v16, {v(vZ,4)}, {s(sWS,2)} sc1")
        A(f"s_mul_i32 {s(sT0)}, {s(sSL)}, {NB*128}")
        A(f"s_lshl_b32 {s(sT1)}, {s(sBKT)}, 7")
        A(f"s_add_u32 {s(sT0)}, {s(sT0)}, {s(sT1)}")
        A(f"s_add_u32 {s(sT0)}, {s(sT0)}, {OFF_F2}")
        A(f"v_lshl_add_u32 v16, {v(vL)}, 4, {s(sT0)}")
        A("s_mov_b64 exec, 0xff")
        A(f"global_store_dwordx4 v16, {v(vZ,4)}, {s(sWS,2)} sc1")
        A("s_mov_b64 exec, -1")
        A.lab("L_g_nopw")
    if OPT.get('wpf', 1):
        A(f"s_cmp_eq_u32 {s(sWAVE)}, 14")
        A("s_cbranch_scc0 L_g_nowpf")
        A.c("16 of the 512 weight lines of this slice per workgroup: row = 4k + (l&3), matrix = (l>>2)&3")
        A(f"s_and_b32 {s(sT0)}, {s(sK)}, 31")
        A(f"s_lshl_b32 {s(sT0)}, {s(sT0)}, 10")
        A(f"s_add_u32 {s(sT0)}, {s(sT0)}, s3")
        A(f"v_and_b32 v16, 3, {v(vL)}")
        A(f"v_lshl_add_u32 v16, v16, 8, {s(sT0)}")
        for m, p in enumerate((sWB, sWV, sWA, sWU)):
            A(f"s_mov_b64 exec, {hex(15 << (4*m))}")
            A(f"global_load_dword v17, v16, {s(p,2)}")
        A("s_mov_b64 exec, -1")
        A.lab("L_g_nowpf")
    A("s_barrier")
    A(f"s_cmp_ge_u32 {s(sWAVE)}, 10")
    A("s_cbranch_scc1 L_g_wdma")
    A(f"s_cmp_eq_u32 {s(sWAVE)}, 6")
    A("s_cbranch_scc0 L_g_not6")
    A.c("wave 6: w_c columns of this slice")
    A(f"v_lshl_add_u32 v14, {v(vL)}, 1, s3")
    for j in range(4):
        A(f"global_load_ushort {v(90+j)}, v14, {s(sWC,2)} offset:{256*j}")
    A.lab("L_g_not6")
    A(f"s_cmp_eq_u32 {s(sWAVE)}, 7")
    A("s_cbranch_scc0 L_g_xdma")
    A.c("wave 7: this workgroup's null table row, and pull the code into L2")
    A(f"s_mul_i32 {s(sT0)}, {s(sSL)}, {TS}")
    A(f"s_lshl_b32 {s(sT1)}, {s(sBKT)}, 8")
    A(f"s_add_u32 {s(sT0)}, {s(sT0)}, {s(sT1)}")
    A(f"s_add_u32 {s(sT0)}, {s(sT0)}, {N*256}")
    add64(A, sP0, sWS, s(sT0))
    A("v_mov_b32 v16, 0x50005000")
    A("v_mov_b32 v17, 0x50005000")
    A("v_mov_b32 v18, 0")
    A("v_mov_b32 v19, 0")
    A(f"v_lshlrev_b32 v14, 4, {v(vL)}")
    A("s_mov_b64 exec, 0xffff")
    A(f"global_store_dwordx4 v14, v[16:19], {s(sP0,2)} sc1")
    A("s_mov_b64 exec, -1")
    A(f"s_getpc_b64 {s(sP1,2)}")
    A.lab("L_pc")
    A(f"v_lshlrev_b32 v14, 7, {v(vL)}")
    A("v_min_u32 v14, L_end-L_pc, v14")
    A(f"global_load_dword v15, v14, {s(sP1,2)}")
    A.lab("L_g_xdma")
    if OPT.get('gx', 0): lds_wait(A, vZ, 11, M_P1, OPT.get('gx', 0), "gx", 1)
    A(f"s_mov_b32 {s(sSRD)}, {s(sX)}")
    A(f"s_mov_b32 {s(sSRD+1)}, {s(sX+1)}")
    A(f"s_mov_b32 {s(sSRD+2)}, {N*256}")
    A(f"s_sub_u32 {s(sT0)}, {s(sWAVE)}, 5")
    A(f"s_lshl_b32 {s(sT0)}, {s(sT0)}, 12")
    A(f"s_mul_i32 {s(sT1)}, {s(sBKT)}, {BN*256}")
    A(f"s_add_u32 {s(sT1)}, {s(sT1)}, {s(sT0)}")
    A(f"s_add_u32 m0, {s(sT0)}, {L_XS}")
    for u in range(4):
        if u:
            A(f"v_xor_b32 v14, {u<<6}, v10")
            A(f"s_add_u32 {s(sT1)}, {s(sT1)}, 1024")
            A("s_add_u32 m0, m0, 1024")
        A("s_nop 0")
        A(f"buffer_load_dwordx4 {'v14' if u else 'v10'}, {s(sSRD,4)}, {s(sT1)} offen {XF_} lds")
    lds_signal(A, vZ, vONE, M_XI)
    A(f"s_cmp_lt_u32 {s(sWAVE)}, 8")
    A("s_cbranch_scc1 L_g_b0")
    A.lab("L_g_wdma")
    A.c("W staging: waves 8..15, matrix (w-8)>>1 in order w_b, w_v, w_a, w_u")
    A(f"s_cmp_ge_u32 {s(sWAVE)}, 10")
    A(f"s_cselect_b64 {s(sSRD,2)}, {s(sWV,2)}, {s(sWB,2)}")
    A(f"s_cmp_ge_u32 {s(sWAVE)}, 12")
    A(f"s_cselect_b64 {s(sSRD,2)}, {s(sWA,2)}, {s(sSRD,2)}")
    A(f"s_cmp_ge_u32 {s(sWAVE)}, 14")
    A(f"s_cselect_b64 {s(sSRD,2)}, {s(sWU,2)}, {s(sSRD,2)}")
    A(f"s_mov_b32 {s(sSRD+2)}, 32768")
    A(f"s_sub_u32 {s(sT0)}, {s(sWAVE)}, 8")
    A(f"s_lshl_b32 {s(sT0)}, {s(sT0)}, 13")
    A(f"s_add_u32 {s(sT0)}, {s(sT0)}, {L_W}")
    A(f"s_and_b32 {s(sT1)}, {s(sWAVE)}, 1")
    A(f"s_lshl_b32 {s(sT1)}, {s(sT1)}, 14")
    A(f"s_cmp_eq_u32 {s(sWAVE)}, 15")
    A("s_cbranch_scc0 L_g_non")
    lds_wait(A, vZ, 11, M_P1, 5, "n15", 1)
    A(f"global_load_dwordx2 v[14:15], {v(vZ)}, {s(sDBG,2)} sc1")
    A("s_waitcnt vmcnt(0)")
    nonce_get(A, vZ, 14, "w")
    A("v_or_b32 v14, 1, v14")
    A(f"ds_write_b64 {v(vZ)}, v[14:15] offset:{M_NONCE}")
    A.lab("L_g_non")
    if OPT.get('gw', 0) == 1: lds_wait(A, vZ, 11, M_CD, 5, "gw", 1)
    if OPT.get('gw', 0) == 2:
        A(f"s_cmp_lt_u32 {s(sWAVE)}, 12")
        A("s_cbranch_scc1 L_gw2")
        lds_wait(A, vZ, 11, M_PO, 5, "gw", 1)
        A.lab("L_gw2")
    if OPT.get('gw', 0) in (5, 6):
        A(f"s_cmp_lt_u32 {s(sWAVE)}, 12")
        A("s_cbranch_scc1 L_gw5")
        if OPT.get('gw', 0) == 5: lds_wait(A, vZ, 11, M_GI, 7, "gwa", 1)
        else: lds_wait(A, vZ, 11, M_PO, 5, "gwa", 1)
        A.lab("L_gw5")
        lds_wait(A, vZ, 11, M_XI, 5, "gwb", 1)
    if OPT.get('gw', 0) == 3: lds_wait(A, vZ, 11, M_P2, 1, "gw", 1)
    if OPT.get('gw', 0) == 4: lds_wait(A, vZ, 11, M_P1, 5, "gw", 1)
    A.c("each workgroup starts at a different row block so an XCD fetches all of W at once")
    for u in range(8):
        A(f"s_and_b32 {s(sK)}, {s(sK)}, 7")
        A(f"s_lshl_b32 {s(sT2)}, {s(sK)}, 10")
        A(f"s_add_u32 m0, {s(sT0)}, {s(sT2)}")
        A(f"s_lshl1_add_u32 {s(sT2)}, {s(sT2)}, {s(sT1)}")
        A(f"buffer_load_dwordx4 {'v13' if u&1 else 'v12'}, {s(sSRD,4)}, {s(sT2)} offen {WF} lds")
        A.stamp(f'w{u}')
        if u < 7 and not OPT.get('norot2'): A(f"s_add_u32 {s(sK)}, {s(sK)}, 1")
    A.lab("L_g_b0")
    A(f"s_cmp_lt_u32 {s(sWAVE)}, 12")
    A("s_cbranch_scc0 L_g_nogi")
    lds_signal(A, vZ, vONE, M_GI)
    A.lab("L_g_nogi")
    A.c("GEMM addresses while the loads fly")
    vA, vACC, vBR, vTA = 16, 32, 64, 84
    NR = 5
    A(f"s_cmp_ge_u32 {s(sWAVE)}, 10")
    A(f"s_cselect_b32 {s(sT2)}, 10, 5")
    A(f"s_cselect_b32 {s(sT3)}, 32768, 0")
    A(f"s_add_u32 {s(sT3)}, {s(sT3)}, {L_W}")
    A(f"s_sub_u32 {s(sT2)}, {s(sWAVE)}, {s(sT2)}")
    A(f"s_lshl_b32 {s(sT4)}, {s(sT2)}, 12")
    A(f"s_add_u32 {s(sT4)}, {s(sT4)}, {L_XS}")
    A(f"v_xor_b32 v10, {v(vB15)}, {v(vG4)}")
    A("v_lshlrev_b32 v10, 4, v10")
    A(f"v_lshl_add_u32 v10, {v(vB15)}, 8, v10")
    A(f"v_bfe_u32 v11, {v(vL)}, 2, 2")
    A(f"v_lshl_add_u32 v12, {v(vG4)}, 3, v11")
    A("v_lshlrev_b32 v12, 7, v12")
    A(f"v_and_b32 v13, 3, {v(vL)}")
    A("v_lshl_add_u32 v12, v13, 3, v12")
    A(f"v_add_u32 v12, {s(sT3)}, v12")
    A("v_lshrrev_b32 v11, 1, v11")
    A(f"v_and_b32 v13, 1, {v(vG4)}")
    A("v_lshl_or_b32 v11, v13, 1, v11")
    for i in range(4):
        A(f"v_xor_b32 v13, {i}, v11")
        A(f"v_lshl_add_u32 {v(vTA+i)}, v13, 5, v12")
    A.stamp('gIss')
    A("s_waitcnt vmcnt(0)")
    A.stamp('gX')
    A(f"s_cmp_ge_u32 {s(sWAVE)}, 12")
    A(f"s_cselect_b32 s3, 0x10000, 1")
    A("v_mov_b32 v11, s3")
    lds_signal(A, vZ, 11, M_G)
    A(f"s_cmp_eq_u32 {s(sWAVE)}, 15")
    A("s_cbranch_scc1 L_phase2")

    A(f"s_cmp_eq_u32 {s(sWAVE)}, 6")
    A("s_cbranch_scc0 L_g_not6b")
    A.c("wave 6: wc' = bf16(-log2e * w_c) -> LDS")
    for j in range(4):
        A(f"v_lshlrev_b32 {v(90+j)}, 16, {v(90+j)}")
    for j in range(4):
        A(f"v_mul_f32 {v(90+j)}, {hex(NL2E)}, {v(90+j)}")
    A("v_cvt_pk_bf16_f32 v90, v90, v91")
    A("v_cvt_pk_bf16_f32 v91, v92, v93")
    A(f"v_lshlrev_b32 v92, 3, {v(vL)}")
    A(f"ds_write_b64 v92, v[90:91] offset:{L_WC}")
    A.lab("L_g_not6b")
    for ks in range(4):
        A(f"v_xor_b32 {v(88+ks)}, {ks<<6}, v10")
        A(f"v_add_u32 {v(88+ks)}, {s(sT4)}, {v(88+ks)}")
    A(f"s_cmp_ge_u32 {s(sWAVE)}, 10")
    A(f"s_cselect_b32 {s(sP0+1)}, -1, 0xffff")
    A(f"s_cselect_b32 {s(sP0)}, 0x40007, 7")
    A.lab("L_lw_g")
    A(f"ds_read_b32 v11, {v(vZ)} offset:{M_G}")
    A("s_waitcnt lgkmcnt(0)")
    A("v_readfirstlane_b32 s3, v11")
    A(f"s_and_b32 s3, s3, {s(sP0+1)}")
    A(f"s_cmp_eq_u32 s3, {s(sP0)}")
    A("s_cbranch_scc0 L_lw_g")
    A.stamp('gB3')
    for ks in range(4):
        A(f"ds_read_b128 {v(vA+4*ks,4)}, {v(88+ks)}")
    def rd(n):
        ks, q = n >> 3, n & 7
        b = vBR + 4 * (n % NR)
        off = ks * 4096 + (q >> 2) * 16384
        A(f"ds_read_b64_tr_b16 {v(b,2)}, {v(vTA+(q&3))} offset:{off}")
        A(f"ds_read_b64_tr_b16 {v(b+2,2)}, {v(vTA+(q&3))} offset:{off+512}")
    for n in range(NR): rd(n)
    A(f"s_cmp_ge_u32 {s(sWAVE)}, 10")
    A("s_cbranch_scc1 L_g_mm")
    A("s_setprio 2")
    A(f"s_waitcnt lgkmcnt({2*NR})")
    lds_signal(A, vZ, vONE, M_CD)
    A.lab("L_g_mm")
    for n in range(32):
        ks, q = n >> 3, n & 7
        left = min(NR - 1, 31 - n)
        A(f"s_waitcnt lgkmcnt({2*left})")
        b = vBR + 4 * (n % NR)
        c = "0" if ks == 0 else v(vACC + 4 * q, 4)
        A(f"v_mfma_f32_16x16x32_bf16 {v(vACC+4*q,4)}, {v(vA+4*ks,4)}, {v(b,4)}, {c}")
        if n + NR < 32: rd(n + NR)
    A.stamp('gMM')
    A(f"s_mov_b32 {s(sP1)}, {hex(NL2E)}")
    A(f"s_cmp_ge_u32 {s(sWAVE)}, 10")
    A("s_cbranch_scc1 L_g_xa")

    A.c("table rows: [XB' x4 | HV x4] per channel group")
    A(f"s_mul_i32 {s(sT0)}, {s(sSL)}, {TS}")
    A(f"s_mul_i32 {s(sT1)}, {s(sBKT)}, {BN*256}")
    A(f"s_add_u32 {s(sT0)}, {s(sT0)}, {s(sT1)}")
    A(f"s_lshl_b32 {s(sT1)}, {s(sT2)}, 12")
    A(f"s_add_u32 {s(sT0)}, {s(sT0)}, {s(sT1)}")
    add64(A, sP0, sWS, s(sT0))
    A(f"v_lshlrev_b32 v10, 4, {v(vB15)}")
    A(f"v_lshl_add_u32 v10, {v(vG4)}, 10, v10")
    for ip in range(4):
        o = vBR + 4 * ip
        for q in range(4):
            A(f"v_mul_f32 {v(vACC+4*q+ip)}, {s(sP1)}, {v(vACC+4*q+ip)}")
        for d in (2, 3, 0, 1):
            A(f"v_cvt_pk_bf16_f32 {v(o+d)}, {v(vACC+8*d+ip)}, {v(vACC+8*d+4+ip)}")
        A(f"global_store_dwordx4 v10, {v(o,4)}, {s(sP0,2)} offset:{256*ip} {SF}")
    lds_signal(A, vZ, vONE, M_TS)
    A("s_setprio 0")
    A("s_branch L_phase2")
    A.lab("L_g_xa")
    lds_wait(A, vZ, 11, M_CD, 10, "cd")
    A.c("xa' = -log2e*(x@w_a) - SHIFT into the node structs, xu into the x stage (swizzled)")
    A(f"s_mul_i32 {s(sT0)}, {s(sT2)}, {16*NSTR}")
    A(f"s_add_u32 {s(sT0)}, {s(sT0)}, {L_NS}")
    A(f"v_mul_u32_u24 v10, {4*NSTR}, {v(vG4)}")
    A(f"v_mad_u32_u24 v10, {v(vB15)}, 48, v10")
    A(f"v_add_u32 v10, {s(sT0)}, v10")
    A(f"v_mov_b32 v11, {hex(f2u(-float(SHIFT)))}")
    A(f"v_lshlrev_b32 v12, 2, {v(vB15)}")
    A(f"v_lshl_add_u32 v12, {v(vG4)}, 10, v12")
    A(f"v_add_u32 v12, {s(sT4)}, v12")
    for ip in range(4):
        o = vBR + 4 * ip
        for i in range(4):
            A(f"v_fma_f32 {v(o+i)}, {v(vACC+4*i+ip)}, {s(sP1)}, v11")
        A(f"ds_write_b128 v10, {v(o,4)} offset:{NSTR*ip}")
    A(f"v_mul_u32_u24 v11, {NSTR}, {v(vB15)}")
    A(f"v_add_u32 v11, {s(sT0)}, v11")
    A(f"ds_write_b64 v11, {v(vZ,2)} offset:768")
    for ip in range(4):
        if ip: A(f"v_xor_b32 v13, {ip<<4}, v12")
        a = "v13" if ip else "v12"
        for i in (0, 2):
            A(f"ds_write2_b32 {a}, {v(vACC+16+4*i+ip)}, {v(vACC+20+4*i+ip)} offset0:{64*ip+16*i} offset1:{64*ip+16*i+16}")

    A.lab("L_phase2")
    A.stamp('ph2')
    if OPT.get('probe'):
        A(f"s_getreg_b32 {s(sT0)}, hwreg(HW_REG_XCC_ID)")
        A(f"s_sub_u32 {s(sT0)}, {s(sT0)}, s2")
        A(f"s_and_b32 {s(sT0)}, {s(sT0)}, 7")
        A(f"s_lshl_b32 {s(sT0)}, {s(sT0)}, 2")
        A(f"v_mov_b32 v110, {s(sT0)}")
        A(f"s_cmp_eq_u32 {s(sWAVE)}, 0")
        A("s_cselect_b64 exec, 1, 0")
        A("s_cbranch_execz L_prb")
        A(f"global_atomic_add v110, {v(vONE)}, {s(sDBG,2)} offset:32 sc1")
        A.lab("L_prb")
        A("s_mov_b64 exec, -1")
    T = [[8, 12], [16, 20]]; H = [[24, 28], [32, 36]]
    P, S, AA, DEN, NUM, XA = 40, 44, 48, 52, 56, 60
    LB = [[64, 70], [76, 82]]
    AE = [88, 92]; IDX = 96; IDM = 100; CB = 102
    vIA, vEA, vEI, vPTR, vZA, vEVB = 104, 105, 106, 107, 108, 109
    vB15, vG4, vGW, vGA, vRB = 110, 111, 112, 114, 115
    vX = 116
    vEIGHT = 3
    vOUT, vDN, vXU, vXL, vNSA, vXA_, vSID = 120, 121, 122, 123, 124, 125, 126
    RB = lambda j: 8 + 4 * j
    vCI = 40
    A(f"v_and_b32 {v(vB15)}, 15, {v(vL)}")
    A(f"v_lshrrev_b32 {v(vG4)}, 4, {v(vL)}")
    A.c("granule of chunk c = 16w + 4(l&15) + (l>>4), lanes with (l&15) < 4")
    A(f"v_lshl_add_u32 v3, {v(vB15)}, 2, {v(vG4)}")
    A(f"s_lshl_b32 s3, {s(sWAVE)}, 4")
    A("v_add_u32 v3, s3, v3")
    A(f"v_cmp_gt_u32 vcc, {NC}, v3")
    A(f"s_mov_b32 {s(sEX)}, 0x000f000f")
    A(f"s_mov_b32 {s(sEX+1)}, 0x000f000f")
    A(f"s_and_b64 {s(sEX,2)}, {s(sEX,2)}, vcc")
    A(f"v_mul_u32_u24 {v(vGA)}, {GSTR}, v3")
    A(f"s_lshl_b32 {s(sT0)}, {s(sBKT)}, 3")
    A(f"s_add_u32 {s(sT0)}, {s(sT0)}, {OFF_G}")
    A(f"v_add_u32 {v(vGA)}, {s(sT0)}, {v(vGA)}")
    A(f"v_mov_b32 {v(vGW)}, 0")
    A.c("constants for the edge loop")
    A(f"v_add_u32 v3, s3, {v(vG4)}")
    A(f"v_mul_u32_u24 {v(vRB)}, {RECSZ}, v3")
    A(f"v_mad_u32_u24 {v(vRB)}, {v(vB15)}, 12, {v(vRB)}")
    add64(A, sSRD, sWS, OFF_REC)
    A(f"s_mov_b32 {s(sSRD+2)}, {NC*RECSZ}")
    A(f"s_mov_b32 {s(sSRD+3)}, 0x20000")
    A(f"s_mul_i32 {s(sT0)}, {s(sSL)}, {TS}")
    add64(A, sTAB, sWS, s(sT0))
    A(f"s_or_b32 {s(sTAB+1)}, {s(sTAB+1)}, {OPT.get('tstride', 256)<<16}")
    A(f"s_mov_b32 {s(sTAB+2)}, {OPT.get('nrows', NROWS)}")
    A(f"s_mov_b32 {s(sTAB+3)}, 0x20000")
    for j in range(1, 4): A(f"s_mov_b32 {s(sJ+j-1)}, {j*4*RECSZ}")
    A(f"s_mov_b32 {s(sLO)}, 0")
    A(f"s_mov_b32 {s(sMODE)}, 0")
    A(f"s_mov_b64 {s(sWM,2)}, -1")
    A(f"s_mov_b64 {s(sP1M,2)}, -1")
    A(f"v_and_b32 v3, 1, {v(vL)}")
    A("v_lshlrev_b32 v3, 4, v3")
    A(f"v_mov_b32 v8, 0x3f80")
    A("v_lshlrev_b32 v3, v3, v8")
    A(f"v_and_b32 v8, 2, {v(vL)}")
    A("v_cmp_eq_u32 vcc, 0, v8")
    A(f"v_bfe_u32 v9, {v(vL)}, 2, 2")
    A(f"v_cmp_eq_u32 {s(sP0,2)}, v9, {v(vG4)}")
    A(f"v_cndmask_b32 {v(IDM)}, 0, v3, vcc")
    A(f"v_cndmask_b32 {v(IDM+1)}, v3, 0, vcc")
    A(f"v_and_b32 v8, 3, {v(vL)}")
    for x in AE:
        A(f"v_cndmask_b32 {v(x+2)}, 0, {v(IDM)}, {s(sP0,2)}")
        A(f"v_cndmask_b32 {v(x+3)}, 0, {v(IDM+1)}, {s(sP0,2)}")
    A(f"v_cmp_eq_u32 vcc, v8, {v(vG4)}")
    A(f"v_mov_b32 {v(CB)}, {hex(CBF | CBF << 16)}")
    A(f"v_mov_b32 {v(CB+1)}, {hex(CBF | CBF << 16)}")
    A(f"v_cndmask_b32 {v(vEI)}, 0, 32, vcc")
    A(f"v_lshlrev_b32 {v(IDX+1)}, 4, {v(vB15)}")
    A(f"v_lshlrev_b32 {v(IDX+3)}, 4, {v(vB15)}")
    A(f"v_mov_b32 {v(vZA)}, {L_ZERO}")
    A.c("table flag f = 8w + l (lanes 0..7); prefetch share: block 8w + (l&7), line 5k + (l>>3)")
    A(f"s_lshl_b32 s3, {s(sWAVE)}, 3")
    A(f"v_add_u32 v48, s3, {v(vL)}")
    A(f"v_cmp_gt_u32 vcc, {NB}, v48")
    A(f"s_and_b64 {s(sF2M,2)}, vcc, 0xff")
    A(f"s_mul_i32 {s(sT0)}, {s(sSL)}, {NB*128}")
    A(f"s_add_u32 {s(sT0)}, {s(sT0)}, {OFF_F2}")
    A(f"v_lshl_add_u32 v56, v48, 7, {s(sT0)}")
    A(f"v_and_b32 v48, 7, {v(vL)}")
    A("v_add_u32 v48, s3, v48")
    A(f"v_cmp_gt_u32 vcc, {NB}, v48")
    A(f"s_bfm_b64 {s(sPFM,2)}, {8*OPT.get('pf', 2)}, 0")
    A(f"s_and_b64 {s(sPFM,2)}, {s(sPFM,2)}, vcc")
    A(f"s_mul_i32 {s(sT0)}, {s(sSL)}, {TS}")
    A(f"v_mul_u32_u24 v48, {BN*256}, v48")
    A(f"v_add_u32 v48, {s(sT0)}, v48")
    A(f"v_lshrrev_b32 v49, 3, {v(vL)}")
    A("s_lshr_b32 s3, s2, 3")
    A("s_mul_i32 s3, s3, 5")
    A("v_add_u32 v49, s3, v49")
    A("v_lshl_add_u32 v119, v49, 7, v48")
    A(f"v_lshlrev_b32 v57, 3, {v(vL)}")
    A.c("addresses for the end of the streams and for the output pass")
    A(f"s_lshl_b32 {s(sT0)}, {s(sWAVE)}, 2")
    A(f"v_add_u32 {v(vSID)}, {s(sT0)}, {v(vG4)}")
    A(f"v_mul_u32_u24 {v(vXA_)}, {XSTR}, {v(vSID)}")
    A(f"v_lshl_add_u32 {v(vXA_)}, {v(vB15)}, 5, {v(vXA_)}")
    A(f"v_add_u32 {v(vXA_)}, {L_EXT}, {v(vXA_)}")
    A(f"v_lshrrev_b32 v8, 5, {v(vL)}")
    A(f"v_and_b32 v9, 3, {v(vL)}")
    A(f"v_bfe_u32 v10, {v(vL)}, 2, 3")
    A(f"s_lshl_b32 {s(sT2)}, {s(sWAVE)}, 3")
    A(f"v_add_u32 v10, {s(sT2)}, v10")
    A("v_lshl_add_u32 v11, v9, 1, v8")
    A("v_lshlrev_b32 v12, 4, v11")
    A("v_lshl_add_u32 v12, v10, 8, v12")
    A(f"s_mul_i32 {s(sT0)}, {s(sBKT)}, {BN*256}")
    A(f"s_lshl_b32 {s(sT1)}, {s(sSL)}, 7")
    A(f"s_add_u32 {s(sT0)}, {s(sT0)}, {s(sT1)}")
    A(f"v_add_u32 {v(vOUT)}, {s(sT0)}, v12")
    A(f"v_mul_u32_u24 {v(vNSA)}, {NSTR}, v10")
    A(f"v_add_u32 {v(vNSA)}, {L_NS}, {v(vNSA)}")
    A("v_mul_u32_u24 v14, 384, v8")
    A("v_lshl_add_u32 v14, v9, 2, v14")
    A(f"v_add3_u32 {v(vDN)}, {v(vNSA)}, v14, 16")
    A("v_lshlrev_b32 v14, 2, v9")
    A("v_lshl_add_u32 v14, v8, 8, v14")
    A(f"v_add_u32 {v(vXL)}, {L_EXT}, v14")
    A("v_and_b32 v14, 3, v10")
    A("v_lshlrev_b32 v15, 1, v11")
    A("v_xor_b32 v14, v14, v15")
    A("v_lshlrev_b32 v14, 4, v14")
    A("v_lshl_add_u32 v14, v10, 8, v14")
    A(f"v_add_u32 {v(vXU)}, {L_XS}, v14")
    A(f"v_mul_u32_u24 v127, 48, {v(vB15)}")
    A(f"v_add_u32 v127, {L_NS-NSTR}, v127")
    A(f"v_mov_b32 {v(vEIGHT)}, 8")
    if diag or OPT.get('hold') or OPT.get('probe'): A(f"s_mov_b32 {s(sST+1)}, {s(sRT)}")
    A(f"s_mov_b64 {s(sDONE,2)}, 0")
    for j in range(8): A(f"s_mov_b64 {s(sMK+2*j,2)}, 0")
    A(f"s_mov_b32 {s(sSPIN)}, {SPIN}")
    A.c("table waves: once their stores have drained the last one raises the table flag")
    A(f"s_sub_u32 s3, {s(sWAVE)}, 5")
    A("s_cmp_lt_u32 s3, 5")
    A("s_cbranch_scc0 L_poll0")
    nonce_lds(A, vZ, 48, "t")
    A("s_waitcnt vmcnt(0)")
    A.stamp('tDrain')
    A("s_mov_b64 exec, 1")
    A(f"ds_add_rtn_u32 v48, {v(vZ)}, {v(vONE)} offset:{M_CTRB}")
    A(f"s_mul_i32 {s(sT0)}, {s(sSL)}, {NB*128}")
    A(f"s_lshl_b32 {s(sT1)}, {s(sBKT)}, 7")
    A(f"s_add_u32 {s(sT0)}, {s(sT0)}, {s(sT1)}")
    A(f"s_add_u32 {s(sT0)}, {s(sT0)}, {OFF_F2}")
    A(f"v_mov_b32 v49, {s(sT0)}")
    A(f"v_mov_b32 v50, {s(sNON)}")
    A(f"v_mov_b32 v51, {s(sNON+1)}")
    A("s_waitcnt lgkmcnt(0)")
    A("v_readfirstlane_b32 s3, v48")
    A("s_cmp_eq_u32 s3, 4")
    A("s_cbranch_scc0 L_poll0")
    A(f"global_store_dwordx2 v49, v[50:51], {s(sWS,2)} sc1")
    A.lab("L_poll0")
    A("s_mov_b64 exec, -1")
    lds_wait(A, vZ, 48, M_CTRA, 5, "pa", 1)
    if OPT.get('pgate', 1): lds_wait(A, vZ, 48, M_CTRB, 5, "pb", 1)
    nonce_lds(A, vZ, 48, "q")
    A(f"v_lshlrev_b32 v57, 3, {v(vL)}")
    for bb in LB:
        for x in bb:
            A(f"ds_read_b64 {v(x,2)}, v57 offset:{L_WC}")
    if OPT.get('pdelay', 16): A(f"s_sleep {OPT.get('pdelay', 16)}")
    A(f"s_mov_b64 exec, {s(sEX,2)}")
    A(f"global_load_dwordx2 {v(vGW,2)}, {v(vGA)}, {s(sWS,2)} sc1")
    if OPT.get('f2at', 1) == 2:
        A(f"s_mov_b64 exec, {s(sF2M,2)}")
        A(f"global_load_dwordx2 v[58:59], v56, {s(sWS,2)} sc1")
    A("s_waitcnt vmcnt(0)")
    A.stamp('poll1')
    A.lab("L_poll")
    def f2_check(tag, skip):
        A(f"s_mov_b64 exec, {s(sF2M,2)}")
        if tag != "b": A(f"s_cbranch_execz {skip}")
        A(f"v_cmp_ne_u32 vcc, {s(sNON)}, v58")
        A(f"v_cmp_ne_u32 {s(sP0,2)}, {s(sNON+1)}, v59")
        A(f"s_or_b64 vcc, vcc, {s(sP0,2)}")
        A(f"s_cbranch_scc1 {skip}")
        if OPT.get('pf', 2):
            A(f"s_mov_b64 exec, {s(sPFM,2)}")
            A(f"global_load_dword v118, v119, {s(sWS,2)} sc1")
        A(f"s_mov_b64 {s(sF2M,2)}, 0")
    A.c("segments whose granule carries this launch's tag are fetched at once")
    A(f"s_andn2_b64 exec, {s(sEX,2)}, {s(sDONE,2)}")
    A(f"v_and_b32 v48, 0xffc00000, {v(vGW)}")
    A(f"v_cmp_eq_u32 vcc, {s(sNON)}, {v(vGW+1)}")
    A(f"v_cmp_eq_u32 {s(sP0,2)}, {s(sNON+1)}, v48")
    A("s_mov_b64 exec, -1")
    A(f"s_and_b64 {s(sP0,2)}, {s(sP0,2)}, vcc")
    A("s_cbranch_scc0 L_repoll")
    A(f"s_or_b64 {s(sDONE,2)}, {s(sDONE,2)}, {s(sP0,2)}")
    A.lab("L_round")
    A(f"v_cndmask_b32 v51, 0, {v(vGW)}, {s(sP0,2)}")
    for j in range(4):
        A(f"s_or_b32 s3, {s(sP0)}, {s(sP0+1)}")
        A(f"s_and_b32 s3, s3, {hex(0x10001 << j)}")
        A(f"s_cbranch_scc0 L_ld{4+j}")
        A(f"v_mov_b32_dpp v48, v51 row_newbcast:{j} row_mask:0xf bank_mask:0xf")
        A("v_and_b32 v49, 0x7ff, v48")
        A("v_bfe_u32 v50, v48, 11, 11")
        A(f"v_add_u32 v49, {s(sLO)}, v49")
        A(f"v_subrev_u32 v50, {s(sLO)}, v50")
        A(f"v_mad_u32_u24 v52, v49, 12, {v(vRB)}")
        A(f"v_cmp_lt_i32 vcc, {v(vB15)}, v50")
        A("v_subrev_u32 v50, 16, v50")
        A(f"v_cmp_lt_i32 {s(sP1,2)}, {v(vB15)}, v50")
        A(f"s_and_b64 exec, vcc, {s(sWM,2)}")
        A(f"s_cbranch_execz L_ld{j}")
        A(f"buffer_load_dwordx3 {v(RB(j),3)}, v52, {s(sSRD,4)}, {s(sJ+j-1) if j else 0} offen sc1")
        A(f"s_or_b64 {s(sMK+2*j,2)}, {s(sMK+2*j,2)}, exec")
        A(f"s_and_b64 exec, {s(sP1,2)}, {s(sP1M,2)}")
        A(f"s_cbranch_execz L_ld{j}")
        A(f"buffer_load_dwordx3 {v(RB(4+j),3)}, v52, {s(sSRD,4)}, {s(sJ+j-1) if j else 0} offen offset:192 sc1")
        A(f"s_or_b64 {s(sMK+8+2*j,2)}, {s(sMK+8+2*j,2)}, exec")
        A.lab(f"L_ld{j}")
        A("s_mov_b64 exec, -1")
        A.lab(f"L_ld{4+j}")
    A.lab("L_repoll")
    A(f"s_andn2_b64 exec, {s(sEX,2)}, {s(sDONE,2)}")
    A("s_cbranch_execz L_polled")
    A(f"s_sub_u32 {s(sSPIN)}, {s(sSPIN)}, 1")
    A("s_cbranch_scc1 L_polled")
    if OPT.get('psleep', 8): A(f"s_sleep {OPT.get('psleep', 8)}")
    A.stamp('plI')
    A(f"global_load_dwordx2 {v(vGW,2)}, {v(vGA)}, {s(sWS,2)} sc1")
    A("s_waitcnt vmcnt(0)")
    A("s_branch L_poll")
    A.lab("L_polled")
    A(f"s_mov_b64 exec, {s(sEX,2)}")
    A(f"v_bfe_u32 v48, {v(vGW)}, 11, 11")
    A(f"ds_max_u32 {v(vZ)}, v48 offset:{M_MAXLEN}")
    A("s_mov_b64 exec, -1")
    A.stamp('polled')
    if diag == 1: A(f"s_sub_u32 {s(sNPOLL)}, {SPIN}, {s(sSPIN)}")
    def f2_load():
        A(f"s_mov_b64 exec, {s(sF2M,2)}")
        A("s_cbranch_execz L_nof2")
        A(f"global_load_dwordx2 v[58:59], v56, {s(sWS,2)} sc1")
        A.lab("L_nof2")
        A("s_mov_b64 exec, -1")
    F2AT = OPT.get('f2at', 1)
    if F2AT == 0: f2_load()
    if F2AT == 2:
        f2_check("a", "L_f2no")
        A("s_mov_b64 exec, -1")
        A("s_waitcnt vmcnt(1)")
        A("s_branch L_f2yes")
        A.lab("L_f2no")
        A("s_mov_b64 exec, -1")
    A("s_waitcnt vmcnt(0)")
    if F2AT == 2: A.lab("L_f2yes")
    A.stamp('recs')
    if F2AT == 1: f2_load()
    for j in range(8):
        A(f"s_mov_b64 exec, {s(sMK+2*j,2)}")
        if j >= 4: A(f"s_cbranch_execz L_rk{j}")
        A(f"v_lshrrev_b32 {v(vCI+j)}, 14, {v(RB(j)+2)}")
        A(f"ds_add_rtn_u32 {v(RB(j)+3)}, {v(vCI+j)}, {v(vEIGHT)} offset:{L_CNT2}")
        if j >= 4: A.lab(f"L_rk{j}")
    if F2AT == 0:
        f2_check("a", "L_f2back")
        A.lab("L_f2back")
    A("s_mov_b64 exec, -1")
    A("s_waitcnt lgkmcnt(0)")
    A.stamp('rk')
    A("s_barrier")
    A.stamp('B5')
    vCA, vPA, vSUM, vINC, vSTA = 48, 50, 52, 53, 54
    A(f"ds_read_b64 {v(vCA,2)}, v57 offset:{L_CNT2}")
    A(f"ds_read_b32 v60, {v(vZ)} offset:{M_MAXLEN}")
    A(f"v_cmp_gt_u32 vcc, {BN//2}, {v(vL)}")
    A("s_waitcnt lgkmcnt(0)")
    A.c("counts are in units of 8 bytes; vPA = bytes of e-list per node = 16 * max(2, ceil(n/2))")
    for k in range(2): A(f"v_add_u32 {v(vPA+k)}, 8, {v(vCA+k)}")
    for k in range(2): A(f"v_and_b32 {v(vPA+k)}, -16, {v(vPA+k)}")
    for k in range(2): A(f"v_max_u32 {v(vPA+k)}, 32, {v(vPA+k)}")
    for k in range(2): A(f"v_cndmask_b32 {v(vPA+k)}, 0, {v(vPA+k)}, vcc")
    A(f"v_readfirstlane_b32 {s(sMAXL)}, v60")
    A(f"v_add_u32 {v(vINC)}, {v(vPA)}, {v(vPA+1)}")
    A(f"v_subrev_u32 {v(vSUM)}, {L_E}, {v(vINC)}")
    wave_scan(A, vINC)
    A(f"v_sub_u32 {v(vSTA)}, {v(vINC)}, {v(vSUM)}")
    A(f"v_readlane_b32 {s(sTP)}, {v(vINC)}, 63")
    A(f"v_add_u32 {v(vSTA+1)}, {v(vPA)}, {v(vSTA)}")
    A(f"s_lshr_b32 {s(sTP)}, {s(sTP)}, 4")
    A.c("first round only: does everything fit in one round?")
    A(f"s_cmp_eq_u32 {s(sMODE)}, 0")
    A("s_cbranch_scc0 L_fits")
    A(f"s_cmp_gt_u32 {s(sMAXL)}, 32")
    A("s_cbranch_scc1 L_goslow")
    A(f"s_cmp_gt_u32 {s(sTP)}, {CAP_PAIRS}")
    A("s_cbranch_scc1 L_goslow")
    A.lab("L_fits")
    A(f"ds_write_b64 v57, {v(vSTA,2)} offset:{L_ST2}")
    for j in range(8):
        A(f"s_mov_b64 exec, {s(sMK+2*j,2)}")
        if j >= 4: A(f"s_cbranch_execz L_sr{j}")
        A(f"ds_read_b32 {v(vCI+j)}, {v(vCI+j)} offset:{L_ST2}")
        if j >= 4: A.lab(f"L_sr{j}")
    A("s_mov_b64 exec, -1")
    if F2AT == 1:
        A("s_waitcnt vmcnt(0)")
        f2_check("a", "L_f2back")
        A.lab("L_f2back")
        A("s_mov_b64 exec, -1")
    A.c("stream geometry")
    A(f"s_add_u32 {s(sT0)}, {s(sTP)}, 3")
    A(f"s_lshr_b32 {s(sT0)}, {s(sT0)}, 2")
    A(f"s_lshr_b32 {s(sT1)}, {s(sT0)}, 4")
    A(f"s_and_b32 {s(sT2)}, {s(sT0)}, 15")
    A(f"s_mul_i32 {s(sS)}, {s(sWAVE)}, {s(sT1)}")
    A(f"s_min_u32 {s(sT3)}, {s(sWAVE)}, {s(sT2)}")
    A(f"s_add_u32 {s(sS)}, {s(sS)}, {s(sT3)}")
    A(f"s_lshl_b32 {s(sS)}, {s(sS)}, 2")
    A(f"s_cmp_lt_u32 {s(sWAVE)}, {s(sT2)}")
    A(f"s_addc_u32 {s(sL)}, {s(sT1)}, 0")
    A(f"s_mov_b32 {s(sT1)}, {L_META}")
    A(f"s_mov_b32 {s(sT2)}, {L_E}")
    A.c("null padding: waves 0-7 pad nodes, wave 8 pads the tail")
    A(f"s_cmp_gt_u32 {s(sWAVE)}, 8")
    A("s_cbranch_scc1 L_nopad")
    A(f"s_cmp_eq_u32 {s(sWAVE)}, 8")
    A("s_cbranch_scc1 L_padtail")
    A(f"s_cmp_ge_u32 {s(sWAVE)}, 4")
    A(f"s_cselect_b64 vcc, -1, 0")
    A(f"s_cselect_b32 {s(sT3)}, 1, 0")
    A(f"s_and_b32 {s(sT4)}, {s(sWAVE)}, 3")
    A(f"s_lshl_b32 {s(sT4)}, {s(sT4)}, 3")
    A(f"v_cndmask_b32 v60, {v(vCA)}, {v(vCA+1)}, vcc")
    A(f"v_cndmask_b32 v61, {v(vPA)}, {v(vPA+1)}, vcc")
    A(f"v_cndmask_b32 v62, {v(vSTA)}, {v(vSTA+1)}, vcc")
    A(f"v_add_u32 v60, {s(sT4)}, v60")
    A("v_add_u32 v62, v62, v60")
    A("v_cmp_lt_u32 vcc, v60, v61")
    A(f"v_lshl_add_u32 v63, {v(vL)}, 1, {s(sT3)}")
    A("s_branch L_padwr")
    A.lab("L_padtail")
    A(f"s_lshl_b32 {s(sT3)}, {s(sTP)}, 1")
    A(f"s_lshl_b32 {s(sT4)}, {s(sT0)}, 3")
    A(f"v_add_u32 v62, {s(sT3)}, {v(vL)}")
    A(f"v_cmp_eq_u32 vcc, {s(sT4)}, v62")
    A(f"v_mov_b32 v63, {BN-1}")
    A("v_mov_b32 v61, 255")
    A("v_cndmask_b32 v63, v63, v61, vcc")
    A(f"v_cmp_ge_u32 vcc, {s(sT4)}, v62")
    A(f"v_lshl_add_u32 v62, v62, 3, {s(sT2)}")
    A.lab("L_padwr")
    A(f"s_add_u32 {s(sT3)}, {s(sBKT)}, {N}")
    A(f"v_lshl_or_b32 v63, v63, 16, {s(sT3)}")
    A("v_lshrrev_b32 v60, 1, v62")
    A("s_mov_b64 exec, vcc")
    A(f"ds_write_b32 v60, v63 offset:{L_META - L_E//2}")
    A(f"ds_write_b64 v62, {v(vZ,2)}")
    A("s_mov_b64 exec, -1")
    A.lab("L_nopad")
    A("s_waitcnt lgkmcnt(0)")
    for j in range(8):
        A(f"s_mov_b64 exec, {s(sMK+2*j,2)}")
        if j >= 4: A(f"s_cbranch_execz L_sw{j}")
        A(f"v_add_u32 {v(vCI+j)}, {v(vCI+j)}, {v(RB(j)+3)}")
        A(f"v_lshrrev_b32 {v(RB(j)+3)}, 1, {v(vCI+j)}")
        A(f"ds_write_b64 {v(vCI+j)}, {v(RB(j),2)}")
        A(f"ds_write_b32 {v(RB(j)+3)}, {v(RB(j)+2)} offset:{L_META - L_E//2}")
        if j >= 4: A.lab(f"L_sw{j}")
    A.c("stream addresses")
    A("s_mov_b64 exec, -1")
    A(f"v_mul_u32_u24 v60, {s(sL)}, {v(vG4)}")
    A(f"v_add_u32 v60, {s(sS)}, v60")
    A(f"v_lshl_add_u32 {v(vIA)}, v60, 3, {s(sT1)}")
    A(f"v_bfe_u32 v61, {v(vL)}, 2, 2")
    A(f"v_mul_u32_u24 v61, {s(sL)}, v61")
    A(f"v_add_u32 v61, {s(sS)}, v61")
    A(f"v_lshl_add_u32 v61, v61, 4, {s(sT2)}")
    A(f"v_cmp_ne_u32 vcc, 0, {v(vEI)}")
    A(f"s_lshl_b32 {s(sT3)}, {s(sS)}, 3")
    A(f"s_add_u32 {s(sT3)}, {s(sT3)}, {s(sT1)}")
    A(f"v_cndmask_b32 {v(vEA)}, {v(vZA)}, v61, vcc")
    A(f"v_lshl_add_u32 v60, {v(vL)}, 3, {s(sT3)}")
    A(f"s_lshl_b32 {s(sT3)}, {s(sL)}, 3")
    for g in range(1, 4):
        A(f"v_add_u32 {v(60+g)}, {s(sT3)}, {v(60+g-1)}")
    for k in range(4): A(f"v_mov_b32 {v(P+k)}, 1.0")
    A(f"v_mov_b32 v9, {v(IDX+1)}")
    A(f"v_mov_b32 v11, {v(IDX+1)}")
    A.stamp('scat')
    A.c("all table rows of this slice must be published")
    A(f"s_cmp_eq_u64 {s(sF2M,2)}, 0")
    A("s_cbranch_scc0 L_f2")
    A.lab("L_f2_done")
    A.stamp('f2')
    A("s_mov_b64 exec, -1")
    A("s_waitcnt lgkmcnt(0)")
    A("s_barrier")
    if OPT.get('fair', 1): A("s_setprio 3")
    A.stamp('B6')

    def gather(buf, x):
        r = LB[buf][x] + 2
        A(f"buffer_load_dwordx4 {v(r,4)}, {v(IDX+2*x,2)}, {s(sTAB,4)}, 0 idxen offen {GF}")
    def rd_idx(off):
        A(f"ds_read_u16 {v(IDX)}, {v(vIA)} offset:{off}")
        A(f"ds_read_u16 {v(IDX+2)}, {v(vIA)} offset:{off+4}")
    def rd_e(off):
        A(f"ds_read_b64 {v(AE[0],2)}, {v(vEA)} offset:{off}")
        A(f"ds_read_b64 {v(AE[1],2)}, {v(vEA)} offset:{off+8}")
    m32 = lambda d, buf, x: f"v_mfma_f32_16x16x32_bf16 {v(d,4)}, {v(AE[x],4)}, {v(LB[buf][x],4)}, {v(XA,4)}"
    m4h = lambda d, buf, x: f"v_mfma_f32_4x4x4_16b_bf16 {v(d,4)}, {v(IDM,2)}, {v(LB[buf][x]+4,2)}, 0"
    m4c = lambda d: f"v_mfma_f32_4x4x4_16b_bf16 {v(d,4)}, {v(IDM,2)}, {v(CB,2)}, {v(d,4)}"
    ex = lambda d: f"v_exp_f32_e64 {v(d)}, {v(d)} clamp"
    rcp = lambda k: f"v_rcp_f32_e32 {v(P+k)}, {v(P+k)}"

    rd_idx(0)
    A(f"ds_read_u16 v8, {v(vIA)} offset:8")
    A(f"ds_read_u16 v10, {v(vIA)} offset:12")
    A(f"ds_read_u16 v12, {v(vIA)} offset:2")
    A(f"s_sub_u32 {s(sT0)}, {s(sL)}, 1")
    A(f"s_bfm_b64 {s(sF2M,2)}, {s(sT0)}, 0")
    A(f"s_mov_b32 {s(sT1)}, {NSTR}")
    A("s_waitcnt lgkmcnt(3)")
    gather(0, 0); gather(0, 1)
    A("s_waitcnt lgkmcnt(0)")
    A(f"buffer_load_dwordx4 {v(LB[1][0]+2,4)}, v[8:9], {s(sTAB,4)}, 0 idxen offen {GF}")
    A(f"buffer_load_dwordx4 {v(LB[1][1]+2,4)}, v[10:11], {s(sTAB,4)}, 0 idxen offen {GF}")
    for g in range(4):
        A(f"ds_read_u16 {v(16+2*g)}, {v(60+g)} offset:2")
        A(f"ds_read_u16 {v(17+2*g)}, {v(60+g)} offset:10")
    rd_e(0)
    A(f"s_cmp_eq_u32 {s(sMODE)}, 0")
    A("s_cbranch_scc1 L_nozero")
    A(f"ds_write_b64 v57, {v(vZ,2)} offset:{L_CNT2}")
    A.lab("L_nozero")
    A(f"v_mad_u32_u24 {v(vPTR)}, v12, {s(sT1)}, v127")
    A(f"ds_read_b128 {v(XA,4)}, {v(vPTR)} offset:{NSTR}")
    rd_idx(16)
    for k in range(4): A(f"ds_read_b128 {v(S+4*k,4)}, {v(vZA)}")
    A("s_waitcnt lgkmcnt(9)")
    A.c("node-end masks -> per-step event byte (switch nibble <<4 | flush nibble), lane = step+1")
    A(f"s_mov_b32 {s(sEND)}, 0")
    for g in (3, 2, 1, 0):
        A(f"v_cmp_ne_u32 vcc, {v(16+2*g)}, {v(17+2*g)}")
        A(f"s_bitcmp1_b32 vcc_lo, {s(sT0)}")
        A(f"s_addc_u32 {s(sEND)}, {s(sEND)}, {s(sEND)}")
        A(f"s_and_b64 {s(sMK+2*g,2)}, vcc, {s(sF2M,2)}")
        A(f"s_lshl_b64 {s(sMK+8+2*g,2)}, {s(sMK+2*g,2)}, 2")
    A(f"v_mov_b32 {v(vEVB)}, 0")
    for k in (3, 2, 1, 0, 7, 6, 5, 4):
        A(f"v_addc_co_u32 {v(vEVB)}, vcc, {v(vEVB)}, {v(vEVB)}, {s(sMK+2*k,2)}")
    A(f"v_cmp_ne_u32 vcc, 0, {v(vEVB)}")
    A(f"s_lshr_b64 {s(sP0,2)}, vcc, 1")
    A(f"s_bitset1_b32 {s(sP0)}, {s(sT0)}")
    if OPT.get('noev'):
        A(f"s_mov_b32 {s(sP0)}, 0")
        A(f"s_bitset1_b32 {s(sP0)}, {s(sT0)}")
    if OPT.get('fair', 1):
        if OPT.get('fair', 1) == 2: A(f"s_or_b32 {s(sP0)}, {s(sP0)}, 0x4210")
    if OPT.get('tail', 1):
        A(f"s_sub_u32 {s(sT1)}, {s(sL)}, 4")
        A(f"s_max_i32 {s(sT1)}, {s(sT1)}, 0")
        A(f"s_bitset1_b32 {s(sP0)}, {s(sT1)}")
    A(f"s_brev_b32 {s(sEV)}, {s(sP0)}")
    A(f"s_sub_u32 {s(sLM)}, {s(sL)}, 32")
    if OPT.get('sched') == 'tpk':
        A(f"s_mov_b32 s12, {hex((127 - SHIFT) << 23)}")
        A(f"s_mov_b32 s13, {hex((127 - SHIFT) << 23)}")
    if OPT.get('tail', 1):
        A(f"s_cmp_gt_u32 {s(sL)}, 3")
        A("s_cselect_b64 vcc, 1, 0")
    A(f"v_readfirstlane_b32 {s(sT0)}, {v(vEVB)}")
    A("s_waitcnt vmcnt(2) lgkmcnt(0)")
    A(m32(T[0][0], 0, 0)); A(m32(T[0][1], 0, 1)); A(m4h(H[0][0], 0, 0)); A(m4h(H[0][1], 0, 1))
    gather(0, 0); gather(0, 1)
    rd_e(16)
    rd_idx(24)
    A(f"s_lshr_b32 {s(sT0)}, {s(sT0)}, 4")
    A.stamp('fill')
    A("s_cbranch_scc0 L_loop")
    for _ in range(4): A(f"s_bitreplicate_b64_b32 {s(sP0,2)}, {s(sT0) if _ == 0 else s(sP0)}")
    A(f"s_mov_b64 exec, {s(sP0,2)}")
    A(f"v_add_u32 {v(vPTR)}, {NSTR}, {v(vPTR)}")
    A(f"ds_read_b128 {v(XA,4)}, {v(vPTR)} offset:{NSTR}")
    A("s_mov_b64 exec, -1")

    def body(c, ioff, eoff):
        loopbody.body(A, c, ioff, eoff, sTAB, sEV, GF, OPT.get('sched', 'v7t'))

    def handler(tag, ret):
        A(f"s_ff1_i32_b32 {s(sT0)}, {s(sEV)}")
        A(f"s_cmp_eq_u32 {s(sEV)}, 0")
        A(f"s_cselect_b32 {s(sT0)}, 32, {s(sT0)}")
        A(f"s_add_u32 {s(sT0)}, {s(sT0)}, {s(sLM)}")
        A(f"v_readlane_b32 {s(sT1)}, {v(vEVB)}, {s(sT0)}")
        if OPT.get('tail', 1):
            A(f"s_add_u32 {s(sT2)}, {s(sT0)}, 3")
            A(f"s_cmp_lt_u32 {s(sT2)}, {s(sL)}" if False else f"s_cmp_gt_u32 {s(sL)}, {s(sT2)}")
            A("s_cselect_b64 vcc, 1, 0")
        A(f"s_and_b32 {s(sP0)}, {s(sT1)}, 15")
        A(f"s_cbranch_scc0 L_nofl{tag}")
        for _ in range(4): A(f"s_bitreplicate_b64_b32 {s(sP0,2)}, {s(sP0)}")
        A(f"s_mov_b64 exec, {s(sP0,2)}")
        A(f"ds_write_b128 {v(vPTR)}, {v(DEN,4)} offset:16")
        A(f"ds_write_b128 {v(vPTR)}, {v(NUM,4)} offset:32")
        A(f"ds_read_b128 {v(DEN,4)}, {v(vZA)}")
        A(f"ds_read_b128 {v(NUM,4)}, {v(vZA)}")
        A.lab(f"L_nofl{tag}")
        A(f"s_lshr_b32 {s(sP0)}, {s(sT1)}, 4")
        A(f"s_cbranch_scc0 L_nosw{tag}")
        for _ in range(4): A(f"s_bitreplicate_b64_b32 {s(sP0,2)}, {s(sP0)}")
        A(f"s_mov_b64 exec, {s(sP0,2)}")
        A(f"v_add_u32 {v(vPTR)}, {NSTR}, {v(vPTR)}")
        A(f"ds_read_b128 {v(XA,4)}, {v(vPTR)} offset:{NSTR}")
        A.lab(f"L_nosw{tag}")
        A("s_mov_b64 exec, -1")
        if OPT.get('fair', 1):
            A.c("waves that are ahead yield to the ones behind")
            A(f"s_lshl_b32 {s(sT0)}, {s(sT0)}, 2")
            A(f"s_cmp_lt_u32 {s(sT0)}, {s(sL)}")
            A(f"s_cbranch_scc1 L_pr{tag}")
            A("s_setprio 2")
            A(f"s_lshl_b32 {s(sT1)}, {s(sL)}, 1")
            A(f"s_cmp_lt_u32 {s(sT0)}, {s(sT1)}")
            A(f"s_cbranch_scc1 L_pr{tag}")
            A("s_setprio 1")
            A(f"s_add_u32 {s(sT1)}, {s(sT1)}, {s(sL)}")
            A(f"s_cmp_lt_u32 {s(sT0)}, {s(sT1)}")
            A(f"s_cbranch_scc1 L_pr{tag}")
            A("s_setprio 0")
            A.lab(f"L_pr{tag}")
        A(f"s_cmp_lg_u32 {s(sEV)}, 0")
        A(f"s_cbranch_scc1 {ret}")

    A.raw(".p2align 3")
    A.lab("L_loop")
    body(0, 32, 32)
    A("s_cbranch_scc1 L_h0")
    A.lab("L_r0")
    A(f"v_add_u32 {v(vIA)}, 16, {v(vIA)}")
    body(1, 24, 48)
    A(f"v_add_u32 {v(vEA)}, {v(vEI)}, {v(vEA)}")
    A("s_cbranch_scc0 L_loop")
    handler(1, "L_loop")
    A("s_branch L_drain")
    A.lab("L_h0")
    handler(0, "L_r0")
    A("s_branch L_drain")
    for c in range(2):
        A.lab(f"L_skipg{c}")
        A("s_waitcnt vmcnt(0)")
        A(f"s_branch L_backg{c}")
    A.lab("L_drain")
    A.c("last segment of each stream: node sum if it ends the node, else a partial slot")
    A(f"v_add_u32 v18, {NSTR+16}, {v(vPTR)}")
    for k in range(4): A(rcp(k))
    for _ in range(4): A(f"s_bitreplicate_b64_b32 {s(sP0,2)}, {s(sEND) if _ == 0 else s(sP0)}")
    A(f"s_cmp_lt_u32 {s(sWAVE)}, 10")
    A("s_cbranch_scc0 L_nox")
    A(f"global_load_dwordx4 {v(vX,4)}, {v(vOUT)}, {s(sX,2)}")
    A.lab("L_nox")
    A(f"v_cndmask_b32 v17, {v(vXA_)}, v18, {s(sP0,2)}")
    A(f"s_mov_b32 {s(sP1)}, 0x00010001")
    A(f"s_mov_b32 {s(sP1+1)}, 0x00010001")
    A("s_waitcnt lgkmcnt(0)")
    for k in (0, 2): A(f"v_pk_fma_f32 {v(DEN+k,2)}, {v(S+k,2)}, {v(P+k,2)}, {v(DEN+k,2)}")
    for k in (0, 2): A(f"v_pk_fma_f32 {v(NUM+k,2)}, {v(AA+k,2)}, {v(P+k,2)}, {v(NUM+k,2)}")
    A(f"ds_write_b128 v17, {v(DEN,4)}")
    A(f"ds_write_b128 v17, {v(NUM,4)} offset:16")
    A(f"s_andn2_b64 exec, {s(sP1,2)}, {s(sP0,2)}")
    A(f"ds_add_u32 {v(vPTR)}, {v(vONE)} offset:{NSTR+768}")
    A(f"ds_max_u32 {v(vPTR)}, {v(vSID)} offset:{NSTR+772}")
    A("s_mov_b64 exec, -1")
    A(f"s_mov_b32 {s(sT1)}, {XSTR}")
    A(f"v_xor_b32 v15, 16, {v(vXU)}")
    A.stamp('loopend')
    A("s_waitcnt vmcnt(0) lgkmcnt(0)")
    A("s_barrier")
    A.stamp('B7')
    A(f"s_cmp_lt_u32 {s(sWAVE)}, 10")
    A("s_cbranch_scc0 L_nocomb")
    D8, N8, U8, XF, Q8 = 24, 32, 40, 48, 64
    A(f"ds_read_b64 v[16:17], {v(vNSA)} offset:768")
    for k in range(4):
        A(f"ds_read2_b32 {v(D8+2*k,2)}, {v(vDN)} offset0:{24*k} offset1:{24*k+12}")
    for k in range(4):
        A(f"ds_read2_b32 {v(N8+2*k,2)}, {v(vDN)} offset0:{24*k+4} offset1:{24*k+16}")
    A(f"ds_read_b128 {v(U8,4)}, {v(vXU)}")
    A(f"ds_read_b128 {v(U8+4,4)}, v15")
    A(f"s_mov_b32 {s(sT0)}, 0")
    A("s_waitcnt lgkmcnt(10)")
    A(f"v_mad_u32_u24 v18, v17, {s(sT1)}, {v(vXL)}")
    A.lab("L_part")
    A(f"v_cmp_lt_u32 vcc, {s(sT0)}, v16")
    A("s_cbranch_vccz L_part_done")
    A("s_mov_b64 exec, vcc")
    for k in range(4):
        A(f"ds_read2_b32 {v(XF+2*k,2)}, v18 offset0:{16*k} offset1:{16*k+8}")
    for k in range(4):
        A(f"ds_read2_b32 {v(XF+8+2*k,2)}, v18 offset0:{16*k+4} offset1:{16*k+12}")
    A(f"v_subrev_u32 v18, {XSTR}, v18")
    A(f"s_add_u32 {s(sT0)}, {s(sT0)}, 1")
    A("s_waitcnt lgkmcnt(0)")
    for k in range(8):
        A(f"v_pk_add_f32 {v(D8+2*k,2)}, {v(D8+2*k,2)}, {v(XF+2*k,2)}")
    A("s_mov_b64 exec, -1")
    A("s_branch L_part")
    A.lab("L_part_done")
    A(f"s_cmp_eq_u32 {s(sMODE)}, 0")
    A("s_cbranch_scc0 L_slowcomb")
    A.lab("L_final")
    A(f"s_mov_b32 {s(sP0)}, {hex(EPS)}")
    A(f"s_mov_b32 {s(sP0+1)}, {hex(EPS)}")
    for k in range(4):
        A(f"v_lshlrev_b32 {v(XF+2*k)}, 16, {v(vX+k)}")
        A(f"v_and_b32 {v(XF+2*k+1)}, 0xffff0000, {v(vX+k)}")
    A("s_waitcnt lgkmcnt(0)")
    for k in range(4):
        A(f"v_pk_add_f32 {v(D8+2*k,2)}, {v(D8+2*k,2)}, {s(sP0,2)}")
    for k in range(8):
        A(f"v_rcp_f32 {v(D8+k)}, {v(D8+k)}")
    for k in range(4):
        A(f"v_pk_fma_f32 {v(U8+2*k,2)}, {v(N8+2*k,2)}, {v(D8+2*k,2)}, {v(U8+2*k,2)}")
    for k in range(8):
        A(f"v_max_f32 {v(U8+k)}, 0, {v(U8+k)}")
    for k in range(4):
        A(f"v_pk_add_f32 {v(U8+2*k,2)}, {v(U8+2*k,2)}, {v(XF+2*k,2)}")
    for k in range(4):
        A(f"v_cvt_pk_bf16_f32 {v(D8+k)}, {v(U8+2*k)}, {v(U8+2*k+1)}")
    A(f"global_store_dwordx4 {v(vOUT)}, {v(D8,4)}, {s(sOUT,2)} {OPT.get('of', '')}")
    A.lab("L_out_done")
    if OPT.get('probe'):
        A(f"v_lshlrev_b32 v8, 2, {v(vL)}")
        A(f"global_load_dword v9, v8, {s(sDBG,2)} offset:32 sc1")
        A("s_waitcnt vmcnt(0)")
        A(f"s_mov_b32 {s(sT1)}, 0")
        A(f"s_mov_b32 {s(sT3)}, 0")
        for k in range(8):
            A(f"v_readlane_b32 {s(sT2)}, v9, {k}")
            A(f"s_max_u32 {s(sT1)}, {s(sT1)}, {s(sT2)}")
            if OPT['probe'] == 2 and k % 2 == 0: A(f"s_add_u32 {s(sT3)}, {s(sT3)}, {s(sT2)}")
        if OPT['probe'] == 2:
            A(f"s_sub_u32 {s(sT1)}, 250, {s(sT3)}")
            A(f"s_max_u32 {s(sT1)}, {s(sT1)}, {s(sT3)}")
        A(f"s_sub_u32 {s(sT1)}, 250, {s(sT1)}")
        A(f"s_mul_i32 {s(sT1)}, {s(sT1)}, 100")
        A(f"s_add_u32 {s(sT1)}, {s(sT1)}, 4000")
        A.lab("L_hold")
        A(f"s_memrealtime {s(sP0,2)}")
        A("s_waitcnt lgkmcnt(0)")
        A(f"s_sub_u32 {s(sT0)}, {s(sP0)}, {s(sST+1)}")
        A(f"s_cmp_lt_u32 {s(sT0)}, {s(sT1)}")
        A("s_cbranch_scc1 L_hold")
    if OPT.get('hold'):
        A.lab("L_hold")
        A(f"s_memrealtime {s(sP0,2)}")
        A("s_waitcnt lgkmcnt(0)")
        A(f"s_sub_u32 {s(sT0)}, {s(sP0)}, {s(sST+1)}")
        A(f"s_cmp_lt_u32 {s(sT0)}, {OPT['hold']}")
        A("s_cbranch_scc1 L_hold")
    if diag == 2:
        A("s_waitcnt vmcnt(0)")
        A(f"s_memrealtime {s(sP0,2)}")
        A(f"s_memtime {s(sP1,2)}")
        A("s_waitcnt lgkmcnt(0)")
        A(f"s_not_b32 {s(sT0)}, {s(sST+1)}")
        A("v_mov_b32 v8, 0")
        A(f"v_writelane_b32 v8, {s(sT0)}, 0")
        for k in range(1, 8): A(f"v_writelane_b32 v8, {s(sST+2*k)}, {k}")
        A(f"v_writelane_b32 v8, {s(sP0)}, 8")
        A(f"s_sub_u32 {s(sT0)}, {s(sP0)}, {s(sST+1)}")
        A(f"s_sub_u32 {s(sT1)}, {s(sP1)}, {s(sST)}")
        A(f"v_writelane_b32 v8, {s(sT0)}, 9")
        A(f"v_writelane_b32 v8, {s(sT1)}, 10")
        A(f"v_writelane_b32 v8, {s(sST+1)}, 11")
        A(f"v_lshl_add_u32 v9, {v(vL)}, 2, 8")
        A(f"s_cmp_eq_u32 {s(sWAVE)}, {OPT.get('dw', 0)}")
        A("s_cbranch_scc0 L_dg")
        A("s_mov_b64 exec, 0xfff")
        A(f"global_atomic_umax v9, v8, {s(sDBG,2)}")
        A.lab("L_dg")
    elif diag:
        A("s_waitcnt vmcnt(0)")
        A(f"s_memrealtime {s(sP0,2)}")
        A(f"s_memtime {s(sP1,2)}")
        A("s_waitcnt lgkmcnt(0)")
        A(f"s_sub_u32 {s(sT1)}, {s(sP1)}, {s(sST)}")
        A(f"s_mov_b32 {s(sST)}, {s(sST+1)}")
        A("v_mov_b32 v8, 0")
        for k in range(8): A(f"v_writelane_b32 v8, {s(sST+2*k)}, {k}")
        A(f"v_writelane_b32 v8, {s(sP0)}, 8")
        A(f"v_writelane_b32 v8, {s(sL)}, 9")
        A(f"v_writelane_b32 v8, {s(sT1)}, 10")
        A(f"v_writelane_b32 v8, {s(sNPOLL)}, 11")
        A(f"s_getreg_b32 {s(sT0)}, hwreg(HW_REG_XCC_ID)")
        A(f"v_writelane_b32 v8, {s(sT0)}, 12")
        A(f"s_getreg_b32 {s(sT0)}, hwreg(HW_REG_HW_ID)")
        A(f"v_writelane_b32 v8, {s(sT0)}, 13")
        A("s_lshl_b32 s3, s2, 4")
        A(f"s_add_u32 s3, s3, {s(sWAVE)}")
        A("s_lshl_b32 s3, s3, 6")
        A(f"s_add_u32 s3, s3, {OFF_DIAG}")
        A(f"v_lshl_add_u32 v9, {v(vL)}, 2, s3")
        A("s_mov_b64 exec, 0xffff")
        A(f"global_store_dword v9, v8, {s(sWS,2)}")
    A("s_endpgm")
    A.lab("L_f2")
    A(f"s_mov_b32 {s(sSPIN)}, {SPIN}")
    A(f"s_mov_b64 exec, {s(sF2M,2)}")
    A(f"global_load_dwordx2 v[58:59], v56, {s(sWS,2)} sc1")
    A.lab("L_f2l")
    A("s_waitcnt vmcnt(0)")
    f2_check("b", "L_f2r")
    A("s_branch L_f2_done")
    A.lab("L_f2r")
    A(f"s_sub_u32 {s(sSPIN)}, {s(sSPIN)}, 1")
    A("s_cbranch_scc1 L_f2_done")
    A("s_sleep 1")
    A(f"global_load_dwordx2 v[58:59], v56, {s(sWS,2)} sc1")
    A("s_branch L_f2l")
    A.c("more records than one round holds: restart in rounds of 15 records per segment")
    A.lab("L_goslow")
    A(f"s_mov_b32 {s(sMODE)}, 1")
    A(f"s_mov_b32 {s(sWM)}, {hex(((1 << SLOWK) - 1) * 0x10001)}")
    A(f"s_mov_b32 {s(sWM+1)}, {hex(((1 << SLOWK) - 1) * 0x10001)}")
    A(f"s_mov_b64 {s(sP1M,2)}, 0")
    A("s_waitcnt vmcnt(0)")
    A("s_barrier")
    A(f"ds_write_b64 v57, {v(vZ,2)} offset:{L_CNT2}")
    A("s_waitcnt lgkmcnt(0)")
    A("s_barrier")
    A("s_branch L_nextround2")
    A.lab("L_nextround")
    A(f"s_mov_b64 {s(sF2M,2)}, 0")
    A(f"v_lshlrev_b32 v57, 3, {v(vL)}")
    A.lab("L_nextround2")
    for j in range(8): A(f"s_mov_b64 {s(sMK+2*j,2)}, 0")
    A(f"s_mov_b64 {s(sP0,2)}, {s(sEX,2)}")
    A("s_branch L_round")
    A.c("multi-round mode: waves without output work just go on")
    A.lab("L_nocomb")
    A(f"s_cmp_eq_u32 {s(sMODE)}, 0")
    A("s_cbranch_scc1 L_out_done")
    A(f"s_add_u32 {s(sLO)}, {s(sLO)}, {SLOWK}")
    A(f"s_cmp_lt_u32 {s(sLO)}, {s(sMAXL)}")
    A("s_cbranch_scc1 L_nextround")
    A("s_branch L_out_done")
    A.c("multi-round mode: running sums live in this workgroup's scratch, one 64-byte record per thread")
    A.lab("L_slowcomb")
    A(f"s_mul_i32 {s(sT0)}, s2, 40960")
    A(f"s_add_u32 {s(sT0)}, {s(sT0)}, {OFF_ACC}")
    add64(A, sP0, sWS, s(sT0))
    A("v_lshlrev_b32 v20, 6, v0")
    A("s_waitcnt lgkmcnt(0)")
    A(f"ds_write_b64 v124, {v(vZ,2)} offset:768")
    A(f"s_cmp_eq_u32 {s(sLO)}, 0")
    A("s_cbranch_scc1 L_slow1")
    for k in range(4):
        A(f"global_load_dwordx4 {v(48+4*k,4)}, v20, {s(sP0,2)} offset:{16*k} sc1")
    A("s_waitcnt vmcnt(0)")
    for k in range(8):
        A(f"v_pk_add_f32 {v(24+2*k,2)}, {v(24+2*k,2)}, {v(48+2*k,2)}")
    A.lab("L_slow1")
    A(f"s_add_u32 {s(sLO)}, {s(sLO)}, {SLOWK}")
    A(f"s_cmp_lt_u32 {s(sLO)}, {s(sMAXL)}")
    A("s_cbranch_scc0 L_final")
    for k in range(4):
        A(f"global_store_dwordx4 v20, {v(24+4*k,4)}, {s(sP0,2)} offset:{16*k} sc1")
    A("s_waitcnt vmcnt(0) lgkmcnt(0)")
    A("s_branch L_nextround")
    A.lab("L_end")
    A("s_endpgm")
    return A.L


HEADER = open(os.path.join(os.path.dirname(os.path.abspath(__file__)), "header.txt")).read()


def emit(path, diag=0, **o):
    body = build(diag, **o)
    errs = hazard.check(body, "linear")
    for e in errs: print("HAZARD", e)
    out = [HEADER.rstrip("\n")] + ([f"; stamps: {o.get('st', 'pDst|gB3 pOut|gMM ph2 polled recs B6 loopend')}"] if diag else []) + [
           f"; @launch grid=({NC},1,1) block=(1024,1,1) lds={LDS_SIZE}",
           '.amdgcn_target "amdgcn-amd-amdhsa--gfx950"', ".text", f".globl {KNAME}", ".p2align 8",
           f".type {KNAME},@function", f"{KNAME}:"]
    out += body
    out += ['.section .rodata,"a"', ".p2align 6", f".amdhsa_kernel {KNAME}",
            "  .amdhsa_next_free_vgpr 128", "  .amdhsa_next_free_sgpr 102", "  .amdhsa_accum_offset 128",
            "  .amdhsa_group_segment_fixed_size 0", "  .amdhsa_kernarg_size 96", "  .amdhsa_user_sgpr_count 2",
            "  .amdhsa_user_sgpr_kernarg_segment_ptr 1", "  .amdhsa_system_sgpr_workgroup_id_x 1",
            ".end_amdhsa_kernel"]
    open(path, "w").write("\n".join(out) + "\n")
    return len(errs)


if __name__ == "__main__":
    root = os.path.dirname(os.path.dirname(os.path.abspath(__file__)))
    emit(os.path.join(root, "cdna_kernels", "standalone__edge_featured_mpnn_gatedgcn__graph.s"), 0)
    emit(os.path.join(root, "gen", "diag.s"), 1)
    for a in sys.argv[1:]:
        name, _, rest = a.partition(':')
        o = {}
        for kv in rest.split(','):
            if kv:
                k, _, val = kv.partition('=')
                o[k] = int(val) if val.lstrip('-').isdigit() else val.replace('+', ' ')
        emit(os.path.join(root, "gen", f"diag_{name}.s"), o.pop('diag', 1), **o)
```

```python
def v(a, n=1): return f"v{a}" if n == 1 else f"v[{a}:{a+n-1}]"
def s(a, n=1): return f"s{a}" if n == 1 else f"s[{a}:{a+n-1}]"
T = [[8, 12], [16, 20]]; H = [[24, 28], [32, 36]]
P, S, AA, DEN, NUM, XA = 40, 44, 48, 52, 56, 60
LB = [[64, 70], [76, 82]]
AE = [88, 92]; IDX = 96; IDM = 100; CB = 102
vIA, vEA, vEI, vPTR, vZA, vEVB = 104, 105, 106, 107, 108, 109

def parts(c, ioff, eoff, sTAB, sEV, GF):
    n = 1 - c
    tA, tB = T[c]; hA, hB = H[c]; tA2, tB2 = T[n]; hA2, hB2 = H[n]
    d = {}
    m32 = lambda dd, x: f"v_mfma_f32_16x16x32_bf16 {v(dd,4)}, {v(AE[x],4)}, {v(LB[n][x],4)}, {v(XA,4)}"
    m4h = lambda dd, x: f"v_mfma_f32_4x4x4_16b_bf16 {v(dd,4)}, {v(IDM,2)}, {v(LB[n][x]+4,2)}, 0"
    m4c = lambda dd: f"v_mfma_f32_4x4x4_16b_bf16 {v(dd,4)}, {v(IDM,2)}, {v(CB,2)}, {v(dd,4)}"
    for k in range(4):
        d[f"a{k}"] = f"v_exp_f32_e64 {v(tA+k)}, {v(tA+k)} clamp"
        d[f"b{k}"] = f"v_exp_f32_e64 {v(tB+k)}, {v(tB+k)} clamp"
        d[f"r{k}"] = f"v_rcp_f32_e32 {v(P+k)}, {v(P+k)}"
        d[f"R{k}"] = f"v_rcp_f32_e64 {v(P+k)}, {v(P+k)}"
    d["MA"] = m32(tA2, 0); d["MB"] = m32(tB2, 1)
    d["HA"] = m4h(hA2, 0); d["HB"] = m4h(hB2, 1)
    d["CA"] = m4c(tA); d["CB"] = m4c(tB)
    m16 = lambda dd, x: f"v_mfma_f32_16x16x16_bf16 {v(dd,4)}, {v(AE[x],2)}, {v(LB[n][x],2)}, {v(XA,4)}"
    m4x = lambda dd, x: f"v_mfma_f32_4x4x4_16b_bf16 {v(dd,4)}, {v(IDM,2)}, {v(LB[n][x]+2,2)}, {v(dd,4)}"
    m4y = lambda dd, x: f"v_mfma_f32_4x4x4_16b_bf16 {v(dd,4)}, {v(IDM,2)}, {v(LB[n][x]+2,2)}, {v(XA,4)}"
    d["EA"] = m16(tA2, 0); d["EB"] = m16(tB2, 1); d["XA"] = m4x(tA2, 0); d["XB"] = m4x(tB2, 1)
    d["YA"] = m4y(tA2, 0); d["YB"] = m4y(tB2, 1)
    for k in range(4):
        d[f"ma{k}"] = f"v_mov_b32_e64 {v(tA+k)}, {v(tA+k)}"
        d[f"mb{k}"] = f"v_mov_b32_e64 {v(tB+k)}, {v(tB+k)}"
    d["W"] = "s_waitcnt vmcnt(2) lgkmcnt(0)"
    d["Wv"] = "s_waitcnt vmcnt(2)"; d["Wl"] = "s_waitcnt lgkmcnt(0)"
    d["E"] = f"s_add_u32 {s(sEV)}, {s(sEV)}, {s(sEV)}"
    d["N"] = "s_nop 0"
    d["K"] = f"s_cbranch_vccz L_skipg{c}"
    d["L"] = f"L_backg{c}:"
    d["P1"] = "s_setprio 1"; d["P0"] = "s_setprio 0"
    d["eA"] = f"ds_read_b64 {v(AE[0],2)}, {v(vEA)} offset:{eoff}"
    d["eB"] = f"ds_read_b64 {v(AE[1],2)}, {v(vEA)} offset:{eoff+8}"
    d["iA"] = f"ds_read_u16 {v(IDX)}, {v(vIA)} offset:{ioff}"
    d["iB"] = f"ds_read_u16 {v(IDX+2)}, {v(vIA)} offset:{ioff+4}"
    d["gA"] = f"buffer_load_dwordx4 {v(LB[n][0]+2,4)}, {v(IDX,2)}, {s(sTAB,4)}, 0 idxen offen {GF}"
    d["gB"] = f"buffer_load_dwordx4 {v(LB[n][1]+2,4)}, {v(IDX+2,2)}, {s(sTAB,4)}, 0 idxen offen {GF}"
    for k in (0, 2):
        d[f"D{k}"] = f"v_pk_fma_f32 {v(DEN+k,2)}, {v(S+k,2)}, {v(P+k,2)}, {v(DEN+k,2)}"
        d[f"U{k}"] = f"v_pk_fma_f32 {v(NUM+k,2)}, {v(AA+k,2)}, {v(P+k,2)}, {v(NUM+k,2)}"
        d[f"p{k}"] = f"v_pk_mul_f32 {v(P+k,2)}, {v(tA+k,2)}, {v(tB+k,2)}"
        d[f"q{k}"] = f"v_pk_mul_f32 {v(AA+k,2)}, {v(hA+k,2)}, {v(tB+k,2)}"
        d[f"s{k}"] = f"v_pk_add_f32 {v(S+k,2)}, {v(tA+k,2)}, {v(tB+k,2)}"
        d[f"n{k}"] = f"v_pk_fma_f32 {v(AA+k,2)}, {v(hB+k,2)}, {v(tA+k,2)}, {v(AA+k,2)}"
        d[f"cA{k}"] = f"v_pk_add_f32 {v(tA+k,2)}, {v(tA+k,2)}, s[12:13]"
        d[f"cB{k}"] = f"v_pk_add_f32 {v(tB+k,2)}, {v(tB+k,2)}, s[12:13]"
    for k in range(4):
        d[f"xD{k}"] = f"v_fmac_f32 {v(DEN+k)}, {v(S+k)}, {v(P+k)}"
        d[f"xU{k}"] = f"v_fmac_f32 {v(NUM+k)}, {v(AA+k)}, {v(P+k)}"
        d[f"xp{k}"] = f"v_mul_f32 {v(P+k)}, {v(tA+k)}, {v(tB+k)}"
        d[f"xq{k}"] = f"v_mul_f32 {v(AA+k)}, {v(hA+k)}, {v(tB+k)}"
        d[f"xs{k}"] = f"v_add_f32 {v(S+k)}, {v(tA+k)}, {v(tB+k)}"
        d[f"xn{k}"] = f"v_fmac_f32 {v(AA+k)}, {v(hB+k)}, {v(tA+k)}"
    return d

PK = "D0 D2 U0 U2 p0 p2 q0 q2 s0 s2 n0 n2"
XK = " ".join(f"x{o}{k}" for o in "DUpqsn" for k in range(4))
CORE = "a0 MA a1 a2 MB a3 b0 HA b1 CA b2 HB b3 r0 r1 CB r2 r3 "
SCHED = {
 'v0': "a0 W E MA a1 a2 MB a3 eA eB b0 HA b1 CA b2 HB gA gB b3 iA iB r0 r1 CB r2 r3 " + PK,
 'v7': "a0 W E MA a1 a2 MB a3 b0 HA b1 CA b2 HB b3 r0 r1 CB r2 r3 gA gB eA eB iA iB " + PK,
 'v7t': "a0 W E MA a1 a2 MB a3 b0 HA b1 CA b2 HB b3 r0 r1 CB R2 r3 K gA gB L eA eB iA iB " + PK,
 'u1': "W E a0 MA a1 a2 MB a3 b0 HA b1 CA b2 HB b3 r0 r1 CB R2 r3 K gA gB L eA eB iA iB " + PK,
 'u2': "a0 W E MA a1 a2 MB a3 b0 HA b1 CA b2 HB b3 r0 r1 CB R2 r3 K gA gB L iA iB D0 D2 U0 U2 p0 p2 q0 q2 s0 s2 n0 n2 eA eB",
 'u3': "a0 W E MA a1 a2 MB eA eB a3 b0 HA b1 CA b2 HB b3 r0 r1 CB R2 r3 K gA gB L iA iB " + PK,
 'u4': "a0 a1 W E MA a2 a3 MB b0 HA b1 CA b2 HB b3 r0 r1 CB R2 r3 K gA gB L eA eB iA iB " + PK,
 'u5': "a0 W E MA a1 a2 MB a3 b0 HA b1 CA b2 HB b3 r0 r1 CB R2 r3 D0 D2 U0 U2 K gA gB L eA eB iA iB p0 p2 q0 q2 s0 s2 n0 n2",
 'u6': "a0 a1 a2 a3 W E MA b0 b1 MB b2 HA b3 HB r0 CA r1 R2 CB r3 K gA gB L eA eB iA iB " + PK,
 't16': "a0 W E EA a1 EB a2 HA a3 HB b0 b1 CA XA b2 XB b3 r0 r1 CB R2 r3 K gA gB L eA eB iA iB " + PK,
 'tpk': "a0 W E MA a1 a2 MB a3 b0 HA b1 b2 HB b3 r0 r1 R2 r3 K gA gB L eA eB iA iB cA0 cA2 cB0 cB2 " + PK,
 'dnoe': "a0 W E YA a1 a2 YB a3 b0 HA b1 CA b2 HB b3 r0 r1 CB R2 r3 K gA gB L eA eB iA iB " + PK,
 'dnom': "a0 W E a1 a2 a3 b0 b1 b2 b3 r0 r1 R2 r3 K gA gB L eA eB iA iB " + PK,
 'dnopk': "a0 W E MA a1 a2 MB a3 b0 HA b1 CA b2 HB b3 r0 r1 CB R2 r3 K gA gB L eA eB iA iB",
 'dnoex': "W E MA N N MB N N N HA N N CA N N HB r0 r1 CB R2 r3 K gA gB L eA eB iA iB " + PK,
 'v10': "a0 W E P1 N MA a1 a2 MB a3 eA eB b0 HA b1 CA b2 HB gA gB b3 iA iB r0 r1 CB r2 r3 " + PK + " P0 N",
 'w1': "a0 W E P1 N MA a1 a2 MB a3 b0 HA b1 CA b2 HB b3 r0 r1 CB r2 r3 gA gB eA eB iA iB " + PK + " P0 N",
 'w2': "P0 W P1 E a0 MA a1 a2 MB a3 b0 HA b1 CA b2 HB b3 r0 r1 CB r2 r3 gA gB eA eB iA iB " + PK,
 'w3': "P0 W P1 E a0 MA a1 a2 MB a3 eA eB b0 HA b1 CA b2 HB gA gB b3 iA iB r0 r1 CB r2 r3 " + PK,
 'w4': "a0 P0 W P1 E MA a1 a2 MB a3 eA eB b0 HA b1 CA b2 HB gA gB b3 iA iB r0 r1 CB r2 r3 " + PK,
 'w5': "a0 W E MA a1 a2 MB a3 b0 HA b1 CA b2 HB b3 gA gB eA eB iA iB r0 r1 CB r2 r3 " + PK,
 'w6': "a0 W E MA a1 a2 MB a3 b0 HA b1 CA b2 HB b3 r0 r1 CB r2 gA gB eA eB iA iB r3 " + PK,
 'w7': "P0 W P1 E MA a0 a1 MB a2 a3 HA b0 eA eB b1 CA b2 HB gA gB b3 iA iB r0 r1 CB r2 r3 " + PK,
 'w8': "P0 W P1 E MA a0 a1 MB a2 HA a3 HB b0 gA gB eA eB iA iB b1 CA b2 b3 r0 r1 CB r2 r3 " + PK,
}
def body(A, c, ioff, eoff, sTAB, sEV, GF, sched):
    d = parts(c, ioff, eoff, sTAB, sEV, GF)
    for k in SCHED[sched].split():
        if d[k].endswith(':'): A.lab(d[k][:-1])
        else: A(d[k])
```

```python
import sys, os, struct
sys.path.insert(0, os.path.dirname(os.path.abspath(__file__)))
import hazard
import loopbody

KNAME = "standalone__edge_featured_mpnn_gatedgcn__graph_kernel"

N = 10000; NB = 128; NC = 256; BN = 80; CE = 1250
TS = 2592768
NROWS = N + NB
TPG = 0x580000; TBITS = 4
OFF_REC = TPG << TBITS; RECSZ = 15360; RPG = 0x400000; RBITS = 5
OFF_G = OFF_REC + (RPG << RBITS); GSTR = 1152; GPG = 0x60000
OFF_F2 = OFF_G + NC * GSTR
OFF_ACC = OFF_G + (GPG << RBITS)
OFF_DIAG = 0xF000000
CSH = 11
assert 2 * TS <= TPG and NC * RECSZ <= RPG and NC * GSTR + 2 * NB * 128 <= GPG and OFF_ACC + NC * 40960 <= OFF_DIAG
L_CNT1 = 0; L_ST1 = 512; L_CNT2 = 1024; L_ST2 = 1536; L_ZERO = 2048; L_MISC = 2176; L_WC = 2304; L_GEO = 2816
M_CTRA, M_CTRB, M_MAXLEN, M_P1, M_P2, M_G, M_CD, M_XI, M_TS = [L_MISC + 4 * i for i in range(9)]
M_NONCE = L_MISC + 40; M_PG = L_MISC + 48; M_WI = L_MISC + 52; M_RI = L_MISC + 56
L_NS = 3072; NSTR = 784; NCNT = 768
L_XS = (L_NS + BN * NSTR + 255) // 256 * 256
L_W = L_XS + 20480
CAP = 3328
L_META = L_W; L_E = L_W + 13568; L_EXT = L_E + 26880; XSTR = 528
LDS_SIZE = L_EXT + 64 * XSTR
CAP_PAIRS = CAP // 2 - 4
SLOWK = 11
SPIN = 1 << 20

def f2u(x): return struct.unpack('<I', struct.pack('<f', x))[0]
NL2E = f2u(-1.4426950408889634)
SHIFT = 60
EPS = f2u(1e-6 * 2.0 ** SHIFT)
CBF = (127 - SHIFT) << 7

def v(a, n=1): return f"v{a}" if n == 1 else f"v[{a}:{a+n-1}]"
def s(a, n=1): return f"s{a}" if n == 1 else f"s[{a}:{a+n-1}]"

sX, sE, sSRC, sDST, sWA, sWB, sWC, sWU, sWV, sOUT, sDBG, sWS = 4, 6, 8, 10, 12, 14, 16, 18, 20, 22, 24, 26
sF2M, sPFM, sJ, sSPIN, sLO, sMODE, sMAXL, sTP, sL, sS = 6, 8, 10, 15, 16, 17, 18, 19, 20, 21
sWAVE, sBKT, sSL, sT0 = 28, 29, 30, 31
sSRD = 32
sTAB = 36
sNON = 40
sRT = 42
sDONE = 42
sMK = 44
sREC = 68
sT1, sT2, sT3, sT4 = 72, 73, 74, 75
sLINK = 74
sEX, sP0, sP1 = 76, 78, 80
sEV, sLM, sWM = 82, 83, 84
sROW, sSZ = 0, 1
sPG = 1
sPST = 0
sOM = 34
sEND = 3
sST = 86
NJ = 6

class G:
    def __init__(self, diag=0):
        self.L = []
        self.diag = diag
        self.nst = 0
    def __call__(self, t): self.L.append("    " + t)
    def lab(self, t): self.L.append(t + ":")
    def c(self, t): self.L.append("    ; " + t)
    def raw(self, t): self.L.append(t)
    def stamp(self, name):
        if self.diag and name in self.st:
            self(f"s_memrealtime {s(sST + 2 * self.st[name], 2)}")
        if self.diag and name + '2' in self.st:
            self(f"s_memrealtime {s(sST + 2 * self.st[name + '2'], 2)}")
        if self.diag and 'c' + name in self.st:
            self(f"s_memtime {s(sST + 2 * self.st['c' + name], 2)}")


def wave_scan(A, r):
    for sh in (1, 2, 4, 8):
        A("s_nop 1")
        A(f"v_add_u32_dpp {v(r)}, {v(r)}, {v(r)} row_shr:{sh} row_mask:0xf bank_mask:0xf")
    A("s_nop 1")
    A(f"v_add_u32_dpp {v(r)}, {v(r)}, {v(r)} row_bcast:15 row_mask:0xa bank_mask:0xf")
    A("s_nop 1")
    A(f"v_add_u32_dpp {v(r)}, {v(r)}, {v(r)} row_bcast:31 row_mask:0xc bank_mask:0xf")


def lds_signal(A, vz, vone, off):
    A("s_mov_b64 exec, 1")
    A(f"ds_add_u32 {v(vz)}, {v(vone)} offset:{off}")
    A("s_mov_b64 exec, -1")


def lds_wait(A, vz, vt, off, target, tag, sleep=0):
    if sleep:
        A(f"s_branch L_lc_{tag}")
    A.lab(f"L_lw_{tag}")
    if sleep:
        A(f"s_sleep {sleep}")
        A.lab(f"L_lc_{tag}")
    A(f"ds_read_b32 {v(vt)}, {v(vz)} offset:{off}")
    A("s_waitcnt lgkmcnt(0)")
    A(f"v_readfirstlane_b32 s3, {v(vt)}")
    A(f"s_cmp_ge_u32 s3, {target}")
    A(f"s_cbranch_scc0 L_lw_{tag}")


def lds_sync(A, vz, vone, vt, off, n, tag):
    A("s_mov_b64 exec, 1")
    A(f"ds_add_rtn_u32 {v(vt)}, {v(vz)}, {v(vone)} offset:{off}")
    A("s_mov_b64 exec, -1")
    A("s_waitcnt lgkmcnt(0)")
    A(f"v_readfirstlane_b32 s3, {v(vt)}")
    A(f"s_cmp_eq_u32 s3, {n-1}")
    A(f"s_cbranch_scc1 L_ls_{tag}")
    lds_wait(A, vz, vt, off, n, tag)
    A.lab(f"L_ls_{tag}")


def lds_sync2(A, vz, vone, vt, off, n, tag, reads, between=None):
    A("s_mov_b64 exec, 1")
    A(f"ds_add_rtn_u32 {v(vt)}, {v(vz)}, {v(vone)} offset:{off}")
    A("s_mov_b64 exec, -1")
    for r in reads: A(r)
    if between: between()
    A("s_waitcnt lgkmcnt(0)")
    A(f"v_readfirstlane_b32 s3, {v(vt)}")
    A(f"s_cmp_eq_u32 s3, {n-1}")
    A(f"s_cbranch_scc1 L_ls_{tag}")
    A.lab(f"L_lw_{tag}")
    A(f"ds_read_b32 {v(vt)}, {v(vz)} offset:{off}")
    for r in reads: A(r)
    A("s_waitcnt lgkmcnt(0)")
    A(f"v_readfirstlane_b32 s3, {v(vt)}")
    A(f"s_cmp_ge_u32 s3, {n}")
    A(f"s_cbranch_scc0 L_lw_{tag}")
    A.lab(f"L_ls_{tag}")


def nonce_get(A, vz, vn, tag):
    A(f"s_mov_b32 {s(sSPIN)}, {SPIN}")
    A.lab(f"L_nn_{tag}")
    A(f"v_readfirstlane_b32 {s(sNON)}, {v(vn)}")
    A(f"v_readfirstlane_b32 {s(sNON+1)}, {v(vn+1)}")
    A(f"s_cmp_lg_u32 {s(sNON)}, 0")
    A(f"s_cbranch_scc1 L_nd_{tag}")
    A(f"s_sub_u32 {s(sSPIN)}, {s(sSPIN)}, 1")
    A(f"s_cbranch_scc1 L_nd_{tag}")
    A("s_sleep 2")
    A(f"global_load_dwordx2 {v(vn,2)}, {v(vz)}, {s(sDBG,2)} sc1")
    A("s_waitcnt vmcnt(0)")
    A(f"s_branch L_nn_{tag}")
    A.lab(f"L_nd_{tag}")


def nonce_lds(A, vz, vn, tag):
    A.lab(f"L_nl_{tag}")
    A(f"ds_read_b64 {v(vn,2)}, {v(vz)} offset:{M_NONCE}")
    A("s_waitcnt lgkmcnt(0)")
    A(f"v_readfirstlane_b32 {s(sNON)}, {v(vn)}")
    A(f"v_readfirstlane_b32 {s(sNON+1)}, {v(vn+1)}")
    A(f"s_cmp_lg_u32 {s(sNON)}, 0")
    A(f"s_cbranch_scc0 L_nl_{tag}")


def add64(A, d, a, off):
    A(f"s_add_u32 {s(d)}, {s(a)}, {off}")
    A(f"s_addc_u32 {s(d+1)}, {s(a+1)}, 0")


def build(diag=0, **OPT):
    A = G(diag)
    A.st = {}
    for k, grp in enumerate(OPT.get('st', 'pDst|gB3 pOut|gMM ph2 polled recs B6 loopend').split()):
        for n in grp.split('|'): A.st[n] = k + 1
    GF = OPT.get('gf', 'sc1'); EF = OPT.get('ef', ''); XF_ = OPT.get('xf', ''); SF = 'sc1'
    PF = OPT.get('pf', 2)
    sTO, sGO = sEV, sLM
    def rebase():
        A(f"s_bfe_u32 {s(sTO)}, {s(sNON)}, {hex(OPT.get('tbits', TBITS) << 16 | 1)}")
        A(f"s_mul_i32 {s(sTO)}, {s(sTO)}, {TPG}")
        A(f"s_bfe_u32 {s(sGO)}, {s(sNON)}, {hex(RBITS << 16 | CSH)}")
        A(f"s_mul_i32 {s(sGO)}, {s(sGO)}, {GPG}")
        add64(A, sTAB, sTAB, s(sTO))
        A(f"v_add_u32 {v(vPFA)}, {s(sTO)}, {v(vPFA)}")
        A(f"v_add_u32 {v(vGA)}, {s(sGO)}, {v(vGA)}")
        A(f"v_add_u32 {v(vF2A)}, {s(sGO)}, {v(vF2A)}")
    vL, vONE, vEIGHT, vZ = 1, 2, 3, 4
    T = [[8, 12], [16, 20]]; H = [[24, 28], [32, 36]]
    P, S, AA, DEN, NUM, XA = 40, 44, 48, 52, 56, 60
    LB = [[64, 70], [76, 82]]
    AE = [88, 92]; IDX = 96; IDM = 100; CB = 102
    vIA, vEA, vEI, vPTR, vZA, vEVB = 104, 105, 106, 107, 108, 109
    vB15, vG4, vGW, vGA, vRB = 110, 111, 112, 114, 115
    vX = 116; vPFA = 119
    vOUT, vDN, vXU, vXL, vNSA, vXA_, vSID, vNB = 120, 121, 122, 123, 124, 125, 126, 127
    vPTA = 109
    vF2A, vF2, vPFD, vL8 = 109, 88, 117, 93
    RB = lambda j: 8 + 4 * j
    SD = [66, 67, 68, 69, 72, 73, 74, 75, 78, 79, 80, 81]
    A.c("first cache line: argument loads and a prefetch of the whole code into L2 (16 bytes per thread)")
    A(f"s_memrealtime {s(sRT,2)}")
    A("s_load_dwordx16 s[4:19], s[0:1], 0")
    A("s_load_dwordx8 s[20:27], s[0:1], 64")
    A(f"s_getpc_b64 {s(sP1,2)}")
    A.lab("L_pc")
    A("v_lshlrev_b32 v63, 4, v0")
    A("v_min_u32 v8, L_end-L_pc, v63")
    A(f"global_load_dword v118, v8, {s(sP1,2)}")
    A(f"s_cmpk_ge_u32 s2, {NC}")
    A("s_cbranch_scc1 L_end")
    A(f"v_mov_b64 {v(vZ,2)}, 0")
    A(f"v_mov_b64 {v(vZ+2,2)}, 0")
    A(f"ds_write_b128 v63, {v(vZ,4)}")
    A(f"s_mul_i32 s3, s2, {CE*4}")
    A("v_cmp_gt_u32 vcc, 320, v0")
    A("s_cbranch_vccz L_roleG")

    vD, vS, vE, vBA, vR = 12, 16, 20, 28, 8
    vCA, vSUM, vINC, vSTA = 34, 36, 37, 38
    A(f"v_min_u32 v63, {(CE-4)*4}, v63")
    A("v_add_u32 v63, s3, v63")
    A("v_lshlrev_b32 v62, 1, v63")
    A("s_setprio 3")
    A("s_waitcnt lgkmcnt(0)")
    A(f"global_load_dwordx4 {v(vD,4)}, v63, {s(sDST,2)} {EF}")
    TF = OPT.get('tf', 0)
    def se_loads(a):
        A(f"global_load_dwordx4 {v(vS,4)}, {a}, {s(sSRC,2)} {EF}")
        A(f"global_load_dwordx4 {v(vE,4)}, v62, {s(sE,2)} {EF}")
        A(f"global_load_dwordx4 {v(vE+4,4)}, v62, {s(sE,2)} offset:16 {EF}")
    if not TF: se_loads("v63")
    else: A("v_mov_b32 v60, v63")
    A.stamp('pIss')
    def common():
        if diag: A(f"s_memtime {s(sST,2)}")
        if diag == 3: A(f"s_mov_b32 {s(sST+2)}, 0")
        A("v_lshrrev_b32 v10, 6, v0")
        A(f"v_and_b32 {v(vL)}, 63, v0")
        A(f"v_readfirstlane_b32 {s(sWAVE)}, v10")
        A(f"v_mov_b32 {v(vONE)}, 1")
        A.c("workgroups that share an XCD under round-robin placement get one slice and adjacent buckets")
        A(f"s_and_b32 {s(sSL)}, s2, 1")
        A(f"s_bfe_u32 {s(sT0)}, s2, 0x20001")
        A(f"s_lshl_b32 {s(sT0)}, {s(sT0)}, 5")
        A(f"s_lshr_b32 {s(sBKT)}, s2, 3")
        A(f"s_add_u32 {s(sBKT)}, {s(sBKT)}, {s(sT0)}")
        A(f"s_mul_i32 {s(sT0)}, {s(sBKT)}, 625")
        A(f"s_add_u32 {s(sROW)}, {s(sT0)}, 7")
        A(f"s_add_u32 {s(sSZ)}, {s(sT0)}, 632")
        A(f"s_lshr_b32 {s(sROW)}, {s(sROW)}, 3")
        A(f"s_lshr_b32 {s(sSZ)}, {s(sSZ)}, 3")
        A(f"s_sub_u32 {s(sSZ)}, {s(sSZ)}, {s(sROW)}")
        A(f"s_lshl_b32 {s(sROW)}, {s(sROW)}, 8")
        A(f"v_and_b32 {v(vB15)}, 15, v0")
        A(f"v_bfe_u32 {v(vG4)}, v0, 4, 2")
    A("s_barrier")
    common()
    A(f"v_lshlrev_b32 {v(vL8)}, 3, {v(vL)}")
    if TF:
        lds_wait(A, vZ, 32, M_XI if TF == 1 else M_WI, 5 if TF == 1 else 4, "tf")
        se_loads("v60")
    if True:
        A.c("bring this workgroup's hand-off lines on chip (no valid tag yet) long before anyone polls them")
        A(f"s_mul_i32 {s(sT0)}, s2, {GSTR}")
        A(f"s_lshl_b32 {s(sT1)}, {s(sWAVE)}, 8")
        A(f"s_add_u32 {s(sT0)}, {s(sT0)}, {s(sT1)}")
        A(f"s_add_u32 {s(sT0)}, {s(sT0)}, {OFF_G}")
        A(f"s_mul_i32 {s(sT1)}, {s(sSL)}, {NB}")
        A(f"s_add_u32 {s(sT1)}, {s(sT1)}, {s(sBKT)}")
        A(f"s_lshl_b32 {s(sT1)}, {s(sT1)}, 7")
        A(f"s_add_u32 {s(sT1)}, {s(sT1)}, {OFF_F2}")
        A(f"s_cmp_eq_u32 {s(sWAVE)}, 4")
        A(f"s_cselect_b32 {s(sT0)}, {s(sT1)}, {s(sT0)}")
        A(f"s_bfe_u32 {s(sT1)}, {s(sRT)}, {hex(RBITS << 16 | CSH)}")
        A(f"s_mul_i32 {s(sT1)}, {s(sT1)}, {GPG}")
        A(f"s_add_u32 {s(sT0)}, {s(sT0)}, {s(sT1)}")
        A(f"s_cmp_eq_u32 {s(sWAVE)}, 4")
        A(f"v_lshl_add_u32 v61, {v(vL)}, 4, {s(sT0)}")
        A("s_cselect_b64 exec, 0xff, 0xffff" if False else "s_cselect_b32 exec_lo, 0xff, -1")
        A("s_and_b64 exec, exec, 0xffff")
        A(f"global_store_dwordx4 v61, {v(vZ,4)}, {s(sWS,2)} sc1")
        A("s_mov_b64 exec, -1")
    A.c("thread 312 holds edges 1246..1249: its first two belong to thread 311")
    A(f"v_cmp_gt_u32 {s(sEX,2)}, {s(sT0)}, v0".replace(s(sT0), "s3") if False else "s_movk_i32 s3, 312")
    A(f"v_cmp_gt_u32 {s(sEX,2)}, s3, v0")
    A(f"v_cmp_ge_u32 {s(sP1,2)}, s3, v0")
    A(f"s_movk_i32 {s(sT0)}, 625")
    A(f"s_mov_b32 {s(sT1)}, {L_NS}")
    A(f"s_mul_i32 s3, {s(sWAVE)}, 3072")
    A(f"v_lshl_add_u32 v56, {v(vL)}, 4, s3")
    A(f"v_add_u32 v57, {L_NS}, v56")
    A(f"s_bfe_u32 s3, {s(sRT)}, {hex(RBITS << 16 | CSH)}")
    A("v_mov_b32 v32, s3")
    A(f"s_cmp_eq_u32 {s(sWAVE)}, 0")
    A("s_cselect_b64 exec, 1, 0")
    A(f"ds_write_b32 {v(vZ)}, v32 offset:{M_PG}")
    A("s_mov_b64 exec, -1")
    A(f"s_waitcnt vmcnt({4})")
    A.stamp('pDst')
    PM = lambda k: s(sEX if k < 2 else sP1, 2)
    for k in range(4): A(f"v_mul_u32_u24 {v(40+k)}, 107375, {v(vD+k)}")
    for k in range(4): A(f"v_lshrrev_b32 {v(40+k)}, 23, {v(40+k)}")
    for k in range(4):
        A(f"v_lshlrev_b32 {v(vBA+k)}, 2, {v(40+k)}")
    for k in range(4):
        if k % 2 == 0: A(f"s_mov_b64 exec, {PM(k)}")
        A(f"ds_add_rtn_u32 {v(vR+k)}, {v(vBA+k)}, {v(vONE)} offset:{L_CNT1}")
    A("s_mov_b64 exec, -1")
    def dstl():
        for k in range(4): A(f"v_mad_u32_u24 {v(40+k)}, {v(40+k)}, {s(sT0)}, 7")
        for k in range(4): A(f"v_lshrrev_b32 {v(40+k)}, 3, {v(40+k)}")
        for k in range(4): A(f"v_sub_u32 {v(vD+k)}, {v(vD+k)}, {v(40+k)}")
    A("s_waitcnt lgkmcnt(0)")
    A.stamp('pAt')
    lds_sync2(A, vZ, vONE, 32, M_P1, 5, "p1", [f"ds_read_b64 {v(vCA,2)}, {v(vL8)} offset:{L_CNT1}", f"ds_read_b32 v33, {v(vZ)} offset:{M_PG}"], dstl)
    A.stamp('pB1')
    A(f"v_add_u32 {v(vSUM)}, {v(vCA)}, {v(vCA+1)}")
    A(f"v_add_u32 {v(vINC)}, {v(vCA)}, {v(vCA+1)}")
    wave_scan(A, vINC)
    A(f"v_sub_u32 {v(vSTA)}, {v(vINC)}, {v(vSUM)}")
    A(f"v_add_u32 {v(vSTA+1)}, {v(vSTA)}, {v(vCA)}")
    A(f"ds_write_b64 {v(vL8)}, {v(vSTA,2)} offset:{L_ST1}")
    for k in range(4):
        A(f"ds_read_b32 {v(40+k)}, {v(vBA+k)} offset:{L_ST1}")
    A.c("the records go to the page of this workgroup's own clock; the granules name that page")
    A(f"v_readfirstlane_b32 {s(sT2)}, v33")
    A(f"s_mul_i32 s3, s2, {RECSZ}")
    A(f"s_add_u32 s3, s3, {OFF_REC}")
    A(f"s_lshl_b32 {s(sT2)}, {s(sT2)}, 22")
    A(f"s_add_u32 s3, s3, {s(sT2)}")
    add64(A, sP0, sWS, "s3")
    A.stamp('pSn')
    A(f"s_waitcnt vmcnt({1})")
    A.stamp('pE')
    for k in range(4):
        A(f"v_lshl_or_b32 {v(vS+k)}, {v(vD+k)}, 16, {v(vS+k)}")
    for k in range(4):
        if k % 2 == 0: A(f"s_mov_b64 exec, {PM(k)}")
        A(f"s_waitcnt lgkmcnt({3+k})")
        A(f"v_add_u32 {v(40+k)}, {v(40+k)}, {v(vR+k)}")
        A(f"v_mad_u32_u24 {v(40+k)}, {v(40+k)}, 12, {s(sT1)}")
        A(f"ds_write2_b32 {v(40+k)}, {v(vE+2*k)}, {v(vE+2*k+1)} offset0:0 offset1:1")
        A(f"ds_write_b32 {v(40+k)}, {v(vS+k)} offset:8")
    A("s_mov_b64 exec, -1")
    A("s_waitcnt lgkmcnt(0)")
    A.stamp('pSc')
    lds_sync2(A, vZ, vONE, 32, M_P2, 5, "p2", [f"ds_read_b128 {v(44+4*k,4)}, v57 offset:{1024*k}" for k in range(3)])
    A.stamp('pB2')
    if OPT.get('dP'): A(f"s_sleep {OPT['dP']}")
    if OPT.get('pg') == 1: lds_wait(A, vZ, 32, M_WI, 4, "pg")
    if OPT.get('pg') == 2:
        A.lab("L_lw_pg")
        A(f"ds_read_b32 v32, {v(vZ)} offset:{M_G}")
        A("s_waitcnt lgkmcnt(0)")
        A("v_readfirstlane_b32 s3, v32")
        A("s_and_b32 s3, s3, 0xffff")
        A("s_cmp_eq_u32 s3, 4")
        A("s_cbranch_scc0 L_lw_pg")
    for k in range(3):
        A(f"global_store_dwordx4 v56, {v(44+4*k,4)}, {s(sP0,2)} offset:{1024*k} {SF}")
    lds_signal(A, vZ, vONE, M_CD)
    A.stamp('pOut')
    A(f"s_call_b64 {s(sLINK,2)}, L_consts")
    nonce_lds(A, vZ, 40, "p")
    rebase()
    A(f"s_mul_i32 s3, s2, {GSTR}")
    A(f"s_add_u32 s3, s3, {OFF_G}")
    A(f"s_add_u32 s3, s3, {s(sGO)}")
    add64(A, sP0, sWS, "s3")
    A(f"v_lshl_or_b32 v58, {v(vCA)}, 11, {v(vSTA)}")
    A(f"v_lshl_or_b32 v60, {v(vCA+1)}, 11, {v(vSTA+1)}")
    A(f"v_lshlrev_b32 v56, 4, {v(vL)}")
    A("v_lshl_or_b32 v58, v33, 22, v58")
    A("v_lshl_or_b32 v60, v33, 22, v60")
    A(f"v_or_b32 v58, {s(sNON+1)}, v58")
    A(f"v_or_b32 v60, {s(sNON+1)}, v60")
    A(f"v_mov_b32 v59, {s(sNON)}")
    A(f"v_mov_b32 v61, {s(sNON)}")
    A("s_mov_b64 exec, 1")
    A("s_waitcnt vmcnt(0)")
    A.stamp('pDrain')
    A(f"ds_add_rtn_u32 v42, {v(vZ)}, {v(vONE)} offset:{M_CTRA}")
    A("s_mov_b64 exec, -1")
    A("s_waitcnt lgkmcnt(0)")
    A("v_readfirstlane_b32 s3, v42")
    A("s_cmp_eq_u32 s3, 4")
    A("s_cbranch_scc0 L_p_done")
    A(f"global_store_dwordx4 v56, v[58:61], {s(sP0,2)} sc1")
    A.lab("L_p_done")
    A("s_setprio 0")
    A("s_branch L_poll1")

    A.lab("L_consts")
    if diag or OPT.get('hold'): A(f"s_mov_b32 {s(sST+1)}, {s(sRT)}")
    A.c("loader index: waves 0-4 -> 0-4, waves 10-15 -> 5-10; waves 5-9 load nothing")
    A(f"s_sub_u32 s3, {s(sWAVE)}, 5")
    A(f"s_cmp_lt_u32 {s(sWAVE)}, 5")
    A(f"s_cselect_b32 {s(sT2)}, {s(sWAVE)}, s3")
    A("s_cmp_lt_u32 s3, 5")
    A(f"s_cselect_b32 {s(sT2)}, 11, {s(sT2)}")
    A.c("granule of chunk c = 24*loader + 4(l&15) + (l>>4), lanes with (l&15) < 6")
    A(f"s_mul_i32 s3, {s(sT2)}, {4*NJ}")
    A(f"v_add_u32 v64, s3, {v(vG4)}")
    A(f"v_lshl_add_u32 v65, {v(vB15)}, 2, v64")
    A(f"v_cmp_gt_u32 vcc, {NC}, v65")
    A(f"s_mov_b32 {s(sEX)}, {hex(((1 << NJ) - 1) * 0x10001)}")
    A(f"s_mov_b32 {s(sEX+1)}, {s(sEX)}")
    A(f"s_and_b64 {s(sEX,2)}, {s(sEX,2)}, vcc")
    A(f"v_mul_u32_u24 {v(vGA)}, {GSTR}, v65")
    A(f"s_lshl_b32 {s(sT0)}, {s(sBKT)}, 3")
    A(f"s_add_u32 {s(sT0)}, {s(sT0)}, {OFF_G}")
    A(f"v_add_u32 {v(vGA)}, {s(sT0)}, {v(vGA)}")
    A(f"v_mov_b32 {v(vGW)}, 0")
    A(f"v_mul_u32_u24 {v(vRB)}, {RECSZ}, v64")
    A(f"v_mad_u32_u24 {v(vRB)}, {v(vB15)}, 12, {v(vRB)}")
    add64(A, sREC, sWS, OFF_REC)
    A(f"s_mov_b32 {s(sREC+2)}, {RPG << RBITS}")
    A(f"s_mov_b32 {s(sREC+3)}, 0x20000")
    A(f"s_mul_i32 {s(sT1)}, {s(sSL)}, {TS}")
    add64(A, sTAB, sWS, s(sT1))
    A(f"s_or_b32 {s(sTAB+1)}, {s(sTAB+1)}, {256<<16}")
    A(f"s_mov_b32 {s(sTAB+2)}, {OPT.get('nrows', NROWS)}")
    A(f"s_mov_b32 {s(sTAB+3)}, 0x20000")
    for j in range(1, NJ): A(f"s_mov_b32 {s(sJ+j-1)}, {j*4*RECSZ}")
    A(f"s_mov_b32 {s(sLO)}, 0")
    A(f"s_mov_b32 {s(sMODE)}, 0")
    A(f"s_mov_b64 {s(sWM,2)}, -1")
    A.c("table flag f = 12*loader + l (l < 12); prefetch share: block 12*loader + l%12, line 5k + l/12")
    A(f"s_mul_i32 s3, {s(sT2)}, 12")
    A(f"v_add_u32 v64, s3, {v(vL)}")
    A(f"v_cmp_gt_u32 vcc, {NB}, v64")
    A(f"s_and_b64 {s(sF2M,2)}, vcc, 0xfff")
    A(f"s_mul_i32 {s(sT0)}, {s(sSL)}, {NB*128}")
    A(f"s_add_u32 {s(sT0)}, {s(sT0)}, {OFF_F2}")
    A(f"v_lshl_add_u32 {v(vF2A)}, v64, 7, {s(sT0)}")
    A(f"v_mul_u32_u24 v65, 43, {v(vL)}")
    A("v_lshrrev_b32 v65, 9, v65")
    A("v_mul_u32_u24 v66, 12, v65")
    A("v_sub_u32 v64, v64, v66")
    A(f"v_cmp_gt_u32 vcc, {NB}, v64")
    if OPT.get('pfm'):
        A(f"s_mov_b64 {s(sPFM,2)}, {hex(((1 << OPT['pfm']) - 1) * 0x1001)}")
    else:
        A(f"s_bfm_b64 {s(sPFM,2)}, {12*PF}, 0")
    A(f"s_and_b64 {s(sPFM,2)}, {s(sPFM,2)}, vcc")
    A("v_mul_u32_u24 v64, 625, v64")
    A("v_add_u32 v64, 7, v64")
    A("v_lshrrev_b32 v64, 3, v64")
    A("v_lshlrev_b32 v64, 8, v64")
    A(f"v_add_u32 v64, {s(sT1)}, v64")
    A("s_lshr_b32 s3, s2, 3")
    A("s_mul_i32 s3, s3, 5")
    if OPT.get('pfrow', 1): A("s_and_b32 s3, s3, -2")
    A("v_add_u32 v65, s3, v65")
    A(f"v_lshl_add_u32 {v(vPFA)}, v65, 7, v64")
    A(f"v_lshlrev_b32 {v(vL8)}, 3, {v(vL)}")
    A.c("matrix fragments: 4x4 identity, its block-diagonal form, the additive constant")
    A(f"v_and_b32 v64, 1, {v(vL)}")
    A("v_lshlrev_b32 v64, 4, v64")
    A("v_mov_b32 v65, 0x3f80")
    A("v_lshlrev_b32 v64, v64, v65")
    A(f"v_and_b32 v65, 2, {v(vL)}")
    A("v_cmp_eq_u32 vcc, 0, v65")
    A(f"v_bfe_u32 v66, {v(vL)}, 2, 2")
    A(f"v_cmp_eq_u32 {s(sP1,2)}, v66, {v(vG4)}")
    A(f"v_cndmask_b32 {v(IDM)}, 0, v64, vcc")
    A(f"v_cndmask_b32 {v(IDM+1)}, v64, 0, vcc")
    A(f"v_and_b32 v65, 3, {v(vL)}")
    for x in AE:
        A(f"v_cndmask_b32 {v(x+2)}, 0, {v(IDM)}, {s(sP1,2)}")
        A(f"v_cndmask_b32 {v(x+3)}, 0, {v(IDM+1)}, {s(sP1,2)}")
    A(f"v_cmp_eq_u32 vcc, v65, {v(vG4)}")
    A(f"v_mov_b32 {v(CB)}, {hex(CBF | CBF << 16)}")
    A(f"v_mov_b32 {v(CB+1)}, {hex(CBF | CBF << 16)}")
    A(f"v_cndmask_b32 {v(vEI)}, 0, 32, vcc")
    A(f"v_lshlrev_b32 {v(IDX+1)}, 4, {v(vB15)}")
    A(f"v_lshlrev_b32 {v(IDX+3)}, 4, {v(vB15)}")
    A(f"v_mov_b32 {v(vZA)}, {L_ZERO}")
    A(f"v_mov_b32 {v(vEIGHT)}, 8")
    A.c("addresses for the end of the streams and for the output pass")
    A(f"s_lshl_b32 {s(sT0)}, {s(sWAVE)}, 2")
    A(f"v_add_u32 {v(vSID)}, {s(sT0)}, {v(vG4)}")
    A(f"v_mul_u32_u24 {v(vXA_)}, {XSTR}, {v(vSID)}")
    A(f"v_lshl_add_u32 {v(vXA_)}, {v(vB15)}, 2, {v(vXA_)}")
    A(f"v_add_u32 {v(vXA_)}, {L_EXT}, {v(vXA_)}")
    A(f"v_lshlrev_b32 {v(vNB)}, 2, {v(vB15)}")
    A(f"v_add_u32 {v(vNB)}, {L_NS-NSTR}, {v(vNB)}")
    A.c("output pass: thread = (node 8w + (l>>3), 16-byte piece o = l&7 = 2i + h)")
    A.c("quads of lanes are dealt so that every 16-lane ds_read_b128 group covers two whole nodes")
    A(f"v_and_b32 v64, 28, {v(vL)}")
    A("v_mov_b32 v65, 0x31130220")
    A("v_bfe_u32 v66, v65, v64, 2")
    A(f"v_lshrrev_b32 v64, 5, {v(vL)}")
    A("v_lshl_add_u32 v66, v64, 2, v66")
    A(f"s_lshl_b32 {s(sT0)}, {s(sWAVE)}, 3")
    A(f"v_add_u32 v66, {s(sT0)}, v66")
    A(f"v_bfe_u32 v64, {v(vL)}, 3, 1")
    A(f"v_and_b32 v67, 3, {v(vL)}")
    A("v_lshl_add_u32 v67, v64, 2, v67")
    A(f"v_cmp_gt_u32 vcc, {s(sSZ)}, v66")
    A(f"s_cmp_lt_u32 {s(sWAVE)}, 10")
    A("s_cbranch_scc0 L_c_noom")
    A(f"s_mov_b64 {s(sOM,2)}, vcc")
    A.lab("L_c_noom")
    A("v_lshlrev_b32 v68, 4, v67")
    A("v_lshl_add_u32 v68, v66, 8, v68")
    A(f"s_lshl_b32 {s(sT1)}, {s(sSL)}, 7")
    A(f"s_add_u32 {s(sT0)}, {s(sROW)}, {s(sT1)}")
    A(f"v_add_u32 {v(vOUT)}, {s(sT0)}, v68")
    A(f"v_mul_u32_u24 {v(vNSA)}, {NSTR}, v66")
    A(f"v_add_u32 {v(vNSA)}, {L_NS}, {v(vNSA)}")
    A(f"v_lshl_add_u32 {v(vDN)}, v67, 5, {v(vNSA)}")
    A("v_lshlrev_b32 v68, 5, v67")
    A(f"v_add_u32 {v(vXL)}, {L_EXT}, v68")
    A("v_and_b32 v68, 1, v66")
    A("v_lshl_or_b32 v68, v67, 1, v68")
    A("v_lshlrev_b32 v68, 4, v68")
    A("v_lshl_add_u32 v68, v66, 8, v68")
    A(f"v_add_u32 {v(vXU)}, {L_XS}, v68")
    A(f"s_mov_b64 {s(sDONE,2)}, 0")
    for j in range(2 * NJ): A(f"s_mov_b64 {s(sMK+2*j,2)}, 0")
    A(f"s_setpc_b64 {s(sLINK,2)}")

    A.lab("L_roleG")
    common()
    A(f"s_mov_b32 {s(sSRD+3)}, 0x20000")
    A(f"s_cmp_ge_u32 {s(sWAVE)}, 10")
    A("s_cbranch_scc1 L_roleD")
    A.c("role T: stage the node tile's x rows, lane offset r*256 + ((j^r)*16)")
    A(f"v_xor_b32 v10, {v(vB15)}, {v(vG4)}")
    A("v_lshlrev_b32 v10, 4, v10")
    A(f"v_lshl_add_u32 v11, {v(vG4)}, 8, v10")
    A(f"s_mov_b32 {s(sSRD+2)}, {N*256}")
    A(f"s_sub_u32 {s(sT0)}, {s(sWAVE)}, 5")
    A(f"s_lshl_b32 {s(sT0)}, {s(sT0)}, 12")
    A(f"s_add_u32 {s(sT1)}, {s(sROW)}, {s(sT0)}")
    A(f"s_add_u32 m0, {s(sT0)}, {L_XS}")
    for u in range(1, 4): A(f"v_xor_b32 {v(11+u)}, {u<<6}, v11")
    A("s_waitcnt lgkmcnt(0)")
    A(f"s_mov_b32 {s(sSRD)}, {s(sX)}")
    A(f"s_mov_b32 {s(sSRD+1)}, {s(sX+1)}")
    A("s_barrier")
    for u in range(4):
        if u:
            A("s_add_u32 m0, m0, 1024")
            A(f"s_add_u32 {s(sT1)}, {s(sT1)}, 1024")
        A(f"buffer_load_dwordx4 {v(11+u)}, {s(sSRD,4)}, {s(sT1)} offen {XF_} lds")
    lds_signal(A, vZ, vONE, M_XI)
    A(f"s_call_b64 {s(sLINK,2)}, L_consts")
    vA, vACC, vBR, vTA = 16, 32, 64, 96
    TA = [96, 98, 104, 105]
    RING = [64, 68, 72, 76, 80, 84, 12][:OPT.get('nr', 7)]
    NR = len(RING)
    A(f"s_sub_u32 {s(sT2)}, {s(sWAVE)}, 5")
    A(f"s_lshl_b32 {s(sT4)}, {s(sT2)}, 12")
    A(f"s_add_u32 {s(sT4)}, {s(sT4)}, {L_XS}")
    A.c("A fragments: XS + nt*4096 + n*256 + (((4ks+kg) ^ n)*16)")
    A(f"v_lshl_add_u32 v10, {v(vB15)}, 8, v10")
    for ks in range(4):
        A(f"v_xor_b32 {v(12+ks)}, {ks<<6}, v10")
        A(f"v_add_u32 {v(12+ks)}, {s(sT4)}, {v(12+ks)}")
    A.c("B fragments (transposing reads): (8kg + r)*128 + c*8 + ((i ^ s)*32), s = ((r>>1)&1) | ((kg&1)<<1)")
    A(f"v_bfe_u32 v8, {v(vL)}, 2, 2")
    A(f"v_lshl_add_u32 v9, {v(vG4)}, 3, v8")
    A("v_lshlrev_b32 v9, 7, v9")
    A(f"v_and_b32 v10, 3, {v(vL)}")
    A("v_lshl_add_u32 v9, v10, 3, v9")
    A(f"v_add_u32 v9, {L_W}, v9")
    A("v_lshrrev_b32 v8, 1, v8")
    A(f"v_and_b32 v10, 1, {v(vG4)}")
    A("v_lshl_or_b32 v8, v10, 1, v8")
    for i in range(4):
        A(f"v_xor_b32 v10, {i}, v8")
        A(f"v_lshl_add_u32 {v(TA[i])}, v10, 5, v9")
    A(f"s_mul_i32 {s(sT0)}, {s(sSL)}, {TS}")
    A(f"s_add_u32 {s(sT0)}, {s(sT0)}, {s(sROW)}")
    A(f"s_lshl_b32 {s(sT1)}, {s(sT2)}, 12")
    A(f"s_add_u32 {s(sT0)}, {s(sT0)}, {s(sT1)}")
    A(f"s_mov_b32 {s(sP0)}, {s(sT0)}")
    A(f"v_lshlrev_b32 v8, 4, {v(vB15)}")
    A(f"v_lshl_add_u32 v8, {v(vG4)}, 10, v8")
    A(f"s_mov_b32 {s(sP1)}, {hex(NL2E)}")
    A(f"s_mov_b32 {s(sT3)}, 0")
    A("s_setprio 2")
    A("s_waitcnt vmcnt(0)")
    A.stamp('gX')
    for ks in range(4):
        A(f"ds_read_b128 {v(vA+4*ks,4)}, {v(12+ks)}")
    A.lab("L_lw_g")
    A(f"ds_read_b32 v11, {v(vZ)} offset:{M_G}")
    A("s_waitcnt lgkmcnt(0)")
    A("v_readfirstlane_b32 s3, v11")
    A("s_and_b32 s3, s3, 0xffff")
    A("s_cmp_eq_u32 s3, 4")
    A("s_cbranch_scc0 L_lw_g")
    A.stamp('gB3')
    A.lab("L_gemm")
    def rd(n):
        ks, q = n >> 3, n & 7
        b = RING[n % NR]
        off = ks * 4096 + (q >> 2) * 16384
        A(f"ds_read_b64_tr_b16 {v(b,2)}, {v(TA[q&3])} offset:{off}")
        A(f"ds_read_b64_tr_b16 {v(b+2,2)}, {v(TA[q&3])} offset:{off+512}")
    for n in range(NR): rd(n)
    for n in range(32):
        ks, q = n >> 3, n & 7
        if n % 2 == 0: A(f"s_waitcnt lgkmcnt({2*max(0, min(NR - 2, 30 - n))})")
        b = RING[n % NR]
        c = "0" if ks == 0 else v(vACC + 4 * q, 4)
        A(f"v_mfma_f32_16x16x32_bf16 {v(vACC+4*q,4)}, {v(vA+4*ks,4)}, {v(b,4)}, {c}")
        if n + NR < 32: rd(n + NR)
    A(f"s_cmp_eq_u32 {s(sT3)}, 0")
    A("s_cbranch_scc0 L_g_xa")
    A.stamp('gMM')
    nonce_lds(A, vZ, 10, "t")
    rebase()
    A(f"s_add_u32 {s(sP0)}, {s(sP0)}, {s(sTO)}")
    add64(A, sP0, sWS, s(sP0))
    if OPT.get('dT'): A(f"s_sleep {OPT['dT']}")
    A.c("table rows: [XB' x4 | HV x4] per channel group")
    for i in range(4): A(f"v_add_u32 {v(TA[i])}, 32768, {v(TA[i])}")
    A(f"s_mov_b32 {s(sT3)}, 1")
    for ip in range(4):
        o = vBR + 4 * ip
        for q in range(4):
            A(f"v_mul_f32 {v(vACC+4*q+ip)}, {s(sP1)}, {v(vACC+4*q+ip)}")
        for d in (2, 3, 0, 1):
            A(f"v_cvt_pk_bf16_f32 {v(o+d)}, {v(vACC+8*d+ip)}, {v(vACC+8*d+4+ip)}")
        if ip >= 2:
            A.c("rows past the end of the bucket belong to the next one")
            A(f"s_lshl_b32 {s(sT0)}, {s(sT2)}, 4")
            A(f"s_add_u32 {s(sT0)}, {s(sT0)}, {12+ip}")
            A(f"s_cmp_lt_u32 {s(sT0)}, {s(sSZ)}")
            A("s_cselect_b32 exec_hi, -1, 0xffff")
        A(f"global_store_dwordx4 v8, {v(o,4)}, {s(sP0,2)} offset:{256*ip} {SF}")
        if ip >= 2: A("s_mov_b32 exec_hi, -1")
    lds_signal(A, vZ, vONE, M_TS)
    A("s_setprio 1")
    A.c("once the table stores have drained the last wave raises the table flag")
    A(f"s_mul_i32 {s(sT0)}, {s(sSL)}, {NB}")
    A(f"s_add_u32 {s(sT0)}, {s(sT0)}, {s(sBKT)}")
    A(f"s_lshl_b32 {s(sT0)}, {s(sT0)}, 7")
    A(f"s_add_u32 {s(sT0)}, {s(sT0)}, {OFF_F2}")
    A(f"s_add_u32 {s(sT0)}, {s(sT0)}, {s(sGO)}")
    A(f"v_mov_b32 v10, {s(sT0)}")
    A(f"v_mov_b32 v12, {s(sNON)}")
    A(f"v_mov_b32 v13, {s(sNON+1)}")
    A("s_mov_b64 exec, 1")
    A("s_waitcnt vmcnt(0)")
    A.stamp('tDrain')
    A(f"ds_add_rtn_u32 v11, {v(vZ)}, {v(vONE)} offset:{M_CTRB}")
    A("s_waitcnt lgkmcnt(0)")
    A("v_readfirstlane_b32 s3, v11")
    A("s_cmp_eq_u32 s3, 4")
    A("s_cbranch_scc0 L_t_nf")
    lds_wait(A, vZ, 11, M_CTRA, 5, "ta")
    A(f"global_store_dwordx2 v10, v[12:13], {s(sWS,2)} sc1")
    A.lab("L_t_nf")
    if OPT.get('own', 0):
        A.c("the rows just written are needed on this die too: pull them into its L2")
        A("s_mov_b64 exec, 0xffffffff")
        A(f"v_lshlrev_b32 v10, 7, {v(vL)}")
        A(f"global_load_dword {v(vPFD)}, v10, {s(sP0,2)} sc1")
    A("s_mov_b64 exec, -1")
    lds_wait(A, vZ, 11, M_CD, 5, "cd")
    lds_wait(A, vZ, 11, M_G, 0x20004, "g2")
    A.stamp('gW2')
    A("s_branch L_gemm")
    A.lab("L_g_xa")
    A.stamp('gM2')
    A.c("xa' = -log2e*(x@w_a) - SHIFT into the node structs, xu into this tile's x stage (swizzled)")
    A(f"s_mul_i32 {s(sT0)}, {s(sT2)}, {16*NSTR}")
    A(f"s_add_u32 {s(sT0)}, {s(sT0)}, {L_NS}")
    A(f"v_mul_u32_u24 v10, {4*NSTR}, {v(vG4)}")
    A(f"v_add3_u32 v10, v10, {v(vNB)}, {s(sT0)}")
    A(f"v_add_u32 v10, {NSTR-L_NS}, v10")
    A(f"v_mov_b32 v11, {hex(f2u(-float(SHIFT)))}")
    A(f"v_lshlrev_b32 v12, 2, {v(vB15)}")
    A(f"v_lshl_add_u32 v12, {v(vG4)}, 10, v12")
    A(f"v_add_u32 v12, {s(sT4)}, v12")
    for k in range(16): A(f"v_fma_f32 {v(vACC+k)}, {v(vACC+k)}, {s(sP1)}, v11")
    for ip in range(4):
        if ip: A(f"v_add_u32 v10, {NSTR}, v10")
        for i in (0, 2):
            A(f"ds_write2_b32 v10, {v(vACC+4*i+ip)}, {v(vACC+4*i+4+ip)} offset0:{16*i} offset1:{16*i+16}")
    A(f"v_mul_u32_u24 v11, {NSTR}, {v(vB15)}")
    A(f"v_add_u32 v11, {s(sT0)}, v11")
    A(f"ds_write_b64 v11, {v(vZ,2)} offset:{NCNT}")
    for ip in range(4):
        if ip == 1: A(f"v_xor_b32 v13, 16, v12")
        a = "v13" if ip & 1 else "v12"
        for i in (0, 2):
            A(f"ds_write2_b32 {a}, {v(vACC+16+4*i+ip)}, {v(vACC+20+4*i+ip)} offset0:{64*ip+16*i} offset1:{64*ip+16*i+16}")
    A("s_setprio 0")
    A("s_waitcnt lgkmcnt(0)")
    for bb in LB:
        for x in bb:
            A(f"ds_read_b64 {v(x,2)}, {v(vL8)} offset:{L_WC}")
    A("s_branch L_ranked")

    A.lab("L_roleD")
    A.c("role D: weight staging, lane offset r8*256 + ((j^(2*((r8>>1)&1)))*16) + slice*128")
    A(f"v_lshrrev_b32 v11, 3, {v(vL)}")
    A(f"v_and_b32 v12, 7, {v(vL)}")
    A("v_and_b32 v13, 2, v11")
    A("v_xor_b32 v12, v12, v13")
    A("v_lshlrev_b32 v12, 4, v12")
    A("v_lshl_add_u32 v12, v11, 8, v12")
    A(f"s_lshl_b32 s3, {s(sSL)}, 7")
    A("v_add_u32 v12, s3, v12")
    A(f"s_lshr_b32 {s(sT4)}, s2, 3")
    A(f"s_and_b32 {s(sT0)}, {s(sT4)}, 1")
    A(f"s_lshl_b32 {s(sT0)}, {s(sT0)}, 6")
    A(f"v_xor_b32 v12, {s(sT0)}, v12")
    A("v_xor_b32 v13, 64, v12")
    A(f"s_mov_b32 {s(sSRD+2)}, 32768")
    A("s_waitcnt lgkmcnt(0)")
    A(f"s_cmp_ge_u32 {s(sWAVE)}, 12")
    A(f"s_cselect_b64 {s(sSRD,2)}, {s(sWV,2)}, {s(sWB,2)}")
    A(f"s_cmp_ge_u32 {s(sWAVE)}, 14")
    A(f"s_cselect_b64 {s(sSRD,2)}, {s(sWA,2)}, {s(sSRD,2)}")
    A("s_cbranch_scc0 L_d_b0")
    A(f"s_cmp_eq_u32 {s(sWAVE)}, 15")
    A("s_cbranch_scc1 L_d_15")
    A.c("wave 14: 16 of the slice's 512 weight lines into L2 (row 4k + (l&3), matrix (l>>2)&3), and w_c")
    A(f"s_and_b32 {s(sT0)}, {s(sT4)}, 31")
    A(f"s_lshl_b32 {s(sT0)}, {s(sT0)}, 10")
    A(f"s_add_u32 {s(sT0)}, {s(sT0)}, s3")
    A(f"v_and_b32 v16, 3, {v(vL)}")
    A(f"v_lshl_add_u32 v16, v16, 8, {s(sT0)}")
    for m, p in enumerate((sWB, sWV, sWA, sWU)):
        A(f"s_mov_b64 exec, {hex(15 << (4*m))}")
        A(f"global_load_dword v17, v16, {s(p,2)}")
    A("s_mov_b64 exec, -1")
    A(f"v_lshl_add_u32 v14, {v(vL)}, 1, s3")
    A("s_barrier")
    for j in range(4):
        A(f"global_load_ushort {v(20+j)}, v14, {s(sWC,2)} offset:{256*j}")
    A(f"s_call_b64 {s(sLINK,2)}, L_consts")
    A("s_waitcnt vmcnt(0)")
    for j in range(4):
        A(f"v_lshlrev_b32 {v(20+j)}, 16, {v(20+j)}")
    for j in range(4):
        A(f"v_mul_f32 {v(20+j)}, {hex(NL2E)}, {v(20+j)}")
    A("v_cvt_pk_bf16_f32 v20, v20, v21")
    A("v_cvt_pk_bf16_f32 v21, v22, v23")
    A(f"ds_write_b64 {v(vL8)}, v[20:21] offset:{L_WC}")
    A("s_branch L_d_late")
    A.lab("L_d_15")
    A(f"s_mov_b64 {s(sSRD,2)}, {s(sWU,2)}")
    A("s_cmp_eq_u32 s2, 0")
    A("s_cbranch_scc0 L_d_nn")
    A.c("workgroup 0 publishes the launch nonce in d_debug")

    A(f"s_or_b32 {s(sT0)}, {s(sRT)}, 1")
    A(f"s_lshl_b32 {s(sT1)}, {s(sRT+1)}, 27")
    A(f"v_mov_b32 v14, {s(sT0)}")
    A(f"v_mov_b32 v15, {s(sT1)}")
    A("s_mov_b64 exec, 1")
    A(f"global_store_dwordx2 {v(vZ)}, v[14:15], {s(sDBG,2)} sc1")
    A("s_mov_b64 exec, -1")
    A.lab("L_d_nn")
    A("s_barrier")
    A(f"s_call_b64 {s(sLINK,2)}, L_consts")
    lds_wait(A, vZ, 11, M_P1, OPT.get('nat', 5), "n15", 1)
    if OPT.get('smem', 1):
        A.c("first look through the scalar path (this line was never read before); retries use coherent vector loads")
        A(f"s_load_dwordx2 {s(sNON,2)}, {s(sDBG,2)}, 0")
        A("s_waitcnt lgkmcnt(0)")
        A(f"v_mov_b32 v14, {s(sNON)}")
        A(f"v_mov_b32 v15, {s(sNON+1)}")
        A("s_nop 0")
        nonce_get(A, vZ, 14, "w")
        A("v_or_b32 v14, 1, v14")
    else:
        A(f"global_load_dwordx2 v[14:15], {v(vZ)}, {s(sDBG,2)} sc1")
        A("s_waitcnt vmcnt(0)")
        nonce_get(A, vZ, 14, "w")
        A("v_or_b32 v14, 1, v14")
    A(f"ds_write_b64 {v(vZ)}, v[14:15] offset:{M_NONCE}")
    A(f"s_bfe_u32 s3, {s(sNON)}, {hex(OPT.get('tbits', TBITS) << 16 | 1)}")
    A(f"s_mul_i32 s3, s3, {TPG}")
    A.c("wave 15: this workgroup's null table row, the code into L2, then the nonce")
    A(f"s_mul_i32 {s(sT0)}, {s(sSL)}, {TS}")
    A(f"s_lshl_b32 {s(sT1)}, {s(sBKT)}, 8")
    A(f"s_add_u32 {s(sT0)}, {s(sT0)}, {s(sT1)}")
    A(f"s_add_u32 {s(sT0)}, {s(sT0)}, {N*256}")
    A(f"s_add_u32 {s(sT0)}, {s(sT0)}, s3")
    A("v_mov_b32 v16, 0x50005000")
    A("v_mov_b32 v17, 0x50005000")
    A("v_mov_b32 v18, 0")
    A("v_mov_b32 v19, 0")
    A(f"v_lshl_add_u32 v20, {v(vL)}, 4, {s(sT0)}")
    A("s_mov_b64 exec, 0xffff")
    A(f"global_store_dwordx4 v20, v[16:19], {s(sWS,2)} sc1")
    A("s_mov_b64 exec, -1")
    A.lab("L_d_late")
    A.c("w_a / w_u follow the record stores")
    A(f"s_lshl_b32 {s(sT0)}, {s(sWAVE)}, 14")
    A(f"s_add_u32 {s(sT0)}, {s(sT0)}, {L_W + 32768 - (14 << 14)}")
    A(f"s_mov_b32 {s(sT1)}, 0")
    A(f"s_mov_b32 {s(sT3)}, 2")
    lds_wait(A, vZ, 11, {0: M_XI, 1: M_CD, 2: M_TS, 3: M_WI}[OPT.get('gwa', 3)], 4 if OPT.get('gwa', 3) == 3 else 5, "gwa", 1)
    A("s_branch L_d_dma")
    A.lab("L_d_b0")
    A("s_barrier")
    A(f"s_call_b64 {s(sLINK,2)}, L_consts")
    A(f"s_sub_u32 {s(sT0)}, {s(sWAVE)}, 10")
    A(f"s_lshl_b32 {s(sT0)}, {s(sT0)}, 13")
    A(f"s_add_u32 {s(sT0)}, {s(sT0)}, {L_W}")
    A(f"s_and_b32 {s(sT1)}, {s(sWAVE)}, 1")
    A(f"s_lshl_b32 {s(sT1)}, {s(sT1)}, 14")
    A(f"s_mov_b32 {s(sT3)}, 1")
    lds_wait(A, vZ, 11, M_XI, 5, "gwb")
    A.lab("L_d_dma")
    A.c("each workgroup starts at a different row block so an XCD fetches all of W at once")
    A(f"s_lshr_b32 {s(sT4)}, s2, 3")
    for u in range(8):
        A(f"s_and_b32 {s(sT4)}, {s(sT4)}, 7")
        A(f"s_lshl_b32 {s(sT2)}, {s(sT4)}, 10")
        A(f"s_add_u32 m0, {s(sT0)}, {s(sT2)}")
        A(f"s_lshl1_add_u32 {s(sT2)}, {s(sT2)}, {s(sT1)}")
        A(f"buffer_load_dwordx4 {'v13' if u&1 else 'v12'}, {s(sSRD,4)}, {s(sT2)} offen lds")
        if u < 7: A(f"s_add_u32 {s(sT4)}, {s(sT4)}, 1")
    A(f"s_add_u32 {s(sT0)}, {s(sT0)}, 8192")
    A(f"s_add_u32 {s(sT1)}, {s(sT1)}, 16384")
    A(f"s_sub_u32 {s(sT3)}, {s(sT3)}, 1")
    A(f"s_cmp_lg_u32 {s(sT3)}, 0")
    A("s_cbranch_scc1 L_d_dma")
    A.stamp('gIss')
    lds_signal(A, vZ, vONE, M_WI)
    A(f"s_cmp_ge_u32 {s(sWAVE)}, 14")
    A("s_cselect_b32 s3, 0x10000, 1")
    A("v_mov_b32 v11, s3")
    A("s_waitcnt vmcnt(0) lgkmcnt(0)")
    A.stamp('dX')
    lds_signal(A, vZ, 11, M_G)

    def f2_check(tag, skip):
        A(f"s_mov_b64 exec, {s(sF2M,2)}")
        if tag != "b": A(f"s_cbranch_execz {skip}")
        A(f"v_cmp_ne_u32 vcc, {s(sNON)}, {v(vF2)}")
        A(f"v_cmp_ne_u32 {s(sP0,2)}, {s(sNON+1)}, {v(vF2+1)}")
        A(f"s_or_b64 vcc, vcc, {s(sP0,2)}")
        A(f"s_cbranch_scc1 {skip}")
        if PF:
            A(f"s_mov_b64 exec, {s(sPFM,2)}")
            A(f"global_load_dword {v(vPFD)}, {v(vPFA)}, {s(sWS,2)} sc1")
        A(f"s_mov_b64 {s(sF2M,2)}, 0")
    F2E = OPT.get('f2e', 3)
    A.lab("L_poll0")
    nonce_lds(A, vZ, 56, "q")
    rebase()
    A.lab("L_poll1")
    sANY = sEV
    A(f"s_mov_b32 {s(sANY)}, 0")
    A.stamp('ph2')
    lds_wait(A, vZ, 56, M_CTRA, 5, "pa", 1)
    lds_wait(A, vZ, 56, M_G, 0x20004, "pw", 1)
    for bb in LB:
        for x in bb:
            A(f"ds_read_b64 {v(x,2)}, {v(vL8)} offset:{L_WC}")
    if OPT.get('pgate', 1): lds_wait(A, vZ, 56, M_CTRB, OPT.get("pbn", 5), "pb", OPT.get("pbs", 1))
    A(f"s_mov_b32 {s(sSPIN)}, {SPIN}")
    if OPT.get('pdelay', 0): A(f"s_sleep {OPT.get('pdelay', 0)}")
    A(f"s_mov_b64 exec, {s(sEX,2)}")
    A(f"global_load_dwordx2 {v(vGW,2)}, {v(vGA)}, {s(sWS,2)} sc1")
    if F2E == 1:
        A(f"s_mov_b64 exec, {s(sF2M,2)}")
        A(f"global_load_dwordx2 {v(vF2,2)}, {v(vF2A)}, {s(sWS,2)} sc1")
    A("s_waitcnt vmcnt(0)")
    A.stamp('poll1')
    if OPT.get('ts') == 1: lds_signal(A, vZ, vONE, M_RI)
    A.lab("L_poll")
    A.c("segments whose granule carries this launch's tag are fetched at once")
    A(f"s_andn2_b64 exec, {s(sEX,2)}, {s(sDONE,2)}")
    A(f"v_and_b32 v56, 0xf8000000, {v(vGW)}")
    A(f"v_cmp_eq_u32 vcc, {s(sNON)}, {v(vGW+1)}")
    A(f"v_cmp_eq_u32 {s(sP0,2)}, {s(sNON+1)}, v56")
    A("s_mov_b64 exec, -1")
    A(f"s_and_b64 {s(sP0,2)}, {s(sP0,2)}, vcc")
    A("s_cbranch_scc0 L_repoll")
    A(f"s_or_b64 {s(sDONE,2)}, {s(sDONE,2)}, {s(sP0,2)}")
    A.lab("L_round")
    A(f"v_cndmask_b32 v60, 0, {v(vGW)}, {s(sP0,2)}")
    A(f"s_or_b32 {s(sT0)}, {s(sP0)}, {s(sP0+1)}")
    for j in range(NJ):
        so = s(sJ + j - 1) if j else 0
        A(f"s_and_b32 s3, {s(sT0)}, {hex(0x10001 << j)}")
        A(f"s_cbranch_scc0 L_lx{j}")
        A(f"v_mov_b32_dpp v56, v60 row_newbcast:{j} row_mask:0xf bank_mask:0xf")
        A("v_and_b32 v57, 0x7ff, v56")
        A("v_bfe_u32 v58, v56, 11, 11")
        A(f"v_add_u32 v57, {s(sLO)}, v57")
        A(f"v_subrev_u32 v58, {s(sLO)}, v58")
        A(f"v_and_b32 v56, {hex(((1 << RBITS) - 1) << 22)}, v56")
        A(f"v_mad_u32_u24 v59, v57, 12, {v(vRB)}")
        A("v_add_u32 v59, v56, v59")
        A(f"v_cmp_lt_i32 vcc, {v(vB15)}, v58")
        A("v_subrev_u32 v58, 16, v58")
        A(f"v_cmp_lt_i32 {s(sP1,2)}, {v(vB15)}, v58")
        A(f"s_and_b64 exec, vcc, {s(sWM,2)}")
        A(f"s_cbranch_execz L_ld{j}")
        A(f"buffer_load_dwordx3 {v(RB(j),3)}, v59, {s(sREC,4)}, {so} offen sc1")
        A(f"s_or_b64 {s(sMK+2*j,2)}, {s(sMK+2*j,2)}, exec")
        A(f"s_cmp_eq_u32 {s(sMODE)}, 0")
        A(f"s_cselect_b64 exec, {s(sP1,2)}, 0")
        A(f"s_cbranch_execz L_ld{j}")
        A(f"buffer_load_dwordx3 {v(RB(NJ+j),3)}, v59, {s(sREC,4)}, {so} offen offset:192 sc1")
        A(f"s_or_b64 {s(sMK+2*NJ+2*j,2)}, {s(sMK+2*NJ+2*j,2)}, exec")
        A(f"s_mov_b32 {s(sANY)}, 1")
        A.lab(f"L_ld{j}")
        A("s_mov_b64 exec, -1")
        A.lab(f"L_lx{j}")
    A.lab("L_repoll")
    if OPT.get('ts') == 2: lds_signal(A, vZ, vONE, M_RI)
    A(f"s_andn2_b64 exec, {s(sEX,2)}, {s(sDONE,2)}")
    A("s_cbranch_execz L_polled")
    A(f"s_sub_u32 {s(sSPIN)}, {s(sSPIN)}, 1")
    A("s_cbranch_scc1 L_giveup")
    if OPT.get('psleep', 8): A(f"s_sleep {OPT.get('psleep', 8)}")
    A(f"global_load_dwordx2 {v(vGW,2)}, {v(vGA)}, {s(sWS,2)} sc1")
    A("s_waitcnt vmcnt(0)")
    A("s_branch L_poll")
    A.lab("L_polled")
    A(f"s_mov_b64 exec, {s(sEX,2)}")
    A(f"v_bfe_u32 v56, {v(vGW)}, 11, 11")
    A(f"ds_max_u32 {v(vZ)}, v56 offset:{M_MAXLEN}")
    A.stamp('polled')
    if diag == 1: A(f"s_sub_u32 s101, {SPIN}, {s(sSPIN)}")
    if F2E == 1:
        f2_check("e", "L_f2eno")
        A("s_waitcnt vmcnt(1)")
        A("s_branch L_f2eyes")
        A.lab("L_f2eno")
    if F2E == 2:
        A(f"s_mov_b64 exec, {s(sF2M,2)}")
        A("s_cbranch_execz L_f2e0")
        A(f"global_load_dwordx2 {v(vF2,2)}, {v(vF2A)}, {s(sWS,2)} sc1")
        A.lab("L_f2e0")
    A("s_waitcnt vmcnt(0)")
    if F2E == 1: A.lab("L_f2eyes")
    if F2E == 2:
        f2_check("e", "L_f2eno")
        A.lab("L_f2eno")
    A.stamp('recs')
    if OPT.get('lprio', 0): A("s_setprio 1")
    A(f"s_mov_b64 exec, {s(sF2M,2)}")
    A("s_cbranch_execz L_nof2")
    A(f"global_load_dwordx2 {v(vF2,2)}, {v(vF2A)}, {s(sWS,2)} sc1")
    A.lab("L_nof2")
    def sets(name, body):
        for j in range(2 * NJ):
            if j == NJ:
                A(f"s_cmp_eq_u32 {s(sANY)}, 0")
                A(f"s_cbranch_scc1 L_{name}x")
            A(f"s_mov_b64 exec, {s(sMK+2*j,2)}")
            if j >= NJ: A(f"s_cbranch_execz L_{name}{j}")
            body(j)
            if j >= NJ: A.lab(f"L_{name}{j}")
        A.lab(f"L_{name}x")
    sets("rk", lambda j: (A(f"v_lshrrev_b32 {v(SD[j])}, 14, {v(RB(j)+2)}"),
                          A(f"ds_add_rtn_u32 {v(RB(j)+3)}, {v(SD[j])}, {v(vEIGHT)} offset:{L_CNT2}")))
    A.lab("L_ranked")
    A("s_mov_b64 exec, -1")
    A("s_waitcnt lgkmcnt(0)")
    A.stamp('rk')
    A("s_barrier")
    A.stamp('B5')
    vCA, vPA, vINC, vSUM, vSTA = 56, 58, 60, 61, 62
    A(f"s_lshl_b32 {s(sT4)}, {s(sWAVE)}, 2")
    A(f"v_mov_b32 {v(vX+2)}, {s(sT4)}")
    A(f"s_sub_u32 s3, {s(sWAVE)}, 5")
    A("s_cmp_lt_u32 s3, 5")
    A("s_cbranch_scc1 L_tscan")
    A("s_waitcnt vmcnt(0)")
    f2_check("c", "L_f2c")
    A.lab("L_f2c")
    A("s_mov_b64 exec, -1")
    if OPT.get('sp', 1): A("s_setprio 2")
    A("s_barrier")
    A.stamp('s2')
    A(f"ds_read_b32 {v(vX)}, {v(vX+2)} offset:{L_GEO}")
    sets("sr", lambda j: A(f"ds_read_b32 {v(SD[j])}, {v(SD[j])} offset:{L_ST2}"))
    if OPT.get('sp', 1): A("s_setprio 1")
    A("s_mov_b64 exec, -1")
    A("s_waitcnt lgkmcnt(0)")
    A(f"v_readfirstlane_b32 {s(sS)}, {v(vX)}")
    A.stamp('s3')
    A(f"s_bitcmp1_b32 {s(sS)}, 31")
    A("s_cbranch_scc1 L_goslow")
    sets("sw", lambda j: (A(f"v_add_u32 {v(SD[j])}, {v(SD[j])}, {v(RB(j)+3)}"),
                          A(f"v_lshrrev_b32 {v(RB(j)+3)}, 1, {v(SD[j])}"),
                          A(f"ds_write_b64 {v(SD[j])}, {v(RB(j),2)}"),
                          A(f"ds_write_b32 {v(RB(j)+3)}, {v(RB(j)+2)} offset:{L_META - L_E//2}")))
    A("s_mov_b64 exec, -1")
    if OPT.get('sp', 1): A("s_setprio 0")
    A("s_branch L_geom")
    A.lab("L_tscan")
    A.c("waves 5-9 turn the node counts into list offsets and deal the streams: wave w owns 4 streams of L pairs from pair S")
    A("s_setprio 3")
    A(f"ds_read_b64 {v(vCA,2)}, {v(vL8)} offset:{L_CNT2}")
    A(f"ds_read_b32 {v(vX)}, {v(vZ)} offset:{M_MAXLEN}")
    A(f"s_lshr_b32 {s(sT0)}, {s(sSZ)}, 1")
    A(f"s_sub_u32 {s(sT1)}, {s(sSZ)}, {s(sT0)}")
    A(f"s_bfm_b64 vcc, {s(sT1)}, 0")
    A(f"s_bfm_b64 {s(sP1,2)}, {s(sT0)}, 0")
    A("s_waitcnt lgkmcnt(1)")
    A.stamp('s1')
    A.c("counts are in units of 8 bytes; vPA = bytes of e-list per node = 16 * max(2, ceil(n/2))")
    for k in range(2): A(f"v_add_u32 {v(vPA+k)}, 8, {v(vCA+k)}")
    for k in range(2): A(f"v_and_b32 {v(vPA+k)}, -16, {v(vPA+k)}")
    for k in range(2): A(f"v_max_u32 {v(vPA+k)}, 32, {v(vPA+k)}")
    for k in range(2): A(f"v_cndmask_b32 {v(vPA+k)}, 0, {v(vPA+k)}, {s(sP1,2) if k else 'vcc'}")
    A(f"v_add_u32 {v(vINC)}, {v(vPA)}, {v(vPA+1)}")
    A(f"v_subrev_u32 {v(vSUM)}, {L_E}, {v(vINC)}")
    wave_scan(A, vINC)
    A(f"v_sub_u32 {v(vSTA)}, {v(vINC)}, {v(vSUM)}")
    A(f"v_readlane_b32 {s(sTP)}, {v(vINC)}, 63")
    A(f"v_add_u32 {v(vSTA+1)}, {v(vPA)}, {v(vSTA)}")
    A(f"ds_write_b64 {v(vL8)}, {v(vSTA,2)} offset:{L_ST2}")
    A(f"s_lshr_b32 {s(sTP)}, {s(sTP)}, 4")
    A(f"s_add_u32 {s(sT0)}, {s(sTP)}, 3")
    A(f"s_lshr_b32 {s(sT1)}, {s(sT0)}, 6")
    A(f"s_bfe_u32 {s(sT2)}, {s(sT0)}, 0x40002")
    A(f"v_min_u32 v8, {s(sT2)}, {v(vL)}")
    A(f"v_mad_u32_u24 v8, {v(vL)}, {s(sT1)}, v8")
    A(f"v_cmp_gt_u32 vcc, {s(sT2)}, {v(vL)}")
    A(f"v_mov_b32 v9, {s(sT1)}")
    A("s_waitcnt lgkmcnt(1)")
    A(f"v_readfirstlane_b32 {s(sMAXL)}, {v(vX)}")
    A("v_addc_co_u32 v9, vcc, 0, v9, vcc")
    A.c("first round only: does everything fit in one round?")
    A(f"s_cmp_gt_u32 {s(sTP)}, {CAP_PAIRS}")
    A(f"s_cselect_b32 {s(sT1)}, 33, {s(sMAXL)}")
    A(f"s_cmp_gt_u32 {s(sT1)}, 32")
    A(f"s_cselect_b32 {s(sT1)}, 1, 0")
    A(f"s_cmp_gt_u32 {s(sT1)}, {s(sMODE)}")
    A(f"s_cselect_b32 {s(sT1)}, 0x80000000, 0")
    A("v_lshlrev_b32 v8, 2, v8")
    A("v_lshl_or_b32 v8, v9, 16, v8")
    A(f"v_or_b32 v8, {s(sT1)}, v8")
    A(f"v_lshrrev_b32 v9, 1, {v(vL8)}")
    A("s_mov_b64 exec, 0xffff")
    A(f"ds_write_b32 v9, v8 offset:{L_GEO}")
    A("s_mov_b64 exec, -1")
    A(f"v_readlane_b32 {s(sS)}, v8, {s(sWAVE)}")
    A("s_waitcnt lgkmcnt(0)")
    A("s_barrier")
    A("s_setprio 0")
    A(f"s_bitcmp1_b32 {s(sS)}, 31")
    A("s_cbranch_scc1 L_goslow")
    A.c("null padding: waves 5-8 pad slot n+k of every node, wave 9 pads the tail and writes the end marker")
    A(f"s_add_u32 {s(sT3)}, {s(sBKT)}, {N}")
    A("s_cmp_eq_u32 s3, 4")
    A("s_cbranch_scc1 L_padtail")
    A("s_lshl_b32 s3, s3, 3")
    for k in range(2):
        A(f"v_add_u32 v8, s3, {v(vCA+k)}")
        A(f"v_add_u32 v9, v8, {v(vSTA+k)}")
        A(f"v_cmp_lt_u32 vcc, v8, {v(vPA+k)}")
        A(f"v_lshl_add_u32 v10, {v(vL)}, 1, {k}")
        A(f"v_lshl_or_b32 v10, v10, 16, {s(sT3)}")
        A("v_lshrrev_b32 v11, 1, v9")
        A("s_mov_b64 exec, vcc")
        A(f"ds_write_b32 v11, v10 offset:{L_META - L_E//2}")
        A(f"ds_write_b64 v9, {v(vZ,2)}")
        A("s_mov_b64 exec, -1")
    A("s_branch L_geom")
    A.lab("L_padtail")
    A(f"s_add_u32 {s(sT0)}, {s(sTP)}, 3")
    A(f"s_and_b32 {s(sT0)}, {s(sT0)}, -4")
    A(f"s_lshl_b32 {s(sT0)}, {s(sT0)}, 1")
    A(f"s_lshl_b32 {s(sT1)}, {s(sTP)}, 1")
    A(f"v_add_u32 v8, {s(sT1)}, {v(vL)}")
    A(f"v_cmp_eq_u32 vcc, {s(sT0)}, v8")
    A(f"s_sub_u32 {s(sT1)}, {s(sSZ)}, 1")
    A(f"v_mov_b32 v10, {s(sT1)}")
    A("v_mov_b32 v11, 255")
    A("v_cndmask_b32 v10, v10, v11, vcc")
    A(f"v_cmp_ge_u32 vcc, {s(sT0)}, v8")
    A(f"v_lshl_or_b32 v10, v10, 16, {s(sT3)}")
    A("v_lshlrev_b32 v9, 3, v8")
    A(f"v_add_u32 v9, {L_E}, v9")
    A("v_lshrrev_b32 v11, 1, v9")
    A("s_mov_b64 exec, vcc")
    A(f"ds_write_b32 v11, v10 offset:{L_META - L_E//2}")
    A(f"ds_write_b64 v9, {v(vZ,2)}")
    A("s_mov_b64 exec, -1")
    A.lab("L_geom")
    A.stamp('s4')
    A(f"s_lshr_b32 {s(sL)}, {s(sS)}, 16")
    A(f"s_and_b32 {s(sS)}, {s(sS)}, 0xffff")
    A(f"s_lshl_b32 {s(sT3)}, {s(sS)}, 3")
    A(f"s_add_u32 {s(sT2)}, {s(sT3)}, {L_META}")
    A(f"s_lshl_b32 {s(sT4)}, {s(sL)}, 3")
    A(f"v_mov_b32 v56, {s(sT2)}")
    A(f"v_mad_u32_u24 {v(vIA)}, {v(vG4)}, {s(sT4)}, v56")
    A(f"v_mov_b32 v9, {v(IDX+1)}")
    A(f"v_mov_b32 v11, {v(IDX+1)}")
    A.stamp('scat')
    A.c("all table rows of this slice must be published")
    A(f"s_cmp_eq_u64 {s(sF2M,2)}, 0")
    A("s_cbranch_scc0 L_f2")
    A.lab("L_f2_done")
    A.stamp('f2')
    A("s_mov_b64 exec, -1")
    A(f"s_cmp_lt_u32 {s(sWAVE)}, 10")
    A("s_cbranch_scc0 L_nox")
    A(f"s_mov_b64 exec, {s(sOM,2)}")
    A(f"global_load_dwordx4 {v(vX,4)}, {v(vOUT)}, {s(sX,2)}")
    A("s_mov_b64 exec, -1")
    A.lab("L_nox")
    A("s_waitcnt lgkmcnt(0)")
    A.stamp('s5')
    if OPT.get('dwait'):
        for _ in range(OPT['dwait']): A("s_sleep 127")
    A("s_barrier")
    A("s_setprio 3")
    A.stamp('B6')

    def gather(buf, x):
        r = LB[buf][x] + 2
        A(f"buffer_load_dwordx4 {v(r,4)}, {v(IDX+2*x,2)}, {s(sTAB,4)}, 0 idxen offen {GF}")
    def rd_idx(off):
        A(f"ds_read_u16 {v(IDX)}, {v(vIA)} offset:{off}")
        A(f"ds_read_u16 {v(IDX+2)}, {v(vIA)} offset:{off+4}")
    def rd_xa():
        for k in (0, 2): A(f"ds_read2_b32 {v(XA+k,2)}, {v(vPTR)} offset0:{NSTR//4+16*k} offset1:{NSTR//4+16*k+16}")
    def rd_e(off):
        A(f"ds_read_b64 {v(AE[0],2)}, {v(vEA)} offset:{off}")
        A(f"ds_read_b64 {v(AE[1],2)}, {v(vEA)} offset:{off+8}")
    m32 = lambda d, buf, x: f"v_mfma_f32_16x16x32_bf16 {v(d,4)}, {v(AE[x],4)}, {v(LB[buf][x],4)}, {v(XA,4)}"
    m4h = lambda d, buf, x: f"v_mfma_f32_4x4x4_16b_bf16 {v(d,4)}, {v(IDM,2)}, {v(LB[buf][x]+4,2)}, 0"
    m4c = lambda d: f"v_mfma_f32_4x4x4_16b_bf16 {v(d,4)}, {v(IDM,2)}, {v(CB,2)}, {v(d,4)}"
    ex = lambda d: f"v_exp_f32_e64 {v(d)}, {v(d)} clamp"
    rcp = lambda k: f"v_rcp_f32_e32 {v(P+k)}, {v(P+k)}"

    rd_idx(0)
    A(f"ds_read_u16 v8, {v(vIA)} offset:8")
    A(f"ds_read_u16 v10, {v(vIA)} offset:12")
    A(f"ds_read_u16 v12, {v(vIA)} offset:2")
    A(f"s_sub_u32 {s(sT0)}, {s(sL)}, 1")
    A(f"s_bfm_b64 {s(sF2M,2)}, {s(sT0)}, 0")
    A(f"s_mov_b32 {s(sT1)}, {NSTR}")
    A("s_waitcnt lgkmcnt(3)")
    gather(0, 0); gather(0, 1)
    A.c("the remaining setup runs while those rows are on their way")
    A(f"v_lshrrev_b32 v60, 5, {v(vL)}")
    A(f"v_mad_u32_u24 v60, v60, {s(sT4)}, v56")
    A(f"v_and_b32 v61, 0xf8, {v(vL8)}")
    A("v_add_u32 v60, v60, v61")
    A(f"s_lshl_b32 {s(sT4)}, {s(sL)}, 4")
    A(f"v_add_u32 v61, {s(sT4)}, v60")
    A(f"s_lshl1_add_u32 {s(sT2)}, {s(sT3)}, {L_E}")
    A(f"v_bfe_u32 v57, {v(vL)}, 2, 2")
    A(f"v_mov_b32 v58, {s(sT2)}")
    A(f"v_mad_u32_u24 v57, v57, {s(sT4)}, v58")
    A(f"v_cmp_ne_u32 vcc, 0, {v(vEI)}")
    A(f"v_mov_b32 v15, {v(vL8)}")
    A(f"v_mov_b32 v58, {L_ZERO+OPT.get('zo', 8)}")
    A(f"v_cndmask_b32 {v(vEA)}, v58, v57, vcc")
    for k in range(4): A(f"v_mov_b32 {v(P+k)}, 1.0")
    for k in range(8): A(f"v_mov_b64 {v(S+2*k,2)}, 0")
    A("s_waitcnt lgkmcnt(0)")
    A(f"buffer_load_dwordx4 {v(LB[1][0]+2,4)}, v[8:9], {s(sTAB,4)}, 0 idxen offen {GF}")
    A(f"buffer_load_dwordx4 {v(LB[1][1]+2,4)}, v[10:11], {s(sTAB,4)}, 0 idxen offen {GF}")
    for g in range(2):
        A(f"ds_read_u16 {v(16+2*g)}, {v(60+g)} offset:2")
        A(f"ds_read_u16 {v(17+2*g)}, {v(60+g)} offset:10")
    rd_e(0)
    A(f"s_cmp_eq_u32 {s(sMODE)}, 0")
    A("s_cbranch_scc1 L_nozero")
    A(f"ds_write_b64 v15, {v(vZ,2)} offset:{L_CNT2}")
    A.lab("L_nozero")
    A(f"v_mad_u32_u24 {v(vPTR)}, v12, {s(sT1)}, v127")
    rd_xa()
    rd_idx(16)
    A("s_waitcnt lgkmcnt(6)")
    A.c("node-end masks per stream; bit k of s[MK+2g] / s[MK+2g+1]: flush / switch stream g after step k-1")
    A(f"s_mov_b32 {s(sEND)}, 0")
    for g in (3, 2, 1, 0):
        if g & 1: A(f"v_cmp_ne_u32 vcc, {v(16+(g&2))}, {v(17+(g&2))}")
        half = "vcc_hi" if g & 1 else "vcc_lo"
        A(f"s_bitcmp1_b32 {half}, {s(sT0)}")
        A(f"s_addc_u32 {s(sEND)}, {s(sEND)}, {s(sEND)}")
        A(f"s_and_b32 {s(sMK+2*g+1)}, {half}, {s(sF2M)}")
        A(f"s_lshl_b32 {s(sMK+2*g)}, {s(sMK+2*g+1)}, 2")
    A(f"s_or_b64 {s(sMK+8,2)}, {s(sMK,2)}, {s(sMK+2,2)}")
    A(f"s_or_b64 {s(sP0,2)}, {s(sMK+4,2)}, {s(sMK+6,2)}")
    A(f"s_or_b64 {s(sMK+8,2)}, {s(sMK+8,2)}, {s(sP0,2)}")
    A(f"s_or_b32 {s(sP0)}, {s(sMK+8)}, {s(sMK+9)}")
    A(f"s_lshr_b32 {s(sP0)}, {s(sP0)}, 1")
    A(f"s_bitset1_b32 {s(sP0)}, {s(sT0)}")
    if OPT.get('noev'):
        A(f"s_mov_b32 {s(sP0)}, 0")
        A(f"s_bitset1_b32 {s(sP0)}, {s(sT0)}")
    FR = [int(x) for x in str(OPT.get('fr', '8.13.15')).split('.')]
    for k in range(3):
        A(f"s_mul_i32 {s(sMK+10+k)}, {s(sL)}, {FR[k]}")
        A(f"s_lshr_b32 {s(sMK+10+k)}, {s(sMK+10+k)}, 4")
        if OPT.get('frf', 0): A(f"s_bitset1_b32 {s(sP0)}, {s(sMK+10+k)}")
    if OPT.get('tail', 1):
        A(f"s_sub_u32 {s(sT1)}, {s(sL)}, 4")
        A(f"s_max_i32 {s(sT1)}, {s(sT1)}, 0")
        A(f"s_bitset1_b32 {s(sP0)}, {s(sT1)}")
    A(f"s_brev_b32 {s(sEV)}, {s(sP0)}")
    A(f"s_sub_u32 {s(sLM)}, {s(sL)}, 32")
    if OPT.get('tail', 1):
        A(f"s_cmp_gt_u32 {s(sL)}, 3")
        A("s_cselect_b64 vcc, 1, 0")
    A.stamp('f0')
    A("s_waitcnt vmcnt(2) lgkmcnt(0)")
    A.stamp('f1')
    A(m32(T[0][0], 0, 0)); A(m32(T[0][1], 0, 1)); A(m4h(H[0][0], 0, 0)); A(m4h(H[0][1], 0, 1))
    gather(0, 0); gather(0, 1)
    rd_e(16)
    rd_idx(24)
    def exec_from(half, idx):
        for lo, hi, dst in ((0, 1, "exec_lo"), (2, 3, "exec_hi")):
            A(f"s_bitcmp1_b32 {s(sMK+2*lo+half)}, {idx}")
            A(f"s_cselect_b32 {s(sT1)}, 0xffff, 0")
            A(f"s_bitcmp1_b32 {s(sMK+2*hi+half)}, {idx}")
            A(f"s_cselect_b32 {s(sT2)}, 0xffff0000, 0")
            A(f"s_or_b32 {dst}, {s(sT1)}, {s(sT2)}")
    A(f"s_bitcmp1_b32 {s(sMK+9)}, 0")
    A.stamp('fill')
    A("s_cbranch_scc0 L_loop")
    exec_from(1, "0")
    A(f"v_add_u32 {v(vPTR)}, {NSTR}, {v(vPTR)}")
    rd_xa()
    A("s_mov_b64 exec, -1")

    def body(c, ioff, eoff):
        loopbody.body(A, c, ioff, eoff, sTAB, sEV, GF, OPT.get('sched', 'v7t'))

    def handler(tag, ret):
        A(f"s_ff1_i32_b32 {s(sT0)}, {s(sEV)}")
        A(f"s_cmp_eq_u32 {s(sEV)}, 0")
        A(f"s_cselect_b32 {s(sT0)}, 32, {s(sT0)}")
        A(f"s_add_u32 {s(sT0)}, {s(sT0)}, {s(sLM)}")
        A(f"s_add_u32 {s(sT2)}, {s(sT0)}, 3")
        A(f"s_cmp_gt_u32 {s(sL)}, {s(sT2)}")
        A("s_cselect_b64 vcc, 1, 0")
        A(f"s_bitcmp1_b32 {s(sMK+8)}, {s(sT0)}")
        A(f"s_cbranch_scc0 L_nofl{tag}")
        exec_from(0, s(sT0))
        for k in range(0, 8, 2):
            A(f"ds_write2_b32 {v(vPTR)}, {v(DEN+k)}, {v(DEN+k+1)} offset0:{64+16*k} offset1:{80+16*k}")
        A(f"ds_read_b128 {v(DEN,4)}, {v(vZA)}")
        A(f"ds_read_b128 {v(NUM,4)}, {v(vZA)}")
        A.lab(f"L_nofl{tag}")
        A(f"s_bitcmp1_b32 {s(sMK+9)}, {s(sT0)}")
        A(f"s_cbranch_scc0 L_nosw{tag}")
        exec_from(1, s(sT0))
        A(f"v_add_u32 {v(vPTR)}, {NSTR}, {v(vPTR)}")
        rd_xa()
        A.lab(f"L_nosw{tag}")
        A("s_mov_b64 exec, -1")
        A.c("waves that are ahead yield to the ones behind")
        for k in range(3):
            A(f"s_cmp_gt_u32 {s(sT0)}, {s(sMK+10+k)}")
            A(f"s_cbranch_scc0 L_pr{tag}")
            A(f"s_setprio {2-k}")
        A.lab(f"L_pr{tag}")
        A(f"s_cmp_lg_u32 {s(sEV)}, 0")
        A(f"s_cbranch_scc1 {ret}")

    A.raw(".p2align 3")
    A.lab("L_loop")
    body(0, 32, 32)
    A("s_cbranch_scc1 L_h0")
    A.lab("L_r0")
    A(f"v_add_u32 {v(vIA)}, 16, {v(vIA)}")
    body(1, 24, 48)
    A(f"v_add_u32 {v(vEA)}, {v(vEI)}, {v(vEA)}")
    A("s_cbranch_scc0 L_loop")
    handler(1, "L_loop")
    A("s_branch L_drain")
    A.lab("L_h0")
    handler(0, "L_r0")
    A("s_branch L_drain")
    for c in range(2 if ' K ' in loopbody.SCHED[OPT.get('sched', 'v7t')] else 0):
        A.lab(f"L_skipg{c}")
        A("s_waitcnt vmcnt(0)")
        A(f"s_branch L_backg{c}")
    A.lab("L_drain")
    A.stamp('dr')
    A.c("last segment of each stream: node sum if it ends the node, else a partial slot")
    A(f"v_add_u32 v18, {NSTR+256}, {v(vPTR)}")
    for k in range(4): A(rcp(k))
    for _ in range(4): A(f"s_bitreplicate_b64_b32 {s(sP0,2)}, {s(sEND) if _ == 0 else s(sP0)}")
    A(f"v_cndmask_b32 v17, {v(vXA_)}, v18, {s(sP0,2)}")
    A(f"s_mov_b32 {s(sP1)}, 0x00010001")
    A(f"s_mov_b32 {s(sP1+1)}, 0x00010001")
    A("s_waitcnt lgkmcnt(0)")
    for k in (0, 2): A(f"v_pk_fma_f32 {v(DEN+k,2)}, {v(S+k,2)}, {v(P+k,2)}, {v(DEN+k,2)}")
    for k in (0, 2): A(f"v_pk_fma_f32 {v(NUM+k,2)}, {v(AA+k,2)}, {v(P+k,2)}, {v(NUM+k,2)}")
    for k in range(0, 8, 2):
        A(f"ds_write2_b32 v17, {v(DEN+k)}, {v(DEN+k+1)} offset0:{16*k} offset1:{16*k+16}")
    A(f"s_andn2_b64 exec, {s(sP1,2)}, {s(sP0,2)}")
    A(f"ds_add_u32 {v(vPTR)}, {v(vONE)} offset:{NSTR+NCNT}")
    A(f"ds_max_u32 {v(vPTR)}, {v(vSID)} offset:{NSTR+NCNT+4}")
    A("s_mov_b64 exec, -1")
    A(f"s_mov_b32 {s(sT1)}, {XSTR}")
    A(f"v_xor_b32 v15, 16, {v(vXU)}")
    A.stamp('loopend')
    A(f"s_mov_b32 {s(sP0)}, {hex(EPS)}")
    A(f"s_mov_b32 {s(sP0+1)}, {hex(EPS)}")
    A(f"s_cmp_lt_u32 {s(sWAVE)}, 10")
    A("s_waitcnt vmcnt(0)")
    A("s_cbranch_scc0 L_nounp")
    for k in range(4):
        A(f"v_lshlrev_b32 {v(76+2*k)}, 16, {v(vX+k)}")
        A(f"v_and_b32 {v(76+2*k+1)}, 0xffff0000, {v(vX+k)}")
    A.lab("L_nounp")
    A("s_waitcnt lgkmcnt(0)")
    A("s_barrier")
    A.stamp('B7')
    A(f"s_cmp_lt_u32 {s(sWAVE)}, 10")
    A("s_cbranch_scc0 L_nocomb")
    D8, N8, U8, XF, Q8 = 24, 32, 40, 48, 64
    A(f"ds_read_b64 v[16:17], {v(vNSA)} offset:{NCNT}")
    for k in range(4):
        A(f"ds_read_b128 {v(D8+4*k,4)}, {v(vDN)} offset:{256+256*(k>>1)+16*(k&1)}")
    A(f"ds_read_b128 {v(U8,4)}, {v(vXU)}")
    A(f"ds_read_b128 {v(U8+4,4)}, v15")
    A(f"s_mov_b32 {s(sT0)}, 0")
    A("s_waitcnt lgkmcnt(6)")
    A(f"v_mad_u32_u24 v18, v17, {s(sT1)}, {v(vXL)}")
    A.stamp('o1')
    A("v_cmp_lt_u32 vcc, 0, v16")
    A.lab("L_part")
    A("s_mov_b64 exec, vcc")
    for k in range(4):
        A(f"ds_read_b128 {v(XF+4*k,4)}, v18 offset:{256*(k>>1)+16*(k&1)}")
    A(f"s_add_u32 {s(sT0)}, {s(sT0)}, 1")
    A(f"v_subrev_u32 v18, {XSTR}, v18")
    A(f"v_cmp_lt_u32 vcc, {s(sT0)}, v16")
    A("s_waitcnt lgkmcnt(2)")
    for k in range(4):
        A(f"v_pk_add_f32 {v(D8+2*k,2)}, {v(D8+2*k,2)}, {v(XF+2*k,2)}")
    A("s_waitcnt lgkmcnt(0)")
    for k in range(4, 8):
        A(f"v_pk_add_f32 {v(D8+2*k,2)}, {v(D8+2*k,2)}, {v(XF+2*k,2)}")
    A("s_cbranch_vccnz L_part")
    A("s_mov_b64 exec, -1")
    A(f"s_cmp_eq_u32 {s(sMODE)}, 0")
    A("s_cbranch_scc0 L_slowcomb")
    A.lab("L_final")
    A.stamp('o2')
    A("s_waitcnt lgkmcnt(0)")
    for k in range(4):
        A(f"v_pk_add_f32 {v(D8+2*k,2)}, {v(D8+2*k,2)}, {s(sP0,2)}")
    for k in range(8):
        A(f"v_rcp_f32 {v(D8+k)}, {v(D8+k)}")
    for k in range(4):
        A(f"v_pk_fma_f32 {v(U8+2*k,2)}, {v(N8+2*k,2)}, {v(D8+2*k,2)}, {v(U8+2*k,2)}")
    for k in range(8):
        A(f"v_max_f32 {v(U8+k)}, 0, {v(U8+k)}")
    for k in range(4):
        A(f"v_pk_add_f32 {v(U8+2*k,2)}, {v(U8+2*k,2)}, {v(76+2*k,2)}")
    for k in range(4):
        A(f"v_cvt_pk_bf16_f32 {v(D8+k)}, {v(U8+2*k)}, {v(U8+2*k+1)}")
    A(f"s_mov_b64 exec, {s(sOM,2)}")
    A(f"global_store_dwordx4 {v(vOUT)}, {v(D8,4)}, {s(sOUT,2)} {OPT.get('of', 'sc0 sc1 nt')}")
    A.lab("L_out_done")
    A.stamp('o3')
    if diag and 'co4' in A.st:
        A("s_waitcnt vmcnt(0)")
        A.stamp('o4')
    if diag == 4:
        A("s_waitcnt lgkmcnt(0)")
        for k, key in enumerate(('sa',)):
            kind, wv = OPT[key].split('.')
            A(f"s_sub_u32 {s(sT1)}, {s(sST+2+2*k)}, {s(sNON)}")
            A(f"s_add_u32 {s(sT1)}, {s(sT1)}, 100")
            A(f"v_mov_b32 v8, {s(sT1)}")
            A(f"s_cmp_eq_u32 {s(sWAVE)}, {wv}")
            if OPT.get('xcc') is not None:
                A(f"s_cselect_b32 {s(sT2)}, 0, 64")
                A(f"s_getreg_b32 {s(sT3)}, hwreg(HW_REG_XCC_ID, 0, 4)")
                A(f"s_or_b32 {s(sT2)}, {s(sT2)}, {s(sT3)}")
                A(f"s_cmp_eq_u32 {s(sT2)}, {OPT['xcc']}")
            A("s_cselect_b64 exec, 1, 0")
            A(f"s_cbranch_execz L_pb{k}")
            A(f"global_atomic_{'add' if kind == 'mean' else 'umax'} {v(vZ)}, v8, {s(sDBG,2)} offset:{128+4*k} sc1")
            A.lab(f"L_pb{k}")
            A("s_mov_b64 exec, -1")
        A(f"s_or_b32 {s(sT0)}, s2, {s(sWAVE)}")
        A("s_cbranch_scc1 L_nohold")
        A.lab("L_hold0")
        A(f"s_memrealtime {s(sP0,2)}")
        A("s_waitcnt lgkmcnt(0)")
        A(f"s_sub_u32 {s(sT0)}, {s(sP0)}, {s(sNON)}")
        A(f"s_cmp_lt_u32 {s(sT0)}, 4500")
        A("s_cbranch_scc1 L_hold0")
        A(f"global_load_dwordx2 v[8:9], {v(vZ)}, {s(sDBG,2)} offset:128 sc1")
        A("s_waitcnt vmcnt(0)")
        A(f"v_readfirstlane_b32 {s(sT1)}, v8")
        A(f"v_readfirstlane_b32 {s(sT2)}, v9")
        if OPT['sa'].startswith('mean'): A(f"s_mul_hi_u32 {s(sT1)}, {s(sT1)}, {(1 << 32) // 5 + 1}")
        else: A(f"s_mul_i32 {s(sT1)}, {s(sT1)}, 50")
        A(f"s_min_u32 {s(sT1)}, {s(sT1)}, 200000")
        A(f"s_add_u32 {s(sT1)}, {s(sT1)}, 5000")
        A.lab("L_hold")
        A("s_sleep 8")
        A(f"s_memrealtime {s(sP0,2)}")
        A("s_waitcnt lgkmcnt(0)")
        A(f"s_sub_u32 {s(sT0)}, {s(sP0)}, {s(sNON)}")
        A(f"s_cmp_lt_u32 {s(sT0)}, {s(sT1)}")
        A("s_cbranch_scc1 L_hold")
        A.lab("L_nohold")
    if diag == 3:
        A("s_waitcnt lgkmcnt(0)")
        A(f"s_sub_u32 {s(sT1)}, {s(sST+2)}, {s(sST+1)}")
        A(f"s_cmp_gt_u32 {s(sT1)}, 10000")
        A(f"s_cselect_b32 {s(sT1)}, 0, {s(sT1)}")
        if OPT.get('wg') is not None:
            A(f"s_cmp_eq_u32 s2, {OPT['wg']}")
            A("s_cbranch_scc0 L_nohold")
        if OPT.get('wv') is not None:
            A(f"s_cmp_eq_u32 {s(sWAVE)}, {OPT['wv']}")
            A("s_cbranch_scc0 L_nohold")
        A(f"s_lshl_b32 {s(sT1)}, {s(sT1)}, 1")
        A(f"s_add_u32 {s(sT1)}, {s(sT1)}, 4000")
        A.lab("L_hold")
        A(f"s_memrealtime {s(sP0,2)}")
        A("s_waitcnt lgkmcnt(0)")
        A(f"s_sub_u32 {s(sT0)}, {s(sP0)}, {s(sST+1)}")
        A(f"s_cmp_lt_u32 {s(sT0)}, {s(sT1)}")
        A("s_cbranch_scc1 L_hold")
        A.lab("L_nohold")
    if OPT.get('hold'):
        A.lab("L_hold")
        A(f"s_memrealtime {s(sP0,2)}")
        A("s_waitcnt lgkmcnt(0)")
        A(f"s_sub_u32 {s(sT0)}, {s(sP0)}, {s(sST+1)}")
        A(f"s_cmp_lt_u32 {s(sT0)}, {OPT['hold']}")
        A("s_cbranch_scc1 L_hold")
    if diag == 1:
        A("s_waitcnt vmcnt(0)")
        A(f"s_memrealtime {s(sP0,2)}")
        A(f"s_memtime {s(sP1,2)}")
        A("s_waitcnt lgkmcnt(0)")
        A(f"s_sub_u32 {s(sT1)}, {s(sP1)}, {s(sST)}")
        A(f"s_mov_b32 {s(sST)}, {s(sST+1)}")
        A("v_mov_b32 v8, 0")
        for k in range(8): A(f"v_writelane_b32 v8, {s(sST+2*k)}, {k}")
        A(f"v_writelane_b32 v8, {s(sP0)}, 8")
        A(f"v_writelane_b32 v8, {s(sL)}, 9")
        A(f"v_writelane_b32 v8, {s(sT1)}, 10")
        A("v_writelane_b32 v8, s101, 11")
        A(f"s_getreg_b32 {s(sT0)}, hwreg(HW_REG_XCC_ID)")
        A(f"v_writelane_b32 v8, {s(sT0)}, 12")
        A(f"s_getreg_b32 {s(sT0)}, hwreg(HW_REG_HW_ID)")
        A(f"v_writelane_b32 v8, {s(sT0)}, 13")
        A("s_lshl_b32 s3, s2, 4")
        A(f"s_add_u32 s3, s3, {s(sWAVE)}")
        A("s_lshl_b32 s3, s3, 6")
        A(f"s_add_u32 s3, s3, {OFF_DIAG}")
        A(f"v_lshl_add_u32 v9, {v(vL)}, 2, s3")
        A("s_mov_b64 exec, 0xffff")
        A(f"global_store_dword v9, v8, {s(sWS,2)}")
    A("s_endpgm")
    A.lab("L_f2")
    A(f"s_mov_b32 {s(sSPIN)}, {SPIN}")
    A(f"s_mov_b64 exec, {s(sF2M,2)}")
    A(f"global_load_dwordx2 {v(vF2,2)}, {v(vF2A)}, {s(sWS,2)} sc1")
    A.lab("L_f2l")
    A("s_waitcnt vmcnt(0)")
    f2_check("b", "L_f2r")
    A("s_branch L_f2_done")
    A.lab("L_f2r")
    A(f"s_sub_u32 {s(sSPIN)}, {s(sSPIN)}, 1")
    A("s_cbranch_scc1 L_f2_done")
    A("s_sleep 1")
    A(f"global_load_dwordx2 {v(vF2,2)}, {v(vF2A)}, {s(sWS,2)} sc1")
    A("s_branch L_f2l")
    A.c("more records than one round holds: restart in rounds of 11 records per segment")
    A.lab("L_goslow")
    A(f"ds_read_b32 v56, {v(vZ)} offset:{M_MAXLEN}")
    A("s_waitcnt lgkmcnt(0)")
    A(f"v_readfirstlane_b32 {s(sMAXL)}, v56")
    A(f"s_mov_b32 {s(sMODE)}, 1")
    A(f"s_mov_b32 {s(sWM)}, {hex(((1 << SLOWK) - 1) * 0x10001)}")
    A(f"s_mov_b32 {s(sWM+1)}, {hex(((1 << SLOWK) - 1) * 0x10001)}")
    A("s_waitcnt vmcnt(0)")
    A("s_barrier")
    A(f"ds_write_b64 {v(vL8)}, {v(vZ,2)} offset:{L_CNT2}")
    A("s_waitcnt lgkmcnt(0)")
    A("s_barrier")
    A("s_branch L_nextround2")
    A.lab("L_nextround")
    A(f"s_mov_b64 {s(sF2M,2)}, 0")
    A(f"v_lshlrev_b32 {v(vL8)}, 3, {v(vL)}")
    for bb in LB:
        for x in bb:
            A(f"ds_read_b64 {v(x,2)}, {v(vL8)} offset:{L_WC}")
    A.lab("L_nextround2")
    A(f"s_mov_b32 {s(sANY)}, 0")
    for j in range(2 * NJ): A(f"s_mov_b64 {s(sMK+2*j,2)}, 0")
    A(f"s_mov_b64 {s(sP0,2)}, {s(sEX,2)}")
    A(f"s_mov_b64 {s(sDONE,2)}, {s(sEX,2)}")
    A("s_branch L_round")
    A.c("multi-round mode: waves without output work just go on")
    A.lab("L_nocomb")
    A(f"s_cmp_eq_u32 {s(sMODE)}, 0")
    A("s_cbranch_scc1 L_out_done")
    A(f"s_add_u32 {s(sLO)}, {s(sLO)}, {SLOWK}")
    A(f"s_cmp_lt_u32 {s(sLO)}, {s(sMAXL)}")
    A("s_cbranch_scc1 L_nextround")
    A("s_branch L_out_done")
    A.c("multi-round mode: running sums live in this workgroup's scratch, one 64-byte record per thread")
    A.lab("L_slowcomb")
    A(f"s_mul_i32 {s(sT0)}, s2, 40960")
    A(f"s_add_u32 {s(sT0)}, {s(sT0)}, {OFF_ACC}")
    add64(A, sP0, sWS, s(sT0))
    A("v_lshlrev_b32 v20, 6, v0")
    A("s_waitcnt lgkmcnt(0)")
    A(f"ds_write_b64 v124, {v(vZ,2)} offset:{NCNT}")
    A(f"s_cmp_eq_u32 {s(sLO)}, 0")
    A("s_cbranch_scc1 L_slow1")
    for k in range(4):
        A(f"global_load_dwordx4 {v(48+4*k,4)}, v20, {s(sP0,2)} offset:{16*k} sc1")
    A("s_waitcnt vmcnt(0)")
    for k in range(8):
        A(f"v_pk_add_f32 {v(24+2*k,2)}, {v(24+2*k,2)}, {v(48+2*k,2)}")
    A.lab("L_slow1")
    A(f"s_add_u32 {s(sLO)}, {s(sLO)}, {SLOWK}")
    A(f"s_cmp_lt_u32 {s(sLO)}, {s(sMAXL)}")
    A("s_cbranch_scc0 L_final2")
    for k in range(4):
        A(f"global_store_dwordx4 v20, {v(24+4*k,4)}, {s(sP0,2)} offset:{16*k} sc1")
    A("s_waitcnt vmcnt(0) lgkmcnt(0)")
    A("s_branch L_nextround")
    A.c("never reached while all workgroups are resident: stop waiting, treat the missing segments as empty")
    A.lab("L_giveup")
    A(f"v_mov_b32 {v(vGW)}, 0")
    A("s_branch L_polled")
    A.lab("L_final2")
    A(f"s_mov_b32 {s(sP0)}, {hex(EPS)}")
    A(f"s_mov_b32 {s(sP0+1)}, {hex(EPS)}")
    A("s_branch L_final")
    A.lab("L_end")
    A("s_endpgm")
    return A.L


HEADER = open(os.path.join(os.path.dirname(os.path.abspath(__file__)), "header.txt")).read()


def emit(path, diag=0, **o):
    body = build(diag, **o)
    errs = hazard.check(body, "linear")
    for e in errs: print("HAZARD", e)
    out = [HEADER.rstrip("\n")] + ([f"; stamps: {o.get('st', 'pDst|gB3 pOut|gMM ph2 polled recs B6 loopend')}"] if diag else []) + [
           f"; @launch grid=({NC},1,1) block=(1024,1,1) lds={LDS_SIZE}",
           '.amdgcn_target "amdgcn-amd-amdhsa--gfx950"', ".text", f".globl {KNAME}", ".p2align 8",
           f".type {KNAME},@function", f"{KNAME}:"]
    out += body
    out += ['.section .rodata,"a"', ".p2align 6", f".amdhsa_kernel {KNAME}",
            "  .amdhsa_next_free_vgpr 128", "  .amdhsa_next_free_sgpr 102", "  .amdhsa_accum_offset 128",
            "  .amdhsa_group_segment_fixed_size 0", "  .amdhsa_kernarg_size 96", "  .amdhsa_user_sgpr_count 2",
            "  .amdhsa_user_sgpr_kernarg_segment_ptr 1", "  .amdhsa_system_sgpr_workgroup_id_x 1",
            ".end_amdhsa_kernel"]
    open(path, "w").write("\n".join(out) + "\n")
    return len(errs)


if __name__ == "__main__":
    root = os.path.dirname(os.path.dirname(os.path.abspath(__file__)))
    emit(os.path.join(root, "cdna_kernels", "standalone__edge_featured_mpnn_gatedgcn__graph.s"), 0)
    emit(os.path.join(root, "gen", "diag.s"), 1)
    for a in sys.argv[1:]:
        name, _, rest = a.partition(':')
        o = {}
        for kv in rest.split(','):
            if kv:
                k, _, val = kv.partition('=')
                o[k] = int(val) if val.lstrip('-').isdigit() else val.replace('+', ' ')
        emit(os.path.join(root, "gen", f"diag_{name}.s"), o.pop('diag', 1), **o)
```

```python
def v(a, n=1): return f"v{a}" if n == 1 else f"v[{a}:{a+n-1}]"
def s(a, n=1): return f"s{a}" if n == 1 else f"s[{a}:{a+n-1}]"
T = [[8, 12], [16, 20]]; H = [[24, 28], [32, 36]]
P, S, AA, DEN, NUM, XA = 40, 44, 48, 52, 56, 60
LB = [[64, 70], [76, 82]]
AE = [88, 92]; IDX = 96; IDM = 100; CB = 102
vIA, vEA, vEI, vPTR, vZA, vEVB = 104, 105, 106, 107, 108, 109

def parts(c, ioff, eoff, sTAB, sEV, GF):
    n = 1 - c
    tA, tB = T[c]; hA, hB = H[c]; tA2, tB2 = T[n]; hA2, hB2 = H[n]
    d = {}
    m32 = lambda dd, x: f"v_mfma_f32_16x16x32_bf16 {v(dd,4)}, {v(AE[x],4)}, {v(LB[n][x],4)}, {v(XA,4)}"
    m4h = lambda dd, x: f"v_mfma_f32_4x4x4_16b_bf16 {v(dd,4)}, {v(IDM,2)}, {v(LB[n][x]+4,2)}, 0"
    m4c = lambda dd: f"v_mfma_f32_4x4x4_16b_bf16 {v(dd,4)}, {v(IDM,2)}, {v(CB,2)}, {v(dd,4)}"
    for k in range(4):
        d[f"a{k}"] = f"v_exp_f32_e64 {v(tA+k)}, {v(tA+k)} clamp"
        d[f"b{k}"] = f"v_exp_f32_e64 {v(tB+k)}, {v(tB+k)} clamp"
        d[f"r{k}"] = f"v_rcp_f32_e32 {v(P+k)}, {v(P+k)}"
        d[f"R{k}"] = f"v_rcp_f32_e64 {v(P+k)}, {v(P+k)}"
    d["MA"] = m32(tA2, 0); d["MB"] = m32(tB2, 1)
    d["HA"] = m4h(hA2, 0); d["HB"] = m4h(hB2, 1)
    d["CA"] = m4c(tA); d["CB"] = m4c(tB)
    m16 = lambda dd, x: f"v_mfma_f32_16x16x16_bf16 {v(dd,4)}, {v(AE[x],2)}, {v(LB[n][x],2)}, {v(XA,4)}"
    m4x = lambda dd, x: f"v_mfma_f32_4x4x4_16b_bf16 {v(dd,4)}, {v(IDM,2)}, {v(LB[n][x]+2,2)}, {v(dd,4)}"
    m4y = lambda dd, x: f"v_mfma_f32_4x4x4_16b_bf16 {v(dd,4)}, {v(IDM,2)}, {v(LB[n][x]+2,2)}, {v(XA,4)}"
    d["EA"] = m16(tA2, 0); d["EB"] = m16(tB2, 1); d["XA"] = m4x(tA2, 0); d["XB"] = m4x(tB2, 1)
    d["YA"] = m4y(tA2, 0); d["YB"] = m4y(tB2, 1)
    for k in range(4):
        d[f"ma{k}"] = f"v_mov_b32_e64 {v(tA+k)}, {v(tA+k)}"
        d[f"mb{k}"] = f"v_mov_b32_e64 {v(tB+k)}, {v(tB+k)}"
    for x, hh, nm in ((0, hA2, "A"), (1, hB2, "B")):
        for k in range(4):
            src = LB[n][x] + 4 + (k >> 1)
            d[f"h{nm}{k}"] = f"v_and_b32_e32 {v(hh+k)}, s1, {v(src)}".replace("s1,", "s14,") if k & 1 else f"v_lshlrev_b32_e32 {v(hh+k)}, 16, {v(src)}"
    d["W"] = "s_waitcnt vmcnt(2) lgkmcnt(0)"
    d["Wv"] = "s_waitcnt vmcnt(2)"; d["Wl"] = "s_waitcnt lgkmcnt(0)"
    d["E"] = f"s_add_u32 {s(sEV)}, {s(sEV)}, {s(sEV)}"
    d["N"] = "s_nop 0"
    d["K"] = f"s_cbranch_vccz L_skipg{c}"
    d["L"] = f"L_backg{c}:"
    d["P1"] = "s_setprio 1"; d["P0"] = "s_setprio 0"
    d["eA"] = f"ds_read_b64 {v(AE[0],2)}, {v(vEA)} offset:{eoff}"
    d["eB"] = f"ds_read_b64 {v(AE[1],2)}, {v(vEA)} offset:{eoff+8}"
    d["iA"] = f"ds_read_u16 {v(IDX)}, {v(vIA)} offset:{ioff}"
    d["iB"] = f"ds_read_u16 {v(IDX+2)}, {v(vIA)} offset:{ioff+4}"
    d["gA"] = f"buffer_load_dwordx4 {v(LB[n][0]+2,4)}, {v(IDX,2)}, {s(sTAB,4)}, 0 idxen offen {GF}"
    d["gB"] = f"buffer_load_dwordx4 {v(LB[n][1]+2,4)}, {v(IDX+2,2)}, {s(sTAB,4)}, 0 idxen offen {GF}"
    for k in (0, 2):
        d[f"D{k}"] = f"v_pk_fma_f32 {v(DEN+k,2)}, {v(S+k,2)}, {v(P+k,2)}, {v(DEN+k,2)}"
        d[f"U{k}"] = f"v_pk_fma_f32 {v(NUM+k,2)}, {v(AA+k,2)}, {v(P+k,2)}, {v(NUM+k,2)}"
        d[f"p{k}"] = f"v_pk_mul_f32 {v(P+k,2)}, {v(tA+k,2)}, {v(tB+k,2)}"
        d[f"q{k}"] = f"v_pk_mul_f32 {v(AA+k,2)}, {v(hA+k,2)}, {v(tB+k,2)}"
        d[f"s{k}"] = f"v_pk_add_f32 {v(S+k,2)}, {v(tA+k,2)}, {v(tB+k,2)}"
        d[f"n{k}"] = f"v_pk_fma_f32 {v(AA+k,2)}, {v(hB+k,2)}, {v(tA+k,2)}, {v(AA+k,2)}"
        d[f"cA{k}"] = f"v_pk_add_f32 {v(tA+k,2)}, {v(tA+k,2)}, s[12:13]"
        d[f"cB{k}"] = f"v_pk_add_f32 {v(tB+k,2)}, {v(tB+k,2)}, s[12:13]"
    for k in range(4):
        d[f"xD{k}"] = f"v_fmac_f32 {v(DEN+k)}, {v(S+k)}, {v(P+k)}"
        d[f"xU{k}"] = f"v_fmac_f32 {v(NUM+k)}, {v(AA+k)}, {v(P+k)}"
        d[f"xp{k}"] = f"v_mul_f32 {v(P+k)}, {v(tA+k)}, {v(tB+k)}"
        d[f"xq{k}"] = f"v_mul_f32 {v(AA+k)}, {v(hA+k)}, {v(tB+k)}"
        d[f"xs{k}"] = f"v_add_f32 {v(S+k)}, {v(tA+k)}, {v(tB+k)}"
        d[f"xn{k}"] = f"v_fmac_f32 {v(AA+k)}, {v(hB+k)}, {v(tA+k)}"
    return d

PK = "D0 D2 U0 U2 p0 p2 q0 q2 s0 s2 n0 n2"
XK = " ".join(f"x{o}{k}" for o in "DUpqsn" for k in range(4))
CORE = "a0 MA a1 a2 MB a3 b0 HA b1 CA b2 HB b3 r0 r1 CB r2 r3 "
SCHED = {
 'v0': "a0 W E MA a1 a2 MB a3 eA eB b0 HA b1 CA b2 HB gA gB b3 iA iB r0 r1 CB r2 r3 " + PK,
 'v7': "a0 W E MA a1 a2 MB a3 b0 HA b1 CA b2 HB b3 r0 r1 CB r2 r3 gA gB eA eB iA iB " + PK,
 'v7t': "a0 W E MA a1 a2 MB a3 b0 HA b1 CA b2 HB b3 r0 r1 CB R2 r3 K gA gB L eA eB iA iB " + PK,
 'u1': "W E a0 MA a1 a2 MB a3 b0 HA b1 CA b2 HB b3 r0 r1 CB R2 r3 K gA gB L eA eB iA iB " + PK,
 'u2': "a0 W E MA a1 a2 MB a3 b0 HA b1 CA b2 HB b3 r0 r1 CB R2 r3 K gA gB L iA iB D0 D2 U0 U2 p0 p2 q0 q2 s0 s2 n0 n2 eA eB",
 'u3': "a0 W E MA a1 a2 MB eA eB a3 b0 HA b1 CA b2 HB b3 r0 r1 CB R2 r3 K gA gB L iA iB " + PK,
 'u4': "a0 a1 W E MA a2 a3 MB b0 HA b1 CA b2 HB b3 r0 r1 CB R2 r3 K gA gB L eA eB iA iB " + PK,
 'u5': "a0 W E MA a1 a2 MB a3 b0 HA b1 CA b2 HB b3 r0 r1 CB R2 r3 D0 D2 U0 U2 K gA gB L eA eB iA iB p0 p2 q0 q2 s0 s2 n0 n2",
 'u6': "a0 a1 a2 a3 W E MA b0 b1 MB b2 HA b3 HB r0 CA r1 R2 CB r3 K gA gB L eA eB iA iB " + PK,
 'hv': "a0 W E MA a1 a2 MB a3 b0 hA0 hA1 hA2 hA3 b1 CA b2 hB0 hB1 hB2 hB3 b3 r0 r1 CB R2 r3 K gA gB L eA eB iA iB " + PK,
 'hvpk': "a0 W E MA a1 a2 MB a3 b0 hA0 hA1 hA2 hA3 b1 b2 hB0 hB1 hB2 hB3 b3 r0 r1 R2 r3 K gA gB L eA eB iA iB cA0 cA2 cB0 cB2 " + PK,
 't16': "a0 W E EA a1 EB a2 HA a3 HB b0 b1 CA XA b2 XB b3 r0 r1 CB R2 r3 K gA gB L eA eB iA iB " + PK,
 'tpk': "a0 W E MA a1 a2 MB a3 b0 HA b1 b2 HB b3 r0 r1 R2 r3 K gA gB L eA eB iA iB cA0 cA2 cB0 cB2 " + PK,
 'dnoe': "a0 W E YA a1 a2 YB a3 b0 HA b1 CA b2 HB b3 r0 r1 CB R2 r3 K gA gB L eA eB iA iB " + PK,
 'dnom': "a0 W E a1 a2 a3 b0 b1 b2 b3 r0 r1 R2 r3 K gA gB L eA eB iA iB " + PK,
 'dnopk': "a0 W E MA a1 a2 MB a3 b0 HA b1 CA b2 HB b3 r0 r1 CB R2 r3 K gA gB L eA eB iA iB",
 'dnoex': "W E MA N N MB N N N HA N N CA N N HB r0 r1 CB R2 r3 K gA gB L eA eB iA iB " + PK,
 'v10': "a0 W E P1 N MA a1 a2 MB a3 eA eB b0 HA b1 CA b2 HB gA gB b3 iA iB r0 r1 CB r2 r3 " + PK + " P0 N",
 'w1': "a0 W E P1 N MA a1 a2 MB a3 b0 HA b1 CA b2 HB b3 r0 r1 CB r2 r3 gA gB eA eB iA iB " + PK + " P0 N",
 'w2': "P0 W P1 E a0 MA a1 a2 MB a3 b0 HA b1 CA b2 HB b3 r0 r1 CB r2 r3 gA gB eA eB iA iB " + PK,
 'w3': "P0 W P1 E a0 MA a1 a2 MB a3 eA eB b0 HA b1 CA b2 HB gA gB b3 iA iB r0 r1 CB r2 r3 " + PK,
 'w4': "a0 P0 W P1 E MA a1 a2 MB a3 eA eB b0 HA b1 CA b2 HB gA gB b3 iA iB r0 r1 CB r2 r3 " + PK,
 'w5': "a0 W E MA a1 a2 MB a3 b0 HA b1 CA b2 HB b3 gA gB eA eB iA iB r0 r1 CB r2 r3 " + PK,
 'w6': "a0 W E MA a1 a2 MB a3 b0 HA b1 CA b2 HB b3 r0 r1 CB r2 gA gB eA eB iA iB r3 " + PK,
 'w7': "P0 W P1 E MA a0 a1 MB a2 a3 HA b0 eA eB b1 CA b2 HB gA gB b3 iA iB r0 r1 CB r2 r3 " + PK,
 'w8': "P0 W P1 E MA a0 a1 MB a2 HA a3 HB b0 gA gB eA eB iA iB b1 CA b2 b3 r0 r1 CB r2 r3 " + PK,
}
def body(A, c, ioff, eoff, sTAB, sEV, GF, sched):
    d = parts(c, ioff, eoff, sTAB, sEV, GF)
    for k in SCHED[sched].split():
        if d[k].endswith(':'): A.lab(d[k][:-1])
        else: A(d[k])
```

```python
import sys, os, struct
sys.path.insert(0, os.path.dirname(os.path.abspath(__file__)))
import hazard
import loopbody

KNAME = "standalone__edge_featured_mpnn_gatedgcn__graph_kernel"

N = 10000; NB = 128; NC = 256; BN = 80; CE = 1250
TS = 2592768
NROWS = N + NB
TPG = 0x580000; TBITS = 4
OFF_REC = TPG << TBITS; RECSZ = 15360; RPG = 0x400000; RBITS = 5
OFF_G = OFF_REC + (RPG << RBITS); GSTR = 1152; GPG = 0x60000
OFF_F2 = OFF_G + NC * GSTR
OFF_ACC = OFF_G + (GPG << RBITS)
OFF_DIAG = 0xF000000
CSH = 11
assert 2 * TS <= TPG and NC * RECSZ <= RPG and NC * GSTR + 2 * NB * 128 <= GPG and OFF_ACC + NC * 40960 <= OFF_DIAG
L_CNT1 = 0; L_ST1 = 512; L_CNT2 = 1024; L_ST2 = 1536; L_ZERO = 2048; L_MISC = 2176; L_WC = 2304; L_GEO = 2816
M_CTRA, M_CTRB, M_MAXLEN, M_P1, M_P2, M_G, M_CD, M_XI, M_TS = [L_MISC + 4 * i for i in range(9)]
M_NONCE = L_MISC + 40; M_PG = L_MISC + 48; M_WI = L_MISC + 52; M_RI = L_MISC + 56; M_TM = L_MISC + 60
L_NS = 3072; NSTR = 784; NCNT = 768
L_XS = (L_NS + BN * NSTR + 255) // 256 * 256
L_W = L_XS + 20480
CAP = 3328
L_META = L_W; L_E = L_W + 13568; L_EXT = L_E + 26880; XSTR = 528
LDS_SIZE = L_EXT + 64 * XSTR
CAP_PAIRS = CAP // 2 - 4
SLOWK = 11
SPIN = 1 << 20

def f2u(x): return struct.unpack('<I', struct.pack('<f', x))[0]
NL2E = f2u(-1.4426950408889634)
SHIFT = 60
EPS = f2u(1e-6 * 2.0 ** SHIFT)
CBF = (127 - SHIFT) << 7

def v(a, n=1): return f"v{a}" if n == 1 else f"v[{a}:{a+n-1}]"
def s(a, n=1): return f"s{a}" if n == 1 else f"s[{a}:{a+n-1}]"

sX, sE, sSRC, sDST, sWA, sWB, sWC, sWU, sWV, sOUT, sDBG, sWS = 4, 6, 8, 10, 12, 14, 16, 18, 20, 22, 24, 26
sF2M, sPFM, sJ, sSPIN, sLO, sMODE, sMAXL, sTP, sL, sS = 6, 8, 10, 15, 16, 17, 18, 19, 20, 21
sWAVE, sBKT, sSL, sT0 = 28, 29, 30, 31
sSRD = 32
sTAB = 36
sNON = 40
sRT = 42
sDONE = 42
sMK = 44
sREC = 68
sT1, sT2, sT3, sT4 = 72, 73, 74, 75
sLINK = 74
sEX, sP0, sP1 = 76, 78, 80
sEV, sLM, sWM = 82, 83, 84
sROW, sSZ = 0, 1
sPG = 1
sPST = 0
sOM = 34
sEND = 3
sST = 86
NJ = 6

class G:
    def __init__(self, diag=0):
        self.L = []
        self.diag = diag
        self.nst = 0
    def __call__(self, t): self.L.append("    " + t)
    def lab(self, t): self.L.append(t + ":")
    def c(self, t): self.L.append("    ; " + t)
    def raw(self, t): self.L.append(t)
    def stamp(self, name):
        if self.diag and name in self.st:
            self(f"s_memrealtime {s(sST + 2 * self.st[name], 2)}")
        if self.diag and name + '2' in self.st:
            self(f"s_memrealtime {s(sST + 2 * self.st[name + '2'], 2)}")
        if self.diag and 'c' + name in self.st:
            self(f"s_memtime {s(sST + 2 * self.st['c' + name], 2)}")


def wave_scan(A, r):
    for sh in (1, 2, 4, 8):
        A("s_nop 1")
        A(f"v_add_u32_dpp {v(r)}, {v(r)}, {v(r)} row_shr:{sh} row_mask:0xf bank_mask:0xf")
    A("s_nop 1")
    A(f"v_add_u32_dpp {v(r)}, {v(r)}, {v(r)} row_bcast:15 row_mask:0xa bank_mask:0xf")
    A("s_nop 1")
    A(f"v_add_u32_dpp {v(r)}, {v(r)}, {v(r)} row_bcast:31 row_mask:0xc bank_mask:0xf")


def lds_signal(A, vz, vone, off):
    A("s_mov_b64 exec, 1")
    A(f"ds_add_u32 {v(vz)}, {v(vone)} offset:{off}")
    A("s_mov_b64 exec, -1")


def lds_wait(A, vz, vt, off, target, tag, sleep=0):
    if sleep:
        A(f"s_branch L_lc_{tag}")
    A.lab(f"L_lw_{tag}")
    if sleep:
        A(f"s_sleep {sleep}")
        A.lab(f"L_lc_{tag}")
    A(f"ds_read_b32 {v(vt)}, {v(vz)} offset:{off}")
    A("s_waitcnt lgkmcnt(0)")
    A(f"v_readfirstlane_b32 s3, {v(vt)}")
    A(f"s_cmp_ge_u32 s3, {target}")
    A(f"s_cbranch_scc0 L_lw_{tag}")


def lds_sync(A, vz, vone, vt, off, n, tag):
    A("s_mov_b64 exec, 1")
    A(f"ds_add_rtn_u32 {v(vt)}, {v(vz)}, {v(vone)} offset:{off}")
    A("s_mov_b64 exec, -1")
    A("s_waitcnt lgkmcnt(0)")
    A(f"v_readfirstlane_b32 s3, {v(vt)}")
    A(f"s_cmp_eq_u32 s3, {n-1}")
    A(f"s_cbranch_scc1 L_ls_{tag}")
    lds_wait(A, vz, vt, off, n, tag)
    A.lab(f"L_ls_{tag}")


def lds_sync2(A, vz, vone, vt, off, n, tag, reads, between=None):
    A("s_mov_b64 exec, 1")
    A(f"ds_add_rtn_u32 {v(vt)}, {v(vz)}, {v(vone)} offset:{off}")
    A("s_mov_b64 exec, -1")
    for r in reads: A(r)
    if between: between()
    A("s_waitcnt lgkmcnt(0)")
    A(f"v_readfirstlane_b32 s3, {v(vt)}")
    A(f"s_cmp_eq_u32 s3, {n-1}")
    A(f"s_cbranch_scc1 L_ls_{tag}")
    A.lab(f"L_lw_{tag}")
    A(f"ds_read_b32 {v(vt)}, {v(vz)} offset:{off}")
    for r in reads: A(r)
    A("s_waitcnt lgkmcnt(0)")
    A(f"v_readfirstlane_b32 s3, {v(vt)}")
    A(f"s_cmp_ge_u32 s3, {n}")
    A(f"s_cbranch_scc0 L_lw_{tag}")
    A.lab(f"L_ls_{tag}")


def nonce_get(A, vz, vn, tag):
    A(f"s_mov_b32 {s(sSPIN)}, {SPIN}")
    A.lab(f"L_nn_{tag}")
    A(f"v_readfirstlane_b32 {s(sNON)}, {v(vn)}")
    A(f"v_readfirstlane_b32 {s(sNON+1)}, {v(vn+1)}")
    A(f"s_cmp_lg_u32 {s(sNON)}, 0")
    A(f"s_cbranch_scc1 L_nd_{tag}")
    A(f"s_sub_u32 {s(sSPIN)}, {s(sSPIN)}, 1")
    A(f"s_cbranch_scc1 L_nd_{tag}")
    A("s_sleep 2")
    A(f"global_load_dwordx2 {v(vn,2)}, {v(vz)}, {s(sDBG,2)} sc1")
    A("s_waitcnt vmcnt(0)")
    A(f"s_branch L_nn_{tag}")
    A.lab(f"L_nd_{tag}")


def nonce_lds(A, vz, vn, tag):
    A.lab(f"L_nl_{tag}")
    A(f"ds_read_b64 {v(vn,2)}, {v(vz)} offset:{M_NONCE}")
    A("s_waitcnt lgkmcnt(0)")
    A(f"v_readfirstlane_b32 {s(sNON)}, {v(vn)}")
    A(f"v_readfirstlane_b32 {s(sNON+1)}, {v(vn+1)}")
    A(f"s_cmp_lg_u32 {s(sNON)}, 0")
    A(f"s_cbranch_scc0 L_nl_{tag}")


def add64(A, d, a, off):
    A(f"s_add_u32 {s(d)}, {s(a)}, {off}")
    A(f"s_addc_u32 {s(d+1)}, {s(a+1)}, 0")


def build(diag=0, **OPT):
    A = G(diag)
    A.st = {}
    for k, grp in enumerate(OPT.get('st', 'pDst|gB3 pOut|gMM ph2 polled recs B6 loopend').split()):
        for n in grp.split('|'): A.st[n] = k + 1
    GF = OPT.get('gf', 'sc1'); EF = OPT.get('ef', ''); XF_ = OPT.get('xf', ''); SF = 'sc1'
    PF = OPT.get('pf', 2)
    sTO, sGO = sEV, sLM
    def rebase():
        A(f"s_bfe_u32 {s(sTO)}, {s(sNON)}, {hex(OPT.get('tbits', TBITS) << 16 | 1)}")
        A(f"s_mul_i32 {s(sTO)}, {s(sTO)}, {TPG}")
        A(f"s_bfe_u32 {s(sGO)}, {s(sNON)}, {hex(RBITS << 16 | CSH)}")
        A(f"s_mul_i32 {s(sGO)}, {s(sGO)}, {GPG}")
        add64(A, sTAB, sTAB, s(sTO))
        A(f"v_add_u32 {v(vPFA)}, {s(sTO)}, {v(vPFA)}")
        A(f"v_add_u32 {v(vGA)}, {s(sGO)}, {v(vGA)}")
        A(f"v_add_u32 {v(vF2A)}, {s(sGO)}, {v(vF2A)}")
    vL, vONE, vEIGHT, vZ = 1, 2, 3, 4
    T = [[8, 12], [16, 20]]; H = [[24, 28], [32, 36]]
    P, S, AA, DEN, NUM, XA = 40, 44, 48, 52, 56, 60
    LB = [[64, 70], [76, 82]]
    AE = [88, 92]; IDX = 96; IDM = 100; CB = 102
    vIA, vEA, vEI, vPTR, vZA, vEVB = 104, 105, 106, 107, 108, 109
    vB15, vG4, vGW, vGA, vRB = 110, 111, 112, 114, 115
    vX = 116; vPFA = 119
    vOUT, vDN, vXU, vXL, vNSA, vXA_, vSID, vNB = 120, 121, 122, 123, 124, 125, 126, 127
    vPTA = 109
    vF2A, vF2, vPFD, vL8 = 109, 88, 117, 93
    RB = lambda j: 8 + 4 * j
    SD = [66, 67, 68, 69, 72, 73, 74, 75, 78, 79, 80, 81]
    A.c("first cache line: argument loads and a prefetch of the whole code into L2 (16 bytes per thread)")
    A(f"s_memrealtime {s(sRT,2)}")
    A("s_load_dwordx16 s[4:19], s[0:1], 0")
    A("s_load_dwordx8 s[20:27], s[0:1], 64")
    A(f"s_getpc_b64 {s(sP1,2)}")
    A.lab("L_pc")
    A("v_lshlrev_b32 v63, 4, v0")
    A("v_min_u32 v8, L_end-L_pc, v63")
    A(f"global_load_dword v118, v8, {s(sP1,2)}")
    A(f"s_cmpk_ge_u32 s2, {NC}")
    A("s_cbranch_scc1 L_end")
    A(f"v_mov_b64 {v(vZ,2)}, 0")
    A(f"v_mov_b64 {v(vZ+2,2)}, 0")
    A(f"ds_write_b128 v63, {v(vZ,4)}")
    A(f"s_mul_i32 s3, s2, {CE*4}")
    A("v_cmp_gt_u32 vcc, 320, v0")
    A("s_cbranch_vccz L_roleG")

    vD, vS, vE, vBA, vR = 12, 16, 20, 28, 8
    vCA, vSUM, vINC, vSTA = 34, 36, 37, 38
    A(f"v_min_u32 v63, {(CE-4)*4}, v63")
    A("v_add_u32 v63, s3, v63")
    A("v_lshlrev_b32 v62, 1, v63")
    A("s_setprio 3")
    A("s_waitcnt lgkmcnt(0)")
    A(f"global_load_dwordx4 {v(vD,4)}, v63, {s(sDST,2)} {EF}")
    TF = OPT.get('tf', 0)
    def se_loads(a):
        A(f"global_load_dwordx4 {v(vS,4)}, {a}, {s(sSRC,2)} {EF}")
        A(f"global_load_dwordx4 {v(vE,4)}, v62, {s(sE,2)} {EF}")
        A(f"global_load_dwordx4 {v(vE+4,4)}, v62, {s(sE,2)} offset:16 {EF}")
    if not TF: se_loads("v63")
    else: A("v_mov_b32 v60, v63")
    A.stamp('pIss')
    def common():
        if diag: A(f"s_memtime {s(sST,2)}")
        if diag == 3: A(f"s_mov_b32 {s(sST+2)}, 0")
        A("v_lshrrev_b32 v10, 6, v0")
        A(f"v_and_b32 {v(vL)}, 63, v0")
        A(f"v_readfirstlane_b32 {s(sWAVE)}, v10")
        A(f"v_mov_b32 {v(vONE)}, 1")
        A.c("workgroups that share an XCD under round-robin placement get one slice and adjacent buckets")
        A(f"s_and_b32 {s(sSL)}, s2, 1")
        A(f"s_bfe_u32 {s(sT0)}, s2, 0x20001")
        A(f"s_lshl_b32 {s(sT0)}, {s(sT0)}, 5")
        A(f"s_lshr_b32 {s(sBKT)}, s2, 3")
        A(f"s_add_u32 {s(sBKT)}, {s(sBKT)}, {s(sT0)}")
        A(f"s_mul_i32 {s(sT0)}, {s(sBKT)}, 625")
        A(f"s_add_u32 {s(sROW)}, {s(sT0)}, 7")
        A(f"s_add_u32 {s(sSZ)}, {s(sT0)}, 632")
        A(f"s_lshr_b32 {s(sROW)}, {s(sROW)}, 3")
        A(f"s_lshr_b32 {s(sSZ)}, {s(sSZ)}, 3")
        A(f"s_sub_u32 {s(sSZ)}, {s(sSZ)}, {s(sROW)}")
        A(f"s_lshl_b32 {s(sROW)}, {s(sROW)}, 8")
        A(f"v_and_b32 {v(vB15)}, 15, v0")
        A(f"v_bfe_u32 {v(vG4)}, v0, 4, 2")
    A("s_barrier")
    common()
    A(f"v_lshlrev_b32 {v(vL8)}, 3, {v(vL)}")
    if TF:
        lds_wait(A, vZ, 32, M_XI if TF == 1 else M_WI, 5 if TF == 1 else 4, "tf")
        se_loads("v60")
    if True:
        A.c("bring this workgroup's hand-off lines on chip (no valid tag yet) long before anyone polls them")
        A(f"s_mul_i32 {s(sT0)}, s2, {GSTR}")
        A(f"s_lshl_b32 {s(sT1)}, {s(sWAVE)}, 8")
        A(f"s_add_u32 {s(sT0)}, {s(sT0)}, {s(sT1)}")
        A(f"s_add_u32 {s(sT0)}, {s(sT0)}, {OFF_G}")
        A(f"s_mul_i32 {s(sT1)}, {s(sSL)}, {NB}")
        A(f"s_add_u32 {s(sT1)}, {s(sT1)}, {s(sBKT)}")
        A(f"s_lshl_b32 {s(sT1)}, {s(sT1)}, 7")
        A(f"s_add_u32 {s(sT1)}, {s(sT1)}, {OFF_F2}")
        A(f"s_cmp_eq_u32 {s(sWAVE)}, 4")
        A(f"s_cselect_b32 {s(sT0)}, {s(sT1)}, {s(sT0)}")
        A(f"s_bfe_u32 {s(sT1)}, {s(sRT)}, {hex(RBITS << 16 | CSH)}")
        A(f"s_mul_i32 {s(sT1)}, {s(sT1)}, {GPG}")
        A(f"s_add_u32 {s(sT0)}, {s(sT0)}, {s(sT1)}")
        A(f"s_cmp_eq_u32 {s(sWAVE)}, 4")
        A(f"v_lshl_add_u32 v61, {v(vL)}, 4, {s(sT0)}")
        A("s_cselect_b64 exec, 0xff, 0xffff" if False else "s_cselect_b32 exec_lo, 0xff, -1")
        A("s_and_b64 exec, exec, 0xffff")
        A(f"global_store_dwordx4 v61, {v(vZ,4)}, {s(sWS,2)} sc1")
        A("s_mov_b64 exec, -1")
    A.c("thread 312 holds edges 1246..1249: its first two belong to thread 311")
    A(f"v_cmp_gt_u32 {s(sEX,2)}, {s(sT0)}, v0".replace(s(sT0), "s3") if False else "s_movk_i32 s3, 312")
    A(f"v_cmp_gt_u32 {s(sEX,2)}, s3, v0")
    A(f"v_cmp_ge_u32 {s(sP1,2)}, s3, v0")
    A(f"s_movk_i32 {s(sT0)}, 625")
    A(f"s_mov_b32 {s(sT1)}, {L_NS}")
    A(f"s_mul_i32 s3, {s(sWAVE)}, 3072")
    A(f"v_lshl_add_u32 v56, {v(vL)}, 4, s3")
    A(f"v_add_u32 v57, {L_NS}, v56")
    A(f"s_bfe_u32 s3, {s(sRT)}, {hex(RBITS << 16 | CSH)}")
    A("v_mov_b32 v32, s3")
    A(f"s_cmp_eq_u32 {s(sWAVE)}, 0")
    A("s_cselect_b64 exec, 1, 0")
    A(f"ds_write_b32 {v(vZ)}, v32 offset:{M_PG}")
    A("s_mov_b64 exec, -1")
    A(f"s_waitcnt vmcnt({4})")
    A.stamp('pDst')
    PM = lambda k: s(sEX if k < 2 else sP1, 2)
    for k in range(4): A(f"v_mul_u32_u24 {v(40+k)}, 107375, {v(vD+k)}")
    for k in range(4): A(f"v_lshrrev_b32 {v(40+k)}, 23, {v(40+k)}")
    for k in range(4):
        A(f"v_lshlrev_b32 {v(vBA+k)}, 2, {v(40+k)}")
    for k in range(4):
        if k % 2 == 0: A(f"s_mov_b64 exec, {PM(k)}")
        A(f"ds_add_rtn_u32 {v(vR+k)}, {v(vBA+k)}, {v(vONE)} offset:{L_CNT1}")
    A("s_mov_b64 exec, -1")
    def dstl():
        for k in range(4): A(f"v_mad_u32_u24 {v(40+k)}, {v(40+k)}, {s(sT0)}, 7")
        for k in range(4): A(f"v_lshrrev_b32 {v(40+k)}, 3, {v(40+k)}")
        for k in range(4): A(f"v_sub_u32 {v(vD+k)}, {v(vD+k)}, {v(40+k)}")
    A("s_waitcnt lgkmcnt(0)")
    A.stamp('pAt')
    lds_sync2(A, vZ, vONE, 32, M_P1, 5, "p1", [f"ds_read_b64 {v(vCA,2)}, {v(vL8)} offset:{L_CNT1}", f"ds_read_b32 v33, {v(vZ)} offset:{M_PG}"], dstl)
    A.stamp('pB1')
    A(f"v_add_u32 {v(vSUM)}, {v(vCA)}, {v(vCA+1)}")
    A(f"v_add_u32 {v(vINC)}, {v(vCA)}, {v(vCA+1)}")
    wave_scan(A, vINC)
    A(f"v_sub_u32 {v(vSTA)}, {v(vINC)}, {v(vSUM)}")
    A(f"v_add_u32 {v(vSTA+1)}, {v(vSTA)}, {v(vCA)}")
    A(f"ds_write_b64 {v(vL8)}, {v(vSTA,2)} offset:{L_ST1}")
    for k in range(4):
        A(f"ds_read_b32 {v(40+k)}, {v(vBA+k)} offset:{L_ST1}")
    A.c("the records go to the page of this workgroup's own clock; the granules name that page")
    A(f"v_readfirstlane_b32 {s(sT2)}, v33")
    A(f"s_mul_i32 s3, s2, {RECSZ}")
    A(f"s_add_u32 s3, s3, {OFF_REC}")
    A(f"s_lshl_b32 {s(sT2)}, {s(sT2)}, 22")
    A(f"s_add_u32 s3, s3, {s(sT2)}")
    add64(A, sP0, sWS, "s3")
    A.stamp('pSn')
    A(f"s_waitcnt vmcnt({1})")
    A.stamp('pE')
    for k in range(4):
        A(f"v_lshl_or_b32 {v(vS+k)}, {v(vD+k)}, 16, {v(vS+k)}")
    for k in range(4):
        if k % 2 == 0: A(f"s_mov_b64 exec, {PM(k)}")
        A(f"s_waitcnt lgkmcnt({3+k})")
        A(f"v_add_u32 {v(40+k)}, {v(40+k)}, {v(vR+k)}")
        A(f"v_mad_u32_u24 {v(40+k)}, {v(40+k)}, 12, {s(sT1)}")
        A(f"ds_write2_b32 {v(40+k)}, {v(vE+2*k)}, {v(vE+2*k+1)} offset0:0 offset1:1")
        A(f"ds_write_b32 {v(40+k)}, {v(vS+k)} offset:8")
    A("s_mov_b64 exec, -1")
    A("s_waitcnt lgkmcnt(0)")
    A.stamp('pSc')
    lds_sync2(A, vZ, vONE, 32, M_P2, 5, "p2", [f"ds_read_b128 {v(44+4*k,4)}, v57 offset:{1024*k}" for k in range(3)])
    A.stamp('pB2')
    if OPT.get('dP'): A(f"s_sleep {OPT['dP']}")
    if OPT.get('pg') == 1: lds_wait(A, vZ, 32, M_WI, 4, "pg")
    if OPT.get('pg') == 2:
        A.lab("L_lw_pg")
        A(f"ds_read_b32 v32, {v(vZ)} offset:{M_G}")
        A("s_waitcnt lgkmcnt(0)")
        A("v_readfirstlane_b32 s3, v32")
        A("s_and_b32 s3, s3, 0xffff")
        A("s_cmp_eq_u32 s3, 4")
        A("s_cbranch_scc0 L_lw_pg")
    for k in range(3):
        A(f"global_store_dwordx4 v56, {v(44+4*k,4)}, {s(sP0,2)} offset:{1024*k} {SF}")
    lds_signal(A, vZ, vONE, M_CD)
    A.stamp('pOut')
    A(f"s_call_b64 {s(sLINK,2)}, L_consts")
    nonce_lds(A, vZ, 40, "p")
    rebase()
    A(f"s_mul_i32 s3, s2, {GSTR}")
    A(f"s_add_u32 s3, s3, {OFF_G}")
    A(f"s_add_u32 s3, s3, {s(sGO)}")
    add64(A, sP0, sWS, "s3")
    A(f"v_lshl_or_b32 v58, {v(vCA)}, 11, {v(vSTA)}")
    A(f"v_lshl_or_b32 v60, {v(vCA+1)}, 11, {v(vSTA+1)}")
    A(f"v_lshlrev_b32 v56, 4, {v(vL)}")
    A("v_lshl_or_b32 v58, v33, 22, v58")
    A("v_lshl_or_b32 v60, v33, 22, v60")
    A(f"v_or_b32 v58, {s(sNON+1)}, v58")
    A(f"v_or_b32 v60, {s(sNON+1)}, v60")
    A(f"v_mov_b32 v59, {s(sNON)}")
    A(f"v_mov_b32 v61, {s(sNON)}")
    A("s_mov_b64 exec, 1")
    A("s_waitcnt vmcnt(0)")
    A.stamp('pDrain')
    A(f"ds_add_rtn_u32 v42, {v(vZ)}, {v(vONE)} offset:{M_CTRA}")
    A("s_mov_b64 exec, -1")
    A("s_waitcnt lgkmcnt(0)")
    A("v_readfirstlane_b32 s3, v42")
    A("s_cmp_eq_u32 s3, 4")
    A("s_cbranch_scc0 L_p_done")
    A(f"global_store_dwordx4 v56, v[58:61], {s(sP0,2)} sc1")
    A.lab("L_p_done")
    A("s_setprio 0")
    A("s_branch L_poll1")

    A.lab("L_consts")
    if diag or OPT.get('hold'): A(f"s_mov_b32 {s(sST+1)}, {s(sRT)}")
    A.c("loader index: waves 0-4 -> 0-4, waves 10-15 -> 5-10; waves 5-9 load nothing")
    A(f"s_sub_u32 s3, {s(sWAVE)}, 5")
    A(f"s_cmp_lt_u32 {s(sWAVE)}, 5")
    A(f"s_cselect_b32 {s(sT2)}, {s(sWAVE)}, s3")
    A("s_cmp_lt_u32 s3, 5")
    A(f"s_cselect_b32 {s(sT2)}, 11, {s(sT2)}")
    A.c("granule of chunk c = 24*loader + 4(l&15) + (l>>4), lanes with (l&15) < 6")
    A(f"s_mul_i32 s3, {s(sT2)}, {4*NJ}")
    A(f"v_add_u32 v64, s3, {v(vG4)}")
    A(f"v_lshl_add_u32 v65, {v(vB15)}, 2, v64")
    A(f"v_cmp_gt_u32 vcc, {NC}, v65")
    A(f"s_mov_b32 {s(sEX)}, {hex(((1 << NJ) - 1) * 0x10001)}")
    A(f"s_mov_b32 {s(sEX+1)}, {s(sEX)}")
    A(f"s_and_b64 {s(sEX,2)}, {s(sEX,2)}, vcc")
    A(f"v_mul_u32_u24 {v(vGA)}, {GSTR}, v65")
    A(f"s_lshl_b32 {s(sT0)}, {s(sBKT)}, 3")
    A(f"s_add_u32 {s(sT0)}, {s(sT0)}, {OFF_G}")
    A(f"v_add_u32 {v(vGA)}, {s(sT0)}, {v(vGA)}")
    A(f"v_mov_b32 {v(vGW)}, 0")
    A(f"v_mul_u32_u24 {v(vRB)}, {RECSZ}, v64")
    A(f"v_mad_u32_u24 {v(vRB)}, {v(vB15)}, 12, {v(vRB)}")
    add64(A, sREC, sWS, OFF_REC)
    A(f"s_mov_b32 {s(sREC+2)}, {RPG << RBITS}")
    A(f"s_mov_b32 {s(sREC+3)}, 0x20000")
    A(f"s_mul_i32 {s(sT1)}, {s(sSL)}, {TS}")
    add64(A, sTAB, sWS, s(sT1))
    A(f"s_or_b32 {s(sTAB+1)}, {s(sTAB+1)}, {256<<16}")
    A(f"s_mov_b32 {s(sTAB+2)}, {OPT.get('nrows', NROWS)}")
    A(f"s_mov_b32 {s(sTAB+3)}, 0x20000")
    for j in range(1, NJ): A(f"s_mov_b32 {s(sJ+j-1)}, {j*4*RECSZ}")
    A(f"s_mov_b32 {s(sLO)}, 0")
    A(f"s_mov_b32 {s(sMODE)}, 0")
    A(f"s_mov_b64 {s(sWM,2)}, -1")
    A.c("table flag f = 12*loader + l (l < 12); prefetch share: block 12*loader + l%12, line 5k + l/12")
    A(f"s_mul_i32 s3, {s(sT2)}, 12")
    A(f"v_add_u32 v64, s3, {v(vL)}")
    A(f"v_cmp_gt_u32 vcc, {NB}, v64")
    A(f"s_and_b64 {s(sF2M,2)}, vcc, 0xfff")
    A(f"s_mul_i32 {s(sT0)}, {s(sSL)}, {NB*128}")
    A(f"s_add_u32 {s(sT0)}, {s(sT0)}, {OFF_F2}")
    A(f"v_lshl_add_u32 {v(vF2A)}, v64, 7, {s(sT0)}")
    A(f"v_mul_u32_u24 v65, 43, {v(vL)}")
    A("v_lshrrev_b32 v65, 9, v65")
    A("v_mul_u32_u24 v66, 12, v65")
    A("v_sub_u32 v64, v64, v66")
    A(f"v_cmp_gt_u32 vcc, {NB}, v64")
    if OPT.get('pfm'):
        A(f"s_mov_b64 {s(sPFM,2)}, {hex(((1 << OPT['pfm']) - 1) * 0x1001)}")
    else:
        A(f"s_bfm_b64 {s(sPFM,2)}, {12*PF}, 0")
    A(f"s_and_b64 {s(sPFM,2)}, {s(sPFM,2)}, vcc")
    A("v_mul_u32_u24 v64, 625, v64")
    A("v_add_u32 v64, 7, v64")
    A("v_lshrrev_b32 v64, 3, v64")
    A("v_lshlrev_b32 v64, 8, v64")
    A(f"v_add_u32 v64, {s(sT1)}, v64")
    A("s_lshr_b32 s3, s2, 3")
    A("s_mul_i32 s3, s3, 5")
    if OPT.get('pfrow', 1): A("s_and_b32 s3, s3, -2")
    A("v_add_u32 v65, s3, v65")
    A(f"v_lshl_add_u32 {v(vPFA)}, v65, 7, v64")
    A(f"v_lshlrev_b32 {v(vL8)}, 3, {v(vL)}")
    A.c("matrix fragments: 4x4 identity, its block-diagonal form, the additive constant")
    A(f"v_and_b32 v64, 1, {v(vL)}")
    A("v_lshlrev_b32 v64, 4, v64")
    A("v_mov_b32 v65, 0x3f80")
    A("v_lshlrev_b32 v64, v64, v65")
    A(f"v_and_b32 v65, 2, {v(vL)}")
    A("v_cmp_eq_u32 vcc, 0, v65")
    A(f"v_bfe_u32 v66, {v(vL)}, 2, 2")
    A(f"v_cmp_eq_u32 {s(sP1,2)}, v66, {v(vG4)}")
    A(f"v_cndmask_b32 {v(IDM)}, 0, v64, vcc")
    A(f"v_cndmask_b32 {v(IDM+1)}, v64, 0, vcc")
    A(f"v_and_b32 v65, 3, {v(vL)}")
    for x in AE:
        A(f"v_cndmask_b32 {v(x+2)}, 0, {v(IDM)}, {s(sP1,2)}")
        A(f"v_cndmask_b32 {v(x+3)}, 0, {v(IDM+1)}, {s(sP1,2)}")
    A(f"v_cmp_eq_u32 vcc, v65, {v(vG4)}")
    A(f"v_mov_b32 {v(CB)}, {hex(CBF | CBF << 16)}")
    A(f"v_mov_b32 {v(CB+1)}, {hex(CBF | CBF << 16)}")
    A(f"v_cndmask_b32 {v(vEI)}, 0, 32, vcc")
    A(f"v_lshlrev_b32 {v(IDX+1)}, 4, {v(vB15)}")
    A(f"v_lshlrev_b32 {v(IDX+3)}, 4, {v(vB15)}")
    A(f"v_mov_b32 {v(vZA)}, {L_ZERO}")
    A(f"v_mov_b32 {v(vEIGHT)}, 8")
    A.c("addresses for the end of the streams and for the output pass")
    A(f"s_lshl_b32 {s(sT0)}, {s(sWAVE)}, 2")
    A(f"v_add_u32 {v(vSID)}, {s(sT0)}, {v(vG4)}")
    A(f"v_mul_u32_u24 {v(vXA_)}, {XSTR}, {v(vSID)}")
    A(f"v_lshl_add_u32 {v(vXA_)}, {v(vB15)}, 2, {v(vXA_)}")
    A(f"v_add_u32 {v(vXA_)}, {L_EXT}, {v(vXA_)}")
    A(f"v_lshlrev_b32 {v(vNB)}, 2, {v(vB15)}")
    A(f"v_add_u32 {v(vNB)}, {L_NS-NSTR}, {v(vNB)}")
    A.c("output pass: thread = (node 8w + (l>>3), 16-byte piece o = l&7 = 2i + h)")
    A.c("quads of lanes are dealt so that every 16-lane ds_read_b128 group covers two whole nodes")
    A(f"v_and_b32 v64, 28, {v(vL)}")
    A("v_mov_b32 v65, 0x31130220")
    A("v_bfe_u32 v66, v65, v64, 2")
    A(f"v_lshrrev_b32 v64, 5, {v(vL)}")
    A("v_lshl_add_u32 v66, v64, 2, v66")
    A(f"s_lshl_b32 {s(sT0)}, {s(sWAVE)}, 3")
    A(f"v_add_u32 v66, {s(sT0)}, v66")
    A(f"v_bfe_u32 v64, {v(vL)}, 3, 1")
    A(f"v_and_b32 v67, 3, {v(vL)}")
    A("v_lshl_add_u32 v67, v64, 2, v67")
    A(f"v_cmp_gt_u32 vcc, {s(sSZ)}, v66")
    A(f"s_cmp_lt_u32 {s(sWAVE)}, 10")
    A("s_cbranch_scc0 L_c_noom")
    A(f"s_mov_b64 {s(sOM,2)}, vcc")
    A.lab("L_c_noom")
    A("v_lshlrev_b32 v68, 4, v67")
    A("v_lshl_add_u32 v68, v66, 8, v68")
    A(f"s_lshl_b32 {s(sT1)}, {s(sSL)}, 7")
    A(f"s_add_u32 {s(sT0)}, {s(sROW)}, {s(sT1)}")
    A(f"v_add_u32 {v(vOUT)}, {s(sT0)}, v68")
    A(f"v_mul_u32_u24 {v(vNSA)}, {NSTR}, v66")
    A(f"v_add_u32 {v(vNSA)}, {L_NS}, {v(vNSA)}")
    A(f"v_lshl_add_u32 {v(vDN)}, v67, 5, {v(vNSA)}")
    A("v_lshlrev_b32 v68, 5, v67")
    A(f"v_add_u32 {v(vXL)}, {L_EXT}, v68")
    A("v_and_b32 v68, 1, v66")
    A("v_lshl_or_b32 v68, v67, 1, v68")
    A("v_lshlrev_b32 v68, 4, v68")
    A("v_lshl_add_u32 v68, v66, 8, v68")
    A(f"v_add_u32 {v(vXU)}, {L_XS}, v68")
    A(f"s_mov_b64 {s(sDONE,2)}, 0")
    for j in range(2 * NJ): A(f"s_mov_b64 {s(sMK+2*j,2)}, 0")
    A(f"s_setpc_b64 {s(sLINK,2)}")

    A.lab("L_roleG")
    common()
    A(f"s_mov_b32 {s(sSRD+3)}, 0x20000")
    A(f"s_cmp_ge_u32 {s(sWAVE)}, 10")
    A("s_cbranch_scc1 L_roleD")
    A.c("role T: stage the node tile's x rows, lane offset r*256 + ((j^r)*16)")
    A(f"v_xor_b32 v10, {v(vB15)}, {v(vG4)}")
    A("v_lshlrev_b32 v10, 4, v10")
    A(f"v_lshl_add_u32 v11, {v(vG4)}, 8, v10")
    A(f"s_mov_b32 {s(sSRD+2)}, {N*256}")
    A(f"s_sub_u32 {s(sT0)}, {s(sWAVE)}, 5")
    A(f"s_lshl_b32 {s(sT0)}, {s(sT0)}, 12")
    A(f"s_add_u32 {s(sT1)}, {s(sROW)}, {s(sT0)}")
    A(f"s_add_u32 m0, {s(sT0)}, {L_XS}")
    for u in range(1, 4): A(f"v_xor_b32 {v(11+u)}, {u<<6}, v11")
    A("s_waitcnt lgkmcnt(0)")
    A(f"s_mov_b32 {s(sSRD)}, {s(sX)}")
    A(f"s_mov_b32 {s(sSRD+1)}, {s(sX+1)}")
    A("s_barrier")
    if OPT.get('gx', 1): lds_wait(A, vZ, 15, M_P1, OPT.get('gx', 1), "gx")
    if OPT.get('gxw'): lds_wait(A, vZ, 15, M_WI, 4, "gxw")
    for u in range(4):
        if u:
            A("s_add_u32 m0, m0, 1024")
            A(f"s_add_u32 {s(sT1)}, {s(sT1)}, 1024")
        A(f"buffer_load_dwordx4 {v(11+u)}, {s(sSRD,4)}, {s(sT1)} offen {XF_} lds")
    lds_signal(A, vZ, vONE, M_XI)
    A(f"s_call_b64 {s(sLINK,2)}, L_consts")
    vA, vACC, vBR, vTA = 16, 32, 64, 96
    TA = [96, 98, 104, 105]
    RING = [64, 68, 72, 76, 80, 84, 12][:OPT.get('nr', 7)]
    NR = len(RING)
    A(f"s_sub_u32 {s(sT2)}, {s(sWAVE)}, 5")
    A(f"s_lshl_b32 {s(sT4)}, {s(sT2)}, 12")
    A(f"s_add_u32 {s(sT4)}, {s(sT4)}, {L_XS}")
    A.c("A fragments: XS + nt*4096 + n*256 + (((4ks+kg) ^ n)*16)")
    A(f"v_lshl_add_u32 v10, {v(vB15)}, 8, v10")
    for ks in range(4):
        A(f"v_xor_b32 {v(12+ks)}, {ks<<6}, v10")
        A(f"v_add_u32 {v(12+ks)}, {s(sT4)}, {v(12+ks)}")
    A.c("B fragments (transposing reads): (8kg + r)*128 + c*8 + ((i ^ s)*32), s = ((r>>1)&1) | ((kg&1)<<1)")
    A(f"v_bfe_u32 v8, {v(vL)}, 2, 2")
    A(f"v_lshl_add_u32 v9, {v(vG4)}, 3, v8")
    A("v_lshlrev_b32 v9, 7, v9")
    A(f"v_and_b32 v10, 3, {v(vL)}")
    A("v_lshl_add_u32 v9, v10, 3, v9")
    A(f"v_add_u32 v9, {L_W}, v9")
    A("v_lshrrev_b32 v8, 1, v8")
    A(f"v_and_b32 v10, 1, {v(vG4)}")
    A("v_lshl_or_b32 v8, v10, 1, v8")
    for i in range(4):
        A(f"v_xor_b32 v10, {i}, v8")
        A(f"v_lshl_add_u32 {v(TA[i])}, v10, 5, v9")
    A(f"s_mul_i32 {s(sT0)}, {s(sSL)}, {TS}")
    A(f"s_add_u32 {s(sT0)}, {s(sT0)}, {s(sROW)}")
    A(f"s_lshl_b32 {s(sT1)}, {s(sT2)}, 12")
    A(f"s_add_u32 {s(sT0)}, {s(sT0)}, {s(sT1)}")
    A(f"s_mov_b32 {s(sP0)}, {s(sT0)}")
    A(f"v_lshlrev_b32 v8, 4, {v(vB15)}")
    A(f"v_lshl_add_u32 v8, {v(vG4)}, 10, v8")
    A(f"s_mov_b32 {s(sP1)}, {hex(NL2E)}")
    A(f"s_mov_b32 {s(sT3)}, 0")
    A("s_setprio 2")
    A("s_waitcnt vmcnt(0)")
    A.stamp('gX')
    for ks in range(4):
        A(f"ds_read_b128 {v(vA+4*ks,4)}, {v(12+ks)}")
    A.lab("L_lw_g")
    A(f"ds_read_b32 v11, {v(vZ)} offset:{M_G}")
    A("s_waitcnt lgkmcnt(0)")
    A("v_readfirstlane_b32 s3, v11")
    A("s_and_b32 s3, s3, 0xffff")
    A("s_cmp_eq_u32 s3, 4")
    A("s_cbranch_scc0 L_lw_g")
    A.stamp('gB3')
    A.lab("L_gemm")
    def rd(n):
        ks, q = n >> 3, n & 7
        b = RING[n % NR]
        off = ks * 4096 + (q >> 2) * 16384
        A(f"ds_read_b64_tr_b16 {v(b,2)}, {v(TA[q&3])} offset:{off}")
        A(f"ds_read_b64_tr_b16 {v(b+2,2)}, {v(TA[q&3])} offset:{off+512}")
    for n in range(NR): rd(n)
    for n in range(32):
        ks, q = n >> 3, n & 7
        if n % 2 == 0: A(f"s_waitcnt lgkmcnt({2*max(0, min(NR - 2, 30 - n))})")
        b = RING[n % NR]
        c = "0" if ks == 0 else v(vACC + 4 * q, 4)
        A(f"v_mfma_f32_16x16x32_bf16 {v(vACC+4*q,4)}, {v(vA+4*ks,4)}, {v(b,4)}, {c}")
        if n + NR < 32: rd(n + NR)
    A(f"s_cmp_eq_u32 {s(sT3)}, 0")
    A("s_cbranch_scc0 L_g_xa")
    A.stamp('gMM')
    if OPT.get('pgate', 3) == 2: lds_signal(A, vZ, vONE, M_TM)
    nonce_lds(A, vZ, 10, "t")
    rebase()
    A(f"s_add_u32 {s(sP0)}, {s(sP0)}, {s(sTO)}")
    add64(A, sP0, sWS, s(sP0))
    if OPT.get('dT'): A(f"s_sleep {OPT['dT']}")
    A.c("table rows: [XB' x4 | HV x4] per channel group")
    for i in range(4): A(f"v_add_u32 {v(TA[i])}, 32768, {v(TA[i])}")
    A(f"s_mov_b32 {s(sT3)}, 1")
    for ip in range(4):
        o = vBR + 4 * ip
        for q in range(4):
            A(f"v_mul_f32 {v(vACC+4*q+ip)}, {s(sP1)}, {v(vACC+4*q+ip)}")
        for d in (2, 3, 0, 1):
            A(f"v_cvt_pk_bf16_f32 {v(o+d)}, {v(vACC+8*d+ip)}, {v(vACC+8*d+4+ip)}")
        if ip >= 2:
            A.c("rows past the end of the bucket belong to the next one")
            A(f"s_lshl_b32 {s(sT0)}, {s(sT2)}, 4")
            A(f"s_add_u32 {s(sT0)}, {s(sT0)}, {12+ip}")
            A(f"s_cmp_lt_u32 {s(sT0)}, {s(sSZ)}")
            A("s_cselect_b32 exec_hi, -1, 0xffff")
        A(f"global_store_dwordx4 v8, {v(o,4)}, {s(sP0,2)} offset:{256*ip} {SF}")
        if ip >= 2: A("s_mov_b32 exec_hi, -1")
    lds_signal(A, vZ, vONE, M_TS)
    A("s_setprio 1")
    A.c("once the table stores have drained the last wave raises the table flag")
    A(f"s_mul_i32 {s(sT0)}, {s(sSL)}, {NB}")
    A(f"s_add_u32 {s(sT0)}, {s(sT0)}, {s(sBKT)}")
    A(f"s_lshl_b32 {s(sT0)}, {s(sT0)}, 7")
    A(f"s_add_u32 {s(sT0)}, {s(sT0)}, {OFF_F2}")
    A(f"s_add_u32 {s(sT0)}, {s(sT0)}, {s(sGO)}")
    A(f"v_mov_b32 v10, {s(sT0)}")
    A(f"v_mov_b32 v12, {s(sNON)}")
    A(f"v_mov_b32 v13, {s(sNON+1)}")
    A("s_mov_b64 exec, 1")
    A("s_waitcnt vmcnt(0)")
    A.stamp('tDrain')
    A(f"ds_add_rtn_u32 v11, {v(vZ)}, {v(vONE)} offset:{M_CTRB}")
    A("s_waitcnt lgkmcnt(0)")
    A("v_readfirstlane_b32 s3, v11")
    A("s_cmp_eq_u32 s3, 4")
    A("s_cbranch_scc0 L_t_nf")
    lds_wait(A, vZ, 11, M_CTRA, 5, "ta")
    A(f"global_store_dwordx2 v10, v[12:13], {s(sWS,2)} sc1")
    A.lab("L_t_nf")
    if OPT.get('own', 0):
        A.c("the rows just written are needed on this die too: pull them into its L2")
        A("s_mov_b64 exec, 0xffffffff")
        A(f"v_lshlrev_b32 v10, 7, {v(vL)}")
        A(f"global_load_dword {v(vPFD)}, v10, {s(sP0,2)} sc1")
    A("s_mov_b64 exec, -1")
    lds_wait(A, vZ, 11, M_CD, 5, "cd")
    lds_wait(A, vZ, 11, M_G, 0x20004, "g2")
    A.stamp('gW2')
    A("s_branch L_gemm")
    A.lab("L_g_xa")
    A.stamp('gM2')
    A.c("xa' = -log2e*(x@w_a) - SHIFT into the node structs, xu into this tile's x stage (swizzled)")
    A(f"s_mul_i32 {s(sT0)}, {s(sT2)}, {16*NSTR}")
    A(f"s_add_u32 {s(sT0)}, {s(sT0)}, {L_NS}")
    A(f"v_mul_u32_u24 v10, {4*NSTR}, {v(vG4)}")
    A(f"v_add3_u32 v10, v10, {v(vNB)}, {s(sT0)}")
    A(f"v_add_u32 v10, {NSTR-L_NS}, v10")
    A(f"v_mov_b32 v11, {hex(f2u(-float(SHIFT)))}")
    A(f"v_lshlrev_b32 v12, 2, {v(vB15)}")
    A(f"v_lshl_add_u32 v12, {v(vG4)}, 10, v12")
    A(f"v_add_u32 v12, {s(sT4)}, v12")
    for k in range(16): A(f"v_fma_f32 {v(vACC+k)}, {v(vACC+k)}, {s(sP1)}, v11")
    for ip in range(4):
        if ip: A(f"v_add_u32 v10, {NSTR}, v10")
        for i in (0, 2):
            A(f"ds_write2_b32 v10, {v(vACC+4*i+ip)}, {v(vACC+4*i+4+ip)} offset0:{16*i} offset1:{16*i+16}")
    A(f"v_mul_u32_u24 v11, {NSTR}, {v(vB15)}")
    A(f"v_add_u32 v11, {s(sT0)}, v11")
    A(f"ds_write_b64 v11, {v(vZ,2)} offset:{NCNT}")
    for ip in range(4):
        if ip == 1: A(f"v_xor_b32 v13, 16, v12")
        a = "v13" if ip & 1 else "v12"
        for i in (0, 2):
            A(f"ds_write2_b32 {a}, {v(vACC+16+4*i+ip)}, {v(vACC+20+4*i+ip)} offset0:{64*ip+16*i} offset1:{64*ip+16*i+16}")
    A("s_setprio 0")
    A("s_waitcnt lgkmcnt(0)")
    for bb in LB:
        for x in bb:
            A(f"ds_read_b64 {v(x,2)}, {v(vL8)} offset:{L_WC}")
    A("s_branch L_ranked")

    A.lab("L_roleD")
    A.c("role D: weight staging, lane offset r8*256 + ((j^(2*((r8>>1)&1)))*16) + slice*128")
    A(f"v_lshrrev_b32 v11, 3, {v(vL)}")
    A(f"v_and_b32 v12, 7, {v(vL)}")
    A("v_and_b32 v13, 2, v11")
    A("v_xor_b32 v12, v12, v13")
    A("v_lshlrev_b32 v12, 4, v12")
    A("v_lshl_add_u32 v12, v11, 8, v12")
    A(f"s_lshl_b32 s3, {s(sSL)}, 7")
    A("v_add_u32 v12, s3, v12")
    A(f"s_lshr_b32 {s(sT4)}, s2, 3")
    A(f"s_and_b32 {s(sT0)}, {s(sT4)}, 1")
    A(f"s_lshl_b32 {s(sT0)}, {s(sT0)}, 6")
    A(f"v_xor_b32 v12, {s(sT0)}, v12")
    A("v_xor_b32 v13, 64, v12")
    A(f"s_mov_b32 {s(sSRD+2)}, 32768")
    A("s_waitcnt lgkmcnt(0)")
    A(f"s_cmp_ge_u32 {s(sWAVE)}, 12")
    A(f"s_cselect_b64 {s(sSRD,2)}, {s(sWV,2)}, {s(sWB,2)}")
    A(f"s_cmp_ge_u32 {s(sWAVE)}, 14")
    A(f"s_cselect_b64 {s(sSRD,2)}, {s(sWA,2)}, {s(sSRD,2)}")
    A("s_cbranch_scc0 L_d_b0")
    A(f"s_cmp_eq_u32 {s(sWAVE)}, 15")
    A("s_cbranch_scc1 L_d_15")
    A.c("wave 14: 16 of the slice's 512 weight lines into L2 (row 4k + (l&3), matrix (l>>2)&3), and w_c")
    A(f"s_and_b32 {s(sT0)}, {s(sT4)}, 31")
    A(f"s_lshl_b32 {s(sT0)}, {s(sT0)}, 10")
    A(f"s_add_u32 {s(sT0)}, {s(sT0)}, s3")
    A(f"v_and_b32 v16, 3, {v(vL)}")
    A(f"v_lshl_add_u32 v16, v16, 8, {s(sT0)}")
    for m, p in enumerate((sWB, sWV, sWA, sWU)):
        A(f"s_mov_b64 exec, {hex(15 << (4*m))}")
        A(f"global_load_dword v17, v16, {s(p,2)}")
    A("s_mov_b64 exec, -1")
    A(f"v_lshl_add_u32 v14, {v(vL)}, 1, s3")
    A("s_barrier")
    for j in range(4):
        A(f"global_load_ushort {v(20+j)}, v14, {s(sWC,2)} offset:{256*j}")
    A(f"s_call_b64 {s(sLINK,2)}, L_consts")
    A("s_waitcnt vmcnt(0)")
    for j in range(4):
        A(f"v_lshlrev_b32 {v(20+j)}, 16, {v(20+j)}")
    for j in range(4):
        A(f"v_mul_f32 {v(20+j)}, {hex(NL2E)}, {v(20+j)}")
    A("v_cvt_pk_bf16_f32 v20, v20, v21")
    A("v_cvt_pk_bf16_f32 v21, v22, v23")
    A(f"ds_write_b64 {v(vL8)}, v[20:21] offset:{L_WC}")
    A("s_branch L_d_late")
    A.lab("L_d_15")
    A(f"s_mov_b64 {s(sSRD,2)}, {s(sWU,2)}")
    A("s_cmp_eq_u32 s2, 0")
    A("s_cbranch_scc0 L_d_nn")
    A.c("workgroup 0 publishes the launch nonce in d_debug")

    A(f"s_or_b32 {s(sT0)}, {s(sRT)}, 1")
    A(f"s_lshl_b32 {s(sT1)}, {s(sRT+1)}, 27")
    A(f"v_mov_b32 v14, {s(sT0)}")
    A(f"v_mov_b32 v15, {s(sT1)}")
    A("s_mov_b64 exec, 1")
    A(f"global_store_dwordx2 {v(vZ)}, v[14:15], {s(sDBG,2)} sc1")
    A("s_mov_b64 exec, -1")
    A.lab("L_d_nn")
    A("s_barrier")
    A(f"s_call_b64 {s(sLINK,2)}, L_consts")
    lds_wait(A, vZ, 11, M_P1, OPT.get('nat', 5), "n15", 1)
    if OPT.get('smem', 1):
        A.c("first look through the scalar path (this line was never read before); retries use coherent vector loads")
        A(f"s_load_dwordx2 {s(sNON,2)}, {s(sDBG,2)}, 0")
        A("s_waitcnt lgkmcnt(0)")
        A(f"v_mov_b32 v14, {s(sNON)}")
        A(f"v_mov_b32 v15, {s(sNON+1)}")
        A("s_nop 0")
        nonce_get(A, vZ, 14, "w")
        A("v_or_b32 v14, 1, v14")
    else:
        A(f"global_load_dwordx2 v[14:15], {v(vZ)}, {s(sDBG,2)} sc1")
        A("s_waitcnt vmcnt(0)")
        nonce_get(A, vZ, 14, "w")
        A("v_or_b32 v14, 1, v14")
    A(f"ds_write_b64 {v(vZ)}, v[14:15] offset:{M_NONCE}")
    A(f"s_bfe_u32 s3, {s(sNON)}, {hex(OPT.get('tbits', TBITS) << 16 | 1)}")
    A(f"s_mul_i32 s3, s3, {TPG}")
    A.c("wave 15: this workgroup's null table row, the code into L2, then the nonce")
    A(f"s_mul_i32 {s(sT0)}, {s(sSL)}, {TS}")
    A(f"s_lshl_b32 {s(sT1)}, {s(sBKT)}, 8")
    A(f"s_add_u32 {s(sT0)}, {s(sT0)}, {s(sT1)}")
    A(f"s_add_u32 {s(sT0)}, {s(sT0)}, {N*256}")
    A(f"s_add_u32 {s(sT0)}, {s(sT0)}, s3")
    A("v_mov_b32 v16, 0x50005000")
    A("v_mov_b32 v17, 0x50005000")
    A("v_mov_b32 v18, 0")
    A("v_mov_b32 v19, 0")
    A(f"v_lshl_add_u32 v20, {v(vL)}, 4, {s(sT0)}")
    A("s_mov_b64 exec, 0xffff")
    A(f"global_store_dwordx4 v20, v[16:19], {s(sWS,2)} sc1")
    A("s_mov_b64 exec, -1")
    A.lab("L_d_late")
    A.c("w_a / w_u follow the record stores")
    A(f"s_lshl_b32 {s(sT0)}, {s(sWAVE)}, 14")
    A(f"s_add_u32 {s(sT0)}, {s(sT0)}, {L_W + 32768 - (14 << 14)}")
    A(f"s_mov_b32 {s(sT1)}, 0")
    A(f"s_mov_b32 {s(sT3)}, 2")
    lds_wait(A, vZ, 11, {0: M_XI, 1: M_CD, 2: M_TS, 3: M_WI}[OPT.get('gwa', 1)], 4 if OPT.get('gwa', 1) == 3 else 5, "gwa", 1)
    A("s_branch L_d_dma")
    A.lab("L_d_b0")
    A("s_barrier")
    if OPT.get('gwb', 1): A(f"s_call_b64 {s(sLINK,2)}, L_consts")
    A(f"s_sub_u32 {s(sT0)}, {s(sWAVE)}, 10")
    A(f"s_lshl_b32 {s(sT0)}, {s(sT0)}, 13")
    A(f"s_add_u32 {s(sT0)}, {s(sT0)}, {L_W}")
    A(f"s_and_b32 {s(sT1)}, {s(sWAVE)}, 1")
    A(f"s_lshl_b32 {s(sT1)}, {s(sT1)}, 14")
    A(f"s_mov_b32 {s(sT3)}, 1")
    if OPT.get('gwb', 1): lds_wait(A, vZ, 11, M_XI, 5, "gwb")
    A.lab("L_d_dma")
    A.c("each workgroup starts at a different row block so an XCD fetches all of W at once")
    A(f"s_lshr_b32 {s(sT4)}, s2, 3")
    for u in range(8):
        A(f"s_and_b32 {s(sT4)}, {s(sT4)}, 7")
        A(f"s_lshl_b32 {s(sT2)}, {s(sT4)}, 10")
        A(f"s_add_u32 m0, {s(sT0)}, {s(sT2)}")
        A(f"s_lshl1_add_u32 {s(sT2)}, {s(sT2)}, {s(sT1)}")
        A(f"buffer_load_dwordx4 {'v13' if u&1 else 'v12'}, {s(sSRD,4)}, {s(sT2)} offen lds")
        if u < 7: A(f"s_add_u32 {s(sT4)}, {s(sT4)}, 1")
    A(f"s_add_u32 {s(sT0)}, {s(sT0)}, 8192")
    A(f"s_add_u32 {s(sT1)}, {s(sT1)}, 16384")
    A(f"s_sub_u32 {s(sT3)}, {s(sT3)}, 1")
    A(f"s_cmp_lg_u32 {s(sT3)}, 0")
    A("s_cbranch_scc1 L_d_dma")
    A.stamp('gIss')
    lds_signal(A, vZ, vONE, M_WI)
    if not OPT.get('gwb', 1):
        A(f"s_cmp_ge_u32 {s(sWAVE)}, 14")
        A("s_cbranch_scc1 L_d_nc")
        A(f"s_call_b64 {s(sLINK,2)}, L_consts")
        A.lab("L_d_nc")
    A(f"s_cmp_ge_u32 {s(sWAVE)}, 14")
    A("s_cselect_b32 s3, 0x10000, 1")
    A("v_mov_b32 v11, s3")
    A("s_waitcnt vmcnt(0) lgkmcnt(0)")
    A.stamp('dX')
    lds_signal(A, vZ, 11, M_G)

    def f2_check(tag, skip):
        A(f"s_mov_b64 exec, {s(sF2M,2)}")
        if tag != "b": A(f"s_cbranch_execz {skip}")
        A(f"v_cmp_ne_u32 vcc, {s(sNON)}, {v(vF2)}")
        A(f"v_cmp_ne_u32 {s(sP0,2)}, {s(sNON+1)}, {v(vF2+1)}")
        A(f"s_or_b64 vcc, vcc, {s(sP0,2)}")
        A(f"s_cbranch_scc1 {skip}")
        if PF:
            A(f"s_mov_b64 exec, {s(sPFM,2)}")
            A(f"global_load_dword {v(vPFD)}, {v(vPFA)}, {s(sWS,2)} sc1")
        A(f"s_mov_b64 {s(sF2M,2)}, 0")
    F2E = OPT.get('f2e', 3)
    A.lab("L_poll0")
    nonce_lds(A, vZ, 56, "q")
    rebase()
    A.lab("L_poll1")
    sANY = sEV
    A(f"s_mov_b32 {s(sANY)}, 0")
    A.stamp('ph2')
    lds_wait(A, vZ, 56, M_CTRA, 5, "pa", 1)
    lds_wait(A, vZ, 56, M_G, 0x20004, "pw", 1)
    for bb in LB:
        for x in bb:
            A(f"ds_read_b64 {v(x,2)}, {v(vL8)} offset:{L_WC}")
    if OPT.get('pgate', 3) == 2: lds_wait(A, vZ, 56, M_TM, OPT.get("pbn", 4), "pm")
    if OPT.get('pgate', 3) == 3: lds_wait(A, vZ, 56, M_TS, OPT.get("pbn", 5), "pm")
    if OPT.get('pgate', 3) == 1: lds_wait(A, vZ, 56, M_CTRB, OPT.get("pbn", 5), "pb", OPT.get("pbs", 1))
    A(f"s_mov_b32 {s(sSPIN)}, {SPIN}")
    if OPT.get('pdelay', 0): A(f"s_sleep {OPT.get('pdelay', 0)}")
    A(f"s_mov_b64 exec, {s(sEX,2)}")
    A(f"global_load_dwordx2 {v(vGW,2)}, {v(vGA)}, {s(sWS,2)} sc1")
    if F2E == 1:
        A(f"s_mov_b64 exec, {s(sF2M,2)}")
        A(f"global_load_dwordx2 {v(vF2,2)}, {v(vF2A)}, {s(sWS,2)} sc1")
    A("s_waitcnt vmcnt(0)")
    A.stamp('poll1')
    if OPT.get('ts') == 1: lds_signal(A, vZ, vONE, M_RI)
    A.lab("L_poll")
    A.c("segments whose granule carries this launch's tag are fetched at once")
    A(f"s_andn2_b64 exec, {s(sEX,2)}, {s(sDONE,2)}")
    A(f"v_and_b32 v56, 0xf8000000, {v(vGW)}")
    A(f"v_cmp_eq_u32 vcc, {s(sNON)}, {v(vGW+1)}")
    A(f"v_cmp_eq_u32 {s(sP0,2)}, {s(sNON+1)}, v56")
    A("s_mov_b64 exec, -1")
    A(f"s_and_b64 {s(sP0,2)}, {s(sP0,2)}, vcc")
    A("s_cbranch_scc0 L_repoll")
    A(f"s_or_b64 {s(sDONE,2)}, {s(sDONE,2)}, {s(sP0,2)}")
    A.lab("L_round")
    A(f"v_cndmask_b32 v60, 0, {v(vGW)}, {s(sP0,2)}")
    A(f"s_or_b32 {s(sT0)}, {s(sP0)}, {s(sP0+1)}")
    for j in range(NJ):
        so = s(sJ + j - 1) if j else 0
        A(f"s_and_b32 s3, {s(sT0)}, {hex(0x10001 << j)}")
        A(f"s_cbranch_scc0 L_lx{j}")
        A(f"v_mov_b32_dpp v56, v60 row_newbcast:{j} row_mask:0xf bank_mask:0xf")
        A("v_and_b32 v57, 0x7ff, v56")
        A("v_bfe_u32 v58, v56, 11, 11")
        A(f"v_add_u32 v57, {s(sLO)}, v57")
        A(f"v_subrev_u32 v58, {s(sLO)}, v58")
        A(f"v_and_b32 v56, {hex(((1 << RBITS) - 1) << 22)}, v56")
        A(f"v_mad_u32_u24 v59, v57, 12, {v(vRB)}")
        A("v_add_u32 v59, v56, v59")
        A(f"v_cmp_lt_i32 vcc, {v(vB15)}, v58")
        A("v_subrev_u32 v58, 16, v58")
        A(f"v_cmp_lt_i32 {s(sP1,2)}, {v(vB15)}, v58")
        A(f"s_and_b64 exec, vcc, {s(sWM,2)}")
        A(f"s_cbranch_execz L_ld{j}")
        A(f"buffer_load_dwordx3 {v(RB(j),3)}, v59, {s(sREC,4)}, {so} offen sc1")
        A(f"s_or_b64 {s(sMK+2*j,2)}, {s(sMK+2*j,2)}, exec")
        A(f"s_cmp_eq_u32 {s(sMODE)}, 0")
        A(f"s_cselect_b64 exec, {s(sP1,2)}, 0")
        A(f"s_cbranch_execz L_ld{j}")
        A(f"buffer_load_dwordx3 {v(RB(NJ+j),3)}, v59, {s(sREC,4)}, {so} offen offset:192 sc1")
        A(f"s_or_b64 {s(sMK+2*NJ+2*j,2)}, {s(sMK+2*NJ+2*j,2)}, exec")
        A(f"s_mov_b32 {s(sANY)}, 1")
        A.lab(f"L_ld{j}")
        A("s_mov_b64 exec, -1")
        A.lab(f"L_lx{j}")
    A.lab("L_repoll")
    if OPT.get('ts') == 2: lds_signal(A, vZ, vONE, M_RI)
    A(f"s_andn2_b64 exec, {s(sEX,2)}, {s(sDONE,2)}")
    A("s_cbranch_execz L_polled")
    A(f"s_sub_u32 {s(sSPIN)}, {s(sSPIN)}, 1")
    A("s_cbranch_scc1 L_giveup")
    if OPT.get('psleep', 8): A(f"s_sleep {OPT.get('psleep', 8)}")
    A(f"global_load_dwordx2 {v(vGW,2)}, {v(vGA)}, {s(sWS,2)} sc1")
    A("s_waitcnt vmcnt(0)")
    A("s_branch L_poll")
    A.lab("L_polled")
    A(f"s_mov_b64 exec, {s(sEX,2)}")
    A(f"v_bfe_u32 v56, {v(vGW)}, 11, 11")
    A(f"ds_max_u32 {v(vZ)}, v56 offset:{M_MAXLEN}")
    A.stamp('polled')
    if diag == 1: A(f"s_sub_u32 s101, {SPIN}, {s(sSPIN)}")
    if F2E == 1:
        f2_check("e", "L_f2eno")
        A("s_waitcnt vmcnt(1)")
        A("s_branch L_f2eyes")
        A.lab("L_f2eno")
    if F2E == 2:
        A(f"s_mov_b64 exec, {s(sF2M,2)}")
        A("s_cbranch_execz L_f2e0")
        A(f"global_load_dwordx2 {v(vF2,2)}, {v(vF2A)}, {s(sWS,2)} sc1")
        A.lab("L_f2e0")
    A("s_waitcnt vmcnt(0)")
    if F2E == 1: A.lab("L_f2eyes")
    if F2E == 2:
        f2_check("e", "L_f2eno")
        A.lab("L_f2eno")
    A.stamp('recs')
    if OPT.get('lprio', 0): A("s_setprio 1")
    A(f"s_mov_b64 exec, {s(sF2M,2)}")
    A("s_cbranch_execz L_nof2")
    A(f"global_load_dwordx2 {v(vF2,2)}, {v(vF2A)}, {s(sWS,2)} sc1")
    A.lab("L_nof2")
    def sets(name, body):
        for j in range(2 * NJ):
            if j == NJ:
                A(f"s_cmp_eq_u32 {s(sANY)}, 0")
                A(f"s_cbranch_scc1 L_{name}x")
            A(f"s_mov_b64 exec, {s(sMK+2*j,2)}")
            if j >= NJ: A(f"s_cbranch_execz L_{name}{j}")
            body(j)
            if j >= NJ: A.lab(f"L_{name}{j}")
        A.lab(f"L_{name}x")
    sets("rk", lambda j: (A(f"v_lshrrev_b32 {v(SD[j])}, 14, {v(RB(j)+2)}"),
                          A(f"ds_add_rtn_u32 {v(RB(j)+3)}, {v(SD[j])}, {v(vEIGHT)} offset:{L_CNT2}")))
    A.lab("L_ranked")
    A("s_mov_b64 exec, -1")
    A("s_waitcnt lgkmcnt(0)")
    A.stamp('rk')
    A("s_barrier")
    A.stamp('B5')
    vCA, vPA, vINC, vSUM, vSTA = 56, 58, 60, 61, 62
    A(f"s_lshl_b32 {s(sT4)}, {s(sWAVE)}, 2")
    A(f"v_mov_b32 {v(vX+2)}, {s(sT4)}")
    A(f"s_sub_u32 s3, {s(sWAVE)}, 5")
    A("s_cmp_lt_u32 s3, 5")
    A("s_cbranch_scc1 L_tscan")
    A("s_waitcnt vmcnt(0)")
    f2_check("c", "L_f2c")
    A.lab("L_f2c")
    A("s_mov_b64 exec, -1")
    if OPT.get('sp', 1): A("s_setprio 2")
    A("s_barrier")
    A.stamp('s2')
    A(f"ds_read_b32 {v(vX)}, {v(vX+2)} offset:{L_GEO}")
    sets("sr", lambda j: A(f"ds_read_b32 {v(SD[j])}, {v(SD[j])} offset:{L_ST2}"))
    if OPT.get('sp', 1): A("s_setprio 1")
    A("s_mov_b64 exec, -1")
    A("s_waitcnt lgkmcnt(0)")
    A(f"v_readfirstlane_b32 {s(sS)}, {v(vX)}")
    A.stamp('s3')
    A(f"s_bitcmp1_b32 {s(sS)}, 31")
    A("s_cbranch_scc1 L_goslow")
    sets("sw", lambda j: (A(f"v_add_u32 {v(SD[j])}, {v(SD[j])}, {v(RB(j)+3)}"),
                          A(f"v_lshrrev_b32 {v(RB(j)+3)}, 1, {v(SD[j])}"),
                          A(f"ds_write_b64 {v(SD[j])}, {v(RB(j),2)}"),
                          A(f"ds_write_b32 {v(RB(j)+3)}, {v(RB(j)+2)} offset:{L_META - L_E//2}")))
    A("s_mov_b64 exec, -1")
    if OPT.get('sp', 1): A("s_setprio 0")
    A("s_branch L_geom")
    A.lab("L_tscan")
    A.c("waves 5-9 turn the node counts into list offsets and deal the streams: wave w owns 4 streams of L pairs from pair S")
    A("s_setprio 3")
    A(f"ds_read_b64 {v(vCA,2)}, {v(vL8)} offset:{L_CNT2}")
    A(f"ds_read_b32 {v(vX)}, {v(vZ)} offset:{M_MAXLEN}")
    A(f"s_lshr_b32 {s(sT0)}, {s(sSZ)}, 1")
    A(f"s_sub_u32 {s(sT1)}, {s(sSZ)}, {s(sT0)}")
    A(f"s_bfm_b64 vcc, {s(sT1)}, 0")
    A(f"s_bfm_b64 {s(sP1,2)}, {s(sT0)}, 0")
    A("s_waitcnt lgkmcnt(1)")
    A.stamp('s1')
    A.c("counts are in units of 8 bytes; vPA = bytes of e-list per node = 16 * max(2, ceil(n/2))")
    for k in range(2): A(f"v_add_u32 {v(vPA+k)}, 8, {v(vCA+k)}")
    for k in range(2): A(f"v_and_b32 {v(vPA+k)}, -16, {v(vPA+k)}")
    for k in range(2): A(f"v_max_u32 {v(vPA+k)}, 32, {v(vPA+k)}")
    for k in range(2): A(f"v_cndmask_b32 {v(vPA+k)}, 0, {v(vPA+k)}, {s(sP1,2) if k else 'vcc'}")
    A(f"v_add_u32 {v(vINC)}, {v(vPA)}, {v(vPA+1)}")
    A(f"v_subrev_u32 {v(vSUM)}, {L_E}, {v(vINC)}")
    wave_scan(A, vINC)
    A(f"v_sub_u32 {v(vSTA)}, {v(vINC)}, {v(vSUM)}")
    A(f"v_readlane_b32 {s(sTP)}, {v(vINC)}, 63")
    A(f"v_add_u32 {v(vSTA+1)}, {v(vPA)}, {v(vSTA)}")
    A(f"ds_write_b64 {v(vL8)}, {v(vSTA,2)} offset:{L_ST2}")
    A(f"s_lshr_b32 {s(sTP)}, {s(sTP)}, 4")
    A(f"s_add_u32 {s(sT0)}, {s(sTP)}, 3")
    A(f"s_lshr_b32 {s(sT1)}, {s(sT0)}, 6")
    A(f"s_bfe_u32 {s(sT2)}, {s(sT0)}, 0x40002")
    A(f"v_min_u32 v8, {s(sT2)}, {v(vL)}")
    A(f"v_mad_u32_u24 v8, {v(vL)}, {s(sT1)}, v8")
    A(f"v_cmp_gt_u32 vcc, {s(sT2)}, {v(vL)}")
    A(f"v_mov_b32 v9, {s(sT1)}")
    A("s_waitcnt lgkmcnt(1)")
    A(f"v_readfirstlane_b32 {s(sMAXL)}, {v(vX)}")
    A("v_addc_co_u32 v9, vcc, 0, v9, vcc")
    A.c("first round only: does everything fit in one round?")
    A(f"s_cmp_gt_u32 {s(sTP)}, {CAP_PAIRS}")
    A(f"s_cselect_b32 {s(sT1)}, 33, {s(sMAXL)}")
    A(f"s_cmp_gt_u32 {s(sT1)}, 32")
    A(f"s_cselect_b32 {s(sT1)}, 1, 0")
    A(f"s_cmp_gt_u32 {s(sT1)}, {s(sMODE)}")
    A(f"s_cselect_b32 {s(sT1)}, 0x80000000, 0")
    A("v_lshlrev_b32 v8, 2, v8")
    A("v_lshl_or_b32 v8, v9, 16, v8")
    A(f"v_or_b32 v8, {s(sT1)}, v8")
    A(f"v_lshrrev_b32 v9, 1, {v(vL8)}")
    A("s_mov_b64 exec, 0xffff")
    A(f"ds_write_b32 v9, v8 offset:{L_GEO}")
    A("s_mov_b64 exec, -1")
    A(f"v_readlane_b32 {s(sS)}, v8, {s(sWAVE)}")
    A("s_waitcnt lgkmcnt(0)")
    A("s_barrier")
    A("s_setprio 0")
    A(f"s_bitcmp1_b32 {s(sS)}, 31")
    A("s_cbranch_scc1 L_goslow")
    A.c("null padding: waves 5-8 pad slot n+k of every node, wave 9 pads the tail and writes the end marker")
    A(f"s_add_u32 {s(sT3)}, {s(sBKT)}, {N}")
    A("s_cmp_eq_u32 s3, 4")
    A("s_cbranch_scc1 L_padtail")
    A("s_lshl_b32 s3, s3, 3")
    for k in range(2):
        A(f"v_add_u32 v8, s3, {v(vCA+k)}")
        A(f"v_add_u32 v9, v8, {v(vSTA+k)}")
        A(f"v_cmp_lt_u32 vcc, v8, {v(vPA+k)}")
        A(f"v_lshl_add_u32 v10, {v(vL)}, 1, {k}")
        A(f"v_lshl_or_b32 v10, v10, 16, {s(sT3)}")
        A("v_lshrrev_b32 v11, 1, v9")
        A("s_mov_b64 exec, vcc")
        A(f"ds_write_b32 v11, v10 offset:{L_META - L_E//2}")
        A(f"ds_write_b64 v9, {v(vZ,2)}")
        A("s_mov_b64 exec, -1")
    A("s_branch L_geom")
    A.lab("L_padtail")
    A(f"s_add_u32 {s(sT0)}, {s(sTP)}, 3")
    A(f"s_and_b32 {s(sT0)}, {s(sT0)}, -4")
    A(f"s_lshl_b32 {s(sT0)}, {s(sT0)}, 1")
    A(f"s_lshl_b32 {s(sT1)}, {s(sTP)}, 1")
    A(f"v_add_u32 v8, {s(sT1)}, {v(vL)}")
    A(f"v_cmp_eq_u32 vcc, {s(sT0)}, v8")
    A(f"s_sub_u32 {s(sT1)}, {s(sSZ)}, 1")
    A(f"v_mov_b32 v10, {s(sT1)}")
    A("v_mov_b32 v11, 255")
    A("v_cndmask_b32 v10, v10, v11, vcc")
    A(f"v_cmp_ge_u32 vcc, {s(sT0)}, v8")
    A(f"v_lshl_or_b32 v10, v10, 16, {s(sT3)}")
    A("v_lshlrev_b32 v9, 3, v8")
    A(f"v_add_u32 v9, {L_E}, v9")
    A("v_lshrrev_b32 v11, 1, v9")
    A("s_mov_b64 exec, vcc")
    A(f"ds_write_b32 v11, v10 offset:{L_META - L_E//2}")
    A(f"ds_write_b64 v9, {v(vZ,2)}")
    A("s_mov_b64 exec, -1")
    A.lab("L_geom")
    A.stamp('s4')
    A(f"s_lshr_b32 {s(sL)}, {s(sS)}, 16")
    A(f"s_and_b32 {s(sS)}, {s(sS)}, 0xffff")
    A(f"s_lshl_b32 {s(sT3)}, {s(sS)}, 3")
    A(f"s_add_u32 {s(sT2)}, {s(sT3)}, {L_META}")
    A(f"s_lshl_b32 {s(sT4)}, {s(sL)}, 3")
    A(f"v_mov_b32 v56, {s(sT2)}")
    A(f"v_mad_u32_u24 {v(vIA)}, {v(vG4)}, {s(sT4)}, v56")
    A(f"v_mov_b32 v9, {v(IDX+1)}")
    A(f"v_mov_b32 v11, {v(IDX+1)}")
    A.stamp('scat')
    A.c("all table rows of this slice must be published")
    A(f"s_cmp_eq_u64 {s(sF2M,2)}, 0")
    A("s_cbranch_scc0 L_f2")
    A.lab("L_f2_done")
    A.stamp('f2')
    A("s_mov_b64 exec, -1")
    A(f"s_cmp_lt_u32 {s(sWAVE)}, 10")
    A("s_cbranch_scc0 L_nox")
    A(f"s_mov_b64 exec, {s(sOM,2)}")
    A(f"global_load_dwordx4 {v(vX,4)}, {v(vOUT)}, {s(sX,2)}")
    A("s_mov_b64 exec, -1")
    A.lab("L_nox")
    A("s_waitcnt lgkmcnt(0)")
    A.stamp('s5')
    if OPT.get('dwait'):
        for _ in range(OPT['dwait']): A("s_sleep 127")
    A("s_barrier")
    A("s_setprio 3")
    A.stamp('B6')

    def gather(buf, x):
        r = LB[buf][x] + 2
        A(f"buffer_load_dwordx4 {v(r,4)}, {v(IDX+2*x,2)}, {s(sTAB,4)}, 0 idxen offen {GF}")
    def rd_idx(off):
        A(f"ds_read_u16 {v(IDX)}, {v(vIA)} offset:{off}")
        A(f"ds_read_u16 {v(IDX+2)}, {v(vIA)} offset:{off+4}")
    def rd_xa():
        for k in (0, 2): A(f"ds_read2_b32 {v(XA+k,2)}, {v(vPTR)} offset0:{NSTR//4+16*k} offset1:{NSTR//4+16*k+16}")
    def rd_e(off):
        A(f"ds_read_b64 {v(AE[0],2)}, {v(vEA)} offset:{off}")
        A(f"ds_read_b64 {v(AE[1],2)}, {v(vEA)} offset:{off+8}")
    m32 = lambda d, buf, x: f"v_mfma_f32_16x16x32_bf16 {v(d,4)}, {v(AE[x],4)}, {v(LB[buf][x],4)}, {v(XA,4)}"
    m4h = lambda d, buf, x: f"v_mfma_f32_4x4x4_16b_bf16 {v(d,4)}, {v(IDM,2)}, {v(LB[buf][x]+4,2)}, 0"
    m4c = lambda d: f"v_mfma_f32_4x4x4_16b_bf16 {v(d,4)}, {v(IDM,2)}, {v(CB,2)}, {v(d,4)}"
    ex = lambda d: f"v_exp_f32_e64 {v(d)}, {v(d)} clamp"
    rcp = lambda k: f"v_rcp_f32_e32 {v(P+k)}, {v(P+k)}"

    rd_idx(0)
    A(f"ds_read_u16 v8, {v(vIA)} offset:8")
    A(f"ds_read_u16 v10, {v(vIA)} offset:12")
    A(f"ds_read_u16 v12, {v(vIA)} offset:2")
    A(f"s_sub_u32 {s(sT0)}, {s(sL)}, 1")
    A(f"s_bfm_b64 {s(sF2M,2)}, {s(sT0)}, 0")
    A(f"s_mov_b32 {s(sT1)}, {NSTR}")
    A("s_waitcnt lgkmcnt(3)")
    gather(0, 0); gather(0, 1)
    A.c("the remaining setup runs while those rows are on their way")
    A(f"v_lshrrev_b32 v60, 5, {v(vL)}")
    A(f"v_mad_u32_u24 v60, v60, {s(sT4)}, v56")
    A(f"v_and_b32 v61, 0xf8, {v(vL8)}")
    A("v_add_u32 v60, v60, v61")
    A(f"s_lshl_b32 {s(sT4)}, {s(sL)}, 4")
    A(f"v_add_u32 v61, {s(sT4)}, v60")
    A(f"s_lshl1_add_u32 {s(sT2)}, {s(sT3)}, {L_E}")
    A(f"v_bfe_u32 v57, {v(vL)}, 2, 2")
    A(f"v_mov_b32 v58, {s(sT2)}")
    A(f"v_mad_u32_u24 v57, v57, {s(sT4)}, v58")
    A(f"v_cmp_ne_u32 vcc, 0, {v(vEI)}")
    A(f"v_mov_b32 v15, {v(vL8)}")
    A(f"v_mov_b32 v58, {L_ZERO+OPT.get('zo', 8)}")
    A(f"v_cndmask_b32 {v(vEA)}, v58, v57, vcc")
    for k in range(4): A(f"v_mov_b32 {v(P+k)}, 1.0")
    for k in range(8): A(f"v_mov_b64 {v(S+2*k,2)}, 0")
    A("s_waitcnt lgkmcnt(0)")
    A(f"buffer_load_dwordx4 {v(LB[1][0]+2,4)}, v[8:9], {s(sTAB,4)}, 0 idxen offen {GF}")
    A(f"buffer_load_dwordx4 {v(LB[1][1]+2,4)}, v[10:11], {s(sTAB,4)}, 0 idxen offen {GF}")
    for g in range(2):
        A(f"ds_read_u16 {v(16+2*g)}, {v(60+g)} offset:2")
        A(f"ds_read_u16 {v(17+2*g)}, {v(60+g)} offset:10")
    rd_e(0)
    A(f"s_cmp_eq_u32 {s(sMODE)}, 0")
    A("s_cbranch_scc1 L_nozero")
    A(f"ds_write_b64 v15, {v(vZ,2)} offset:{L_CNT2}")
    A.lab("L_nozero")
    A(f"v_mad_u32_u24 {v(vPTR)}, v12, {s(sT1)}, v127")
    rd_xa()
    rd_idx(16)
    A("s_waitcnt lgkmcnt(6)")
    A.c("node-end masks per stream; bit k of s[MK+2g] / s[MK+2g+1]: flush / switch stream g after step k-1")
    A(f"s_mov_b32 {s(sEND)}, 0")
    for g in (3, 2, 1, 0):
        if g & 1: A(f"v_cmp_ne_u32 vcc, {v(16+(g&2))}, {v(17+(g&2))}")
        half = "vcc_hi" if g & 1 else "vcc_lo"
        A(f"s_bitcmp1_b32 {half}, {s(sT0)}")
        A(f"s_addc_u32 {s(sEND)}, {s(sEND)}, {s(sEND)}")
        A(f"s_and_b32 {s(sMK+2*g+1)}, {half}, {s(sF2M)}")
        A(f"s_lshl_b32 {s(sMK+2*g)}, {s(sMK+2*g+1)}, 2")
    A(f"s_or_b64 {s(sMK+8,2)}, {s(sMK,2)}, {s(sMK+2,2)}")
    A(f"s_or_b64 {s(sP0,2)}, {s(sMK+4,2)}, {s(sMK+6,2)}")
    A(f"s_or_b64 {s(sMK+8,2)}, {s(sMK+8,2)}, {s(sP0,2)}")
    A(f"s_or_b32 {s(sP0)}, {s(sMK+8)}, {s(sMK+9)}")
    A(f"s_lshr_b32 {s(sP0)}, {s(sP0)}, 1")
    A(f"s_bitset1_b32 {s(sP0)}, {s(sT0)}")
    if OPT.get('noev'):
        A(f"s_mov_b32 {s(sP0)}, 0")
        A(f"s_bitset1_b32 {s(sP0)}, {s(sT0)}")
    FR = [int(x) for x in str(OPT.get('fr', '8.13.15')).split('.')]
    for k in range(3):
        A(f"s_mul_i32 {s(sMK+10+k)}, {s(sL)}, {FR[k]}")
        A(f"s_lshr_b32 {s(sMK+10+k)}, {s(sMK+10+k)}, 4")
        if OPT.get('frf', 0): A(f"s_bitset1_b32 {s(sP0)}, {s(sMK+10+k)}")
    if OPT.get('tail', 1):
        A(f"s_sub_u32 {s(sT1)}, {s(sL)}, 4")
        A(f"s_max_i32 {s(sT1)}, {s(sT1)}, 0")
        A(f"s_bitset1_b32 {s(sP0)}, {s(sT1)}")
    A(f"s_brev_b32 {s(sEV)}, {s(sP0)}")
    A(f"s_sub_u32 {s(sLM)}, {s(sL)}, 32")
    if OPT.get('sched') in ('tpk', 'hv', 'hvpk'):
        A(f"s_mov_b32 s12, {hex((127 - SHIFT) << 23)}")
        A(f"s_mov_b32 s13, {hex((127 - SHIFT) << 23)}")
        A("s_mov_b32 s14, 0xffff0000")
    if OPT.get('tail', 1):
        A(f"s_cmp_gt_u32 {s(sL)}, 3")
        A("s_cselect_b64 vcc, 1, 0")
    A.stamp('f0')
    A("s_waitcnt vmcnt(2) lgkmcnt(0)")
    A.stamp('f1')
    A(m32(T[0][0], 0, 0)); A(m32(T[0][1], 0, 1)); A(m4h(H[0][0], 0, 0)); A(m4h(H[0][1], 0, 1))
    gather(0, 0); gather(0, 1)
    rd_e(16)
    rd_idx(24)
    def exec_from(half, idx):
        for lo, hi, dst in ((0, 1, "exec_lo"), (2, 3, "exec_hi")):
            A(f"s_bitcmp1_b32 {s(sMK+2*lo+half)}, {idx}")
            A(f"s_cselect_b32 {s(sT1)}, 0xffff, 0")
            A(f"s_bitcmp1_b32 {s(sMK+2*hi+half)}, {idx}")
            A(f"s_cselect_b32 {s(sT2)}, 0xffff0000, 0")
            A(f"s_or_b32 {dst}, {s(sT1)}, {s(sT2)}")
    A(f"s_bitcmp1_b32 {s(sMK+9)}, 0")
    A.stamp('fill')
    A("s_cbranch_scc0 L_loop")
    exec_from(1, "0")
    A(f"v_add_u32 {v(vPTR)}, {NSTR}, {v(vPTR)}")
    rd_xa()
    A("s_mov_b64 exec, -1")

    def body(c, ioff, eoff):
        loopbody.body(A, c, ioff, eoff, sTAB, sEV, GF, OPT.get('sched', 'v7t'))

    def handler(tag, ret):
        A(f"s_ff1_i32_b32 {s(sT0)}, {s(sEV)}")
        A(f"s_cmp_eq_u32 {s(sEV)}, 0")
        A(f"s_cselect_b32 {s(sT0)}, 32, {s(sT0)}")
        A(f"s_add_u32 {s(sT0)}, {s(sT0)}, {s(sLM)}")
        A(f"s_add_u32 {s(sT2)}, {s(sT0)}, 3")
        A(f"s_cmp_gt_u32 {s(sL)}, {s(sT2)}")
        A("s_cselect_b64 vcc, 1, 0")
        A(f"s_bitcmp1_b32 {s(sMK+8)}, {s(sT0)}")
        A(f"s_cbranch_scc0 L_nofl{tag}")
        exec_from(0, s(sT0))
        for k in range(0, 8, 2):
            A(f"ds_write2_b32 {v(vPTR)}, {v(DEN+k)}, {v(DEN+k+1)} offset0:{64+16*k} offset1:{80+16*k}")
        A(f"ds_read_b128 {v(DEN,4)}, {v(vZA)}")
        A(f"ds_read_b128 {v(NUM,4)}, {v(vZA)}")
        A.lab(f"L_nofl{tag}")
        A(f"s_bitcmp1_b32 {s(sMK+9)}, {s(sT0)}")
        A(f"s_cbranch_scc0 L_nosw{tag}")
        exec_from(1, s(sT0))
        A(f"v_add_u32 {v(vPTR)}, {NSTR}, {v(vPTR)}")
        rd_xa()
        A.lab(f"L_nosw{tag}")
        A("s_mov_b64 exec, -1")
        A.c("waves that are ahead yield to the ones behind")
        for k in range(3):
            A(f"s_cmp_gt_u32 {s(sT0)}, {s(sMK+10+k)}")
            A(f"s_cbranch_scc0 L_pr{tag}")
            A(f"s_setprio {2-k}")
        A.lab(f"L_pr{tag}")
        A(f"s_cmp_lg_u32 {s(sEV)}, 0")
        A(f"s_cbranch_scc1 {ret}")

    A.raw(".p2align 3")
    A.lab("L_loop")
    body(0, 32, 32)
    A("s_cbranch_scc1 L_h0")
    A.lab("L_r0")
    A(f"v_add_u32 {v(vIA)}, 16, {v(vIA)}")
    body(1, 24, 48)
    A(f"v_add_u32 {v(vEA)}, {v(vEI)}, {v(vEA)}")
    A("s_cbranch_scc0 L_loop")
    handler(1, "L_loop")
    A("s_branch L_drain")
    A.lab("L_h0")
    handler(0, "L_r0")
    A("s_branch L_drain")
    for c in range(2 if ' K ' in loopbody.SCHED[OPT.get('sched', 'v7t')] else 0):
        A.lab(f"L_skipg{c}")
        A("s_waitcnt vmcnt(0)")
        A(f"s_branch L_backg{c}")
    A.lab("L_drain")
    A.stamp('dr')
    A.c("last segment of each stream: node sum if it ends the node, else a partial slot")
    A(f"v_add_u32 v18, {NSTR+256}, {v(vPTR)}")
    for k in range(4): A(rcp(k))
    for _ in range(4): A(f"s_bitreplicate_b64_b32 {s(sP0,2)}, {s(sEND) if _ == 0 else s(sP0)}")
    A(f"v_cndmask_b32 v17, {v(vXA_)}, v18, {s(sP0,2)}")
    A(f"s_mov_b32 {s(sP1)}, 0x00010001")
    A(f"s_mov_b32 {s(sP1+1)}, 0x00010001")
    A("s_waitcnt lgkmcnt(0)")
    for k in (0, 2): A(f"v_pk_fma_f32 {v(DEN+k,2)}, {v(S+k,2)}, {v(P+k,2)}, {v(DEN+k,2)}")
    for k in (0, 2): A(f"v_pk_fma_f32 {v(NUM+k,2)}, {v(AA+k,2)}, {v(P+k,2)}, {v(NUM+k,2)}")
    for k in range(0, 8, 2):
        A(f"ds_write2_b32 v17, {v(DEN+k)}, {v(DEN+k+1)} offset0:{16*k} offset1:{16*k+16}")
    A(f"s_andn2_b64 exec, {s(sP1,2)}, {s(sP0,2)}")
    A(f"ds_add_u32 {v(vPTR)}, {v(vONE)} offset:{NSTR+NCNT}")
    A(f"ds_max_u32 {v(vPTR)}, {v(vSID)} offset:{NSTR+NCNT+4}")
    A("s_mov_b64 exec, -1")
    A(f"s_mov_b32 {s(sT1)}, {XSTR}")
    A(f"v_xor_b32 v15, 16, {v(vXU)}")
    A.stamp('loopend')
    A(f"s_mov_b32 {s(sP0)}, {hex(EPS)}")
    A(f"s_mov_b32 {s(sP0+1)}, {hex(EPS)}")
    A(f"s_cmp_lt_u32 {s(sWAVE)}, 10")
    A("s_waitcnt vmcnt(0)")
    A("s_cbranch_scc0 L_nounp")
    for k in range(4):
        A(f"v_lshlrev_b32 {v(76+2*k)}, 16, {v(vX+k)}")
        A(f"v_and_b32 {v(76+2*k+1)}, 0xffff0000, {v(vX+k)}")
    A.lab("L_nounp")
    A("s_waitcnt lgkmcnt(0)")
    A("s_barrier")
    A.stamp('B7')
    A(f"s_cmp_lt_u32 {s(sWAVE)}, 10")
    A("s_cbranch_scc0 L_nocomb")
    D8, N8, U8, XF, Q8 = 24, 32, 40, 48, 64
    A(f"ds_read_b64 v[16:17], {v(vNSA)} offset:{NCNT}")
    for k in range(4):
        A(f"ds_read_b128 {v(D8+4*k,4)}, {v(vDN)} offset:{256+256*(k>>1)+16*(k&1)}")
    A(f"ds_read_b128 {v(U8,4)}, {v(vXU)}")
    A(f"ds_read_b128 {v(U8+4,4)}, v15")
    A(f"s_mov_b32 {s(sT0)}, 0")
    A("s_waitcnt lgkmcnt(6)")
    A(f"v_mad_u32_u24 v18, v17, {s(sT1)}, {v(vXL)}")
    A.stamp('o1')
    A("v_cmp_lt_u32 vcc, 0, v16")
    A.lab("L_part")
    A("s_mov_b64 exec, vcc")
    for k in range(4):
        A(f"ds_read_b128 {v(XF+4*k,4)}, v18 offset:{256*(k>>1)+16*(k&1)}")
    A(f"s_add_u32 {s(sT0)}, {s(sT0)}, 1")
    A(f"v_subrev_u32 v18, {XSTR}, v18")
    A(f"v_cmp_lt_u32 vcc, {s(sT0)}, v16")
    A("s_waitcnt lgkmcnt(2)")
    for k in range(4):
        A(f"v_pk_add_f32 {v(D8+2*k,2)}, {v(D8+2*k,2)}, {v(XF+2*k,2)}")
    A("s_waitcnt lgkmcnt(0)")
    for k in range(4, 8):
        A(f"v_pk_add_f32 {v(D8+2*k,2)}, {v(D8+2*k,2)}, {v(XF+2*k,2)}")
    A("s_cbranch_vccnz L_part")
    A("s_mov_b64 exec, -1")
    A(f"s_cmp_eq_u32 {s(sMODE)}, 0")
    A("s_cbranch_scc0 L_slowcomb")
    A.lab("L_final")
    A.stamp('o2')
    A("s_waitcnt lgkmcnt(0)")
    for k in range(4):
        A(f"v_pk_add_f32 {v(D8+2*k,2)}, {v(D8+2*k,2)}, {s(sP0,2)}")
    for k in range(8):
        A(f"v_rcp_f32 {v(D8+k)}, {v(D8+k)}")
    for k in range(4):
        A(f"v_pk_fma_f32 {v(U8+2*k,2)}, {v(N8+2*k,2)}, {v(D8+2*k,2)}, {v(U8+2*k,2)}")
    for k in range(8):
        A(f"v_max_f32 {v(U8+k)}, 0, {v(U8+k)}")
    for k in range(4):
        A(f"v_pk_add_f32 {v(U8+2*k,2)}, {v(U8+2*k,2)}, {v(76+2*k,2)}")
    for k in range(4):
        A(f"v_cvt_pk_bf16_f32 {v(D8+k)}, {v(U8+2*k)}, {v(U8+2*k+1)}")
    A(f"s_mov_b64 exec, {s(sOM,2)}")
    A(f"global_store_dwordx4 {v(vOUT)}, {v(D8,4)}, {s(sOUT,2)} {OPT.get('of', 'sc0 sc1 nt')}")
    A.lab("L_out_done")
    A.stamp('o3')
    if diag and 'co4' in A.st:
        A("s_waitcnt vmcnt(0)")
        A.stamp('o4')
    if diag == 4:
        A("s_waitcnt lgkmcnt(0)")
        for k, key in enumerate(('sa',)):
            kind, wv = OPT[key].split('.')
            A(f"s_sub_u32 {s(sT1)}, {s(sST+2+2*k)}, {s(sNON)}")
            A(f"s_add_u32 {s(sT1)}, {s(sT1)}, 100")
            A(f"v_mov_b32 v8, {s(sT1)}")
            A(f"s_cmp_eq_u32 {s(sWAVE)}, {wv}")
            if OPT.get('xcc') is not None:
                A(f"s_cselect_b32 {s(sT2)}, 0, 64")
                A(f"s_getreg_b32 {s(sT3)}, hwreg(HW_REG_XCC_ID, 0, 4)")
                A(f"s_or_b32 {s(sT2)}, {s(sT2)}, {s(sT3)}")
                A(f"s_cmp_eq_u32 {s(sT2)}, {OPT['xcc']}")
            A("s_cselect_b64 exec, 1, 0")
            A(f"s_cbranch_execz L_pb{k}")
            A(f"global_atomic_{'add' if kind == 'mean' else 'umax'} {v(vZ)}, v8, {s(sDBG,2)} offset:{128+4*k} sc1")
            A.lab(f"L_pb{k}")
            A("s_mov_b64 exec, -1")
        A(f"s_or_b32 {s(sT0)}, s2, {s(sWAVE)}")
        A("s_cbranch_scc1 L_nohold")
        A.lab("L_hold0")
        A(f"s_memrealtime {s(sP0,2)}")
        A("s_waitcnt lgkmcnt(0)")
        A(f"s_sub_u32 {s(sT0)}, {s(sP0)}, {s(sNON)}")
        A(f"s_cmp_lt_u32 {s(sT0)}, 4500")
        A("s_cbranch_scc1 L_hold0")
        A(f"global_load_dwordx2 v[8:9], {v(vZ)}, {s(sDBG,2)} offset:128 sc1")
        A("s_waitcnt vmcnt(0)")
        A(f"v_readfirstlane_b32 {s(sT1)}, v8")
        A(f"v_readfirstlane_b32 {s(sT2)}, v9")
        if OPT['sa'].startswith('mean'): A(f"s_mul_hi_u32 {s(sT1)}, {s(sT1)}, {(1 << 32) // 5 + 1}")
        else: A(f"s_mul_i32 {s(sT1)}, {s(sT1)}, 50")
        A(f"s_min_u32 {s(sT1)}, {s(sT1)}, 200000")
        A(f"s_add_u32 {s(sT1)}, {s(sT1)}, 5000")
        A.lab("L_hold")
        A("s_sleep 8")
        A(f"s_memrealtime {s(sP0,2)}")
        A("s_waitcnt lgkmcnt(0)")
        A(f"s_sub_u32 {s(sT0)}, {s(sP0)}, {s(sNON)}")
        A(f"s_cmp_lt_u32 {s(sT0)}, {s(sT1)}")
        A("s_cbranch_scc1 L_hold")
        A.lab("L_nohold")
    if diag == 3:
        A("s_waitcnt lgkmcnt(0)")
        A(f"s_sub_u32 {s(sT1)}, {s(sST+2)}, {s(sST+1)}")
        A(f"s_cmp_gt_u32 {s(sT1)}, 10000")
        A(f"s_cselect_b32 {s(sT1)}, 0, {s(sT1)}")
        if OPT.get('wg') is not None:
            A(f"s_cmp_eq_u32 s2, {OPT['wg']}")
            A("s_cbranch_scc0 L_nohold")
        if OPT.get('wv') is not None:
            A(f"s_cmp_eq_u32 {s(sWAVE)}, {OPT['wv']}")
            A("s_cbranch_scc0 L_nohold")
        A(f"s_lshl_b32 {s(sT1)}, {s(sT1)}, 1")
        A(f"s_add_u32 {s(sT1)}, {s(sT1)}, 4000")
        A.lab("L_hold")
        A(f"s_memrealtime {s(sP0,2)}")
        A("s_waitcnt lgkmcnt(0)")
        A(f"s_sub_u32 {s(sT0)}, {s(sP0)}, {s(sST+1)}")
        A(f"s_cmp_lt_u32 {s(sT0)}, {s(sT1)}")
        A("s_cbranch_scc1 L_hold")
        A.lab("L_nohold")
    if OPT.get('hold'):
        A.lab("L_hold")
        A(f"s_memrealtime {s(sP0,2)}")
        A("s_waitcnt lgkmcnt(0)")
        A(f"s_sub_u32 {s(sT0)}, {s(sP0)}, {s(sST+1)}")
        A(f"s_cmp_lt_u32 {s(sT0)}, {OPT['hold']}")
        A("s_cbranch_scc1 L_hold")
    if diag == 1:
        A("s_waitcnt vmcnt(0)")
        A(f"s_memrealtime {s(sP0,2)}")
        A(f"s_memtime {s(sP1,2)}")
        A("s_waitcnt lgkmcnt(0)")
        A(f"s_sub_u32 {s(sT1)}, {s(sP1)}, {s(sST)}")
        A(f"s_mov_b32 {s(sST)}, {s(sST+1)}")
        A("v_mov_b32 v8, 0")
        for k in range(8): A(f"v_writelane_b32 v8, {s(sST+2*k)}, {k}")
        A(f"v_writelane_b32 v8, {s(sP0)}, 8")
        A(f"v_writelane_b32 v8, {s(sL)}, 9")
        A(f"v_writelane_b32 v8, {s(sT1)}, 10")
        A("v_writelane_b32 v8, s101, 11")
        A(f"s_getreg_b32 {s(sT0)}, hwreg(HW_REG_XCC_ID)")
        A(f"v_writelane_b32 v8, {s(sT0)}, 12")
        A(f"s_getreg_b32 {s(sT0)}, hwreg(HW_REG_HW_ID)")
        A(f"v_writelane_b32 v8, {s(sT0)}, 13")
        A("s_lshl_b32 s3, s2, 4")
        A(f"s_add_u32 s3, s3, {s(sWAVE)}")
        A("s_lshl_b32 s3, s3, 6")
        A(f"s_add_u32 s3, s3, {OFF_DIAG}")
        A(f"v_lshl_add_u32 v9, {v(vL)}, 2, s3")
        A("s_mov_b64 exec, 0xffff")
        A(f"global_store_dword v9, v8, {s(sWS,2)}")
    A("s_endpgm")
    A.lab("L_f2")
    A(f"s_mov_b32 {s(sSPIN)}, {SPIN}")
    A(f"s_mov_b64 exec, {s(sF2M,2)}")
    A(f"global_load_dwordx2 {v(vF2,2)}, {v(vF2A)}, {s(sWS,2)} sc1")
    A.lab("L_f2l")
    A("s_waitcnt vmcnt(0)")
    f2_check("b", "L_f2r")
    A("s_branch L_f2_done")
    A.lab("L_f2r")
    A(f"s_sub_u32 {s(sSPIN)}, {s(sSPIN)}, 1")
    A("s_cbranch_scc1 L_f2_done")
    A("s_sleep 1")
    A(f"global_load_dwordx2 {v(vF2,2)}, {v(vF2A)}, {s(sWS,2)} sc1")
    A("s_branch L_f2l")
    A.c("more records than one round holds: restart in rounds of 11 records per segment")
    A.lab("L_goslow")
    A(f"ds_read_b32 v56, {v(vZ)} offset:{M_MAXLEN}")
    A("s_waitcnt lgkmcnt(0)")
    A(f"v_readfirstlane_b32 {s(sMAXL)}, v56")
    A(f"s_mov_b32 {s(sMODE)}, 1")
    A(f"s_mov_b32 {s(sWM)}, {hex(((1 << SLOWK) - 1) * 0x10001)}")
    A(f"s_mov_b32 {s(sWM+1)}, {hex(((1 << SLOWK) - 1) * 0x10001)}")
    A("s_waitcnt vmcnt(0)")
    A("s_barrier")
    A(f"ds_write_b64 {v(vL8)}, {v(vZ,2)} offset:{L_CNT2}")
    A("s_waitcnt lgkmcnt(0)")
    A("s_barrier")
    A("s_branch L_nextround2")
    A.lab("L_nextround")
    A(f"s_mov_b64 {s(sF2M,2)}, 0")
    A(f"v_lshlrev_b32 {v(vL8)}, 3, {v(vL)}")
    for bb in LB:
        for x in bb:
            A(f"ds_read_b64 {v(x,2)}, {v(vL8)} offset:{L_WC}")
    A.lab("L_nextround2")
    A(f"s_mov_b32 {s(sANY)}, 0")
    for j in range(2 * NJ): A(f"s_mov_b64 {s(sMK+2*j,2)}, 0")
    A(f"s_mov_b64 {s(sP0,2)}, {s(sEX,2)}")
    A(f"s_mov_b64 {s(sDONE,2)}, {s(sEX,2)}")
    A("s_branch L_round")
    A.c("multi-round mode: waves without output work just go on")
    A.lab("L_nocomb")
    A(f"s_cmp_eq_u32 {s(sMODE)}, 0")
    A("s_cbranch_scc1 L_out_done")
    A(f"s_add_u32 {s(sLO)}, {s(sLO)}, {SLOWK}")
    A(f"s_cmp_lt_u32 {s(sLO)}, {s(sMAXL)}")
    A("s_cbranch_scc1 L_nextround")
    A("s_branch L_out_done")
    A.c("multi-round mode: running sums live in this workgroup's scratch, one 64-byte record per thread")
    A.lab("L_slowcomb")
    A(f"s_mul_i32 {s(sT0)}, s2, 40960")
    A(f"s_add_u32 {s(sT0)}, {s(sT0)}, {OFF_ACC}")
    add64(A, sP0, sWS, s(sT0))
    A("v_lshlrev_b32 v20, 6, v0")
    A("s_waitcnt lgkmcnt(0)")
    A(f"ds_write_b64 v124, {v(vZ,2)} offset:{NCNT}")
    A(f"s_cmp_eq_u32 {s(sLO)}, 0")
    A("s_cbranch_scc1 L_slow1")
    for k in range(4):
        A(f"global_load_dwordx4 {v(48+4*k,4)}, v20, {s(sP0,2)} offset:{16*k} sc1")
    A("s_waitcnt vmcnt(0)")
    for k in range(8):
        A(f"v_pk_add_f32 {v(24+2*k,2)}, {v(24+2*k,2)}, {v(48+2*k,2)}")
    A.lab("L_slow1")
    A(f"s_add_u32 {s(sLO)}, {s(sLO)}, {SLOWK}")
    A(f"s_cmp_lt_u32 {s(sLO)}, {s(sMAXL)}")
    A("s_cbranch_scc0 L_final2")
    for k in range(4):
        A(f"global_store_dwordx4 v20, {v(24+4*k,4)}, {s(sP0,2)} offset:{16*k} sc1")
    A("s_waitcnt vmcnt(0) lgkmcnt(0)")
    A("s_branch L_nextround")
    A.c("never reached while all workgroups are resident: stop waiting, treat the missing segments as empty")
    A.lab("L_giveup")
    A(f"v_mov_b32 {v(vGW)}, 0")
    A("s_branch L_polled")
    A.lab("L_final2")
    A(f"s_mov_b32 {s(sP0)}, {hex(EPS)}")
    A(f"s_mov_b32 {s(sP0+1)}, {hex(EPS)}")
    A("s_branch L_final")
    A.lab("L_end")
    A("s_endpgm")
    return A.L


HEADER = open(os.path.join(os.path.dirname(os.path.abspath(__file__)), "header.txt")).read()


def emit(path, diag=0, **o):
    body = build(diag, **o)
    errs = hazard.check(body, "linear")
    for e in errs: print("HAZARD", e)
    out = [HEADER.rstrip("\n")] + ([f"; stamps: {o.get('st', 'pDst|gB3 pOut|gMM ph2 polled recs B6 loopend')}"] if diag else []) + [
           f"; @launch grid=({NC},1,1) block=(1024,1,1) lds={LDS_SIZE}",
           '.amdgcn_target "amdgcn-amd-amdhsa--gfx950"', ".text", f".globl {KNAME}", ".p2align 8",
           f".type {KNAME},@function", f"{KNAME}:"]
    out += body
    out += ['.section .rodata,"a"', ".p2align 6", f".amdhsa_kernel {KNAME}",
            "  .amdhsa_next_free_vgpr 128", "  .amdhsa_next_free_sgpr 102", "  .amdhsa_accum_offset 128",
            "  .amdhsa_group_segment_fixed_size 0", "  .amdhsa_kernarg_size 96", "  .amdhsa_user_sgpr_count 2",
            "  .amdhsa_user_sgpr_kernarg_segment_ptr 1", "  .amdhsa_system_sgpr_workgroup_id_x 1",
            ".end_amdhsa_kernel"]
    open(path, "w").write("\n".join(out) + "\n")
    return len(errs)


if __name__ == "__main__":
    root = os.path.dirname(os.path.dirname(os.path.abspath(__file__)))
    emit(os.path.join(root, "cdna_kernels", "standalone__edge_featured_mpnn_gatedgcn__graph.s"), 0)
    emit(os.path.join(root, "gen", "diag.s"), 1)
    for a in sys.argv[1:]:
        name, _, rest = a.partition(':')
        o = {}
        for kv in rest.split(','):
            if kv:
                k, _, val = kv.partition('=')
                o[k] = int(val) if val.lstrip('-').isdigit() else val.replace('+', ' ')
        emit(os.path.join(root, "gen", f"diag_{name}.s"), o.pop('diag', 1), **o)
```
